```python
import torch

def _softmax(x, axis=-1):
    return torch.softmax(x, dim=axis)
def _gelu(x):
    return torch.nn.functional.gelu(x, approximate="tanh")
def _silu(x):
    return torch.nn.functional.silu(x)
def _sigmoid(x):
    return torch.sigmoid(x)
def _layernorm(x, axis=-1, eps=1e-5):
    m = x.mean(dim=axis, keepdim=True)
    v = x.var(dim=axis, keepdim=True, unbiased=False)
    return (x - m) / torch.sqrt(v + eps)
def _scatter_add(tgt, idx, src, axis=0):
    return tgt.clone().index_add_(axis, idx, src)
def _segment_sum(src, seg, n):
    out = torch.zeros((n,) + src.shape[1:], dtype=src.dtype)
    return out.index_add_(0, seg, src)
def _pad(x, pw):
    flat = tuple(v for pair in reversed(pw) for v in pair)
    return torch.nn.functional.pad(x, flat)

kernel_name = 'gather_scatter__edge_featured_mpnn_egc__graph'

def setup_inputs():

    _w = (lambda a: (lambda t: t.to(torch.bfloat16) if t.is_floating_point() else t)(torch.as_tensor(a)))
    N, deg, D, De = 10000, 32, 128, max(16, 1)
    E = N * deg
    return {
        "x": _w((lambda *s: torch.randn(*s, dtype=torch.bfloat16) * 0.2)(N, D)),
        "e_attr": _w((lambda *s: torch.randn(*s, dtype=torch.bfloat16) * 0.2)(E, De)),
        "src": _w((lambda lo, hi, *s: torch.randint(lo, hi, s))(0, N, E).to(torch.int64)),
        "dst": _w((lambda lo, hi, *s: torch.randint(lo, hi, s))(0, N, E).to(torch.int64)),
        "u_w": _w((lambda *s: torch.randn(*s, dtype=torch.bfloat16) * 0.05)(D, D)),
        "v_w": _w((lambda *s: torch.randn(*s, dtype=torch.bfloat16) * 0.05)(D, D)),
        "g_w": _w((lambda *s: torch.randn(*s, dtype=torch.bfloat16) * 0.2)(2 * D + De, D)),
    }

def reference(x, e_attr, src, dst, u_w, v_w, g_w):
    N, D = x.shape
    g_in = torch.concatenate([x[dst], x[src], e_attr], axis=-1)
    eta = _sigmoid(g_in @ g_w)
    hv = x @ v_w
    msg = eta * hv[src]
    agg = _segment_sum(msg, dst, N)
    return _silu(x @ u_w + agg)
```

```python
import sys

N = 10000; E = 320000
NB = 512
NCH = 250; CH = 1280
WS_T = 0
WS_T_SZ = NCH * NB * 4
WS_REC = 0x80000
WS_W = 0x1C0000
WS_SZ = 0x200000
F_B, F_V, F_A, F_U, F_C = 0, 32, 64, 96, 128
NEG_LOG2E = 0xBFB8AA3B

class A:
    def __init__(self):
        self.l = []
    def __call__(self, s=""):
        for x in s.split("\n"):
            x = x.strip()
            if not x: continue
            if x.endswith(":"):
                self.l.append(x)
            else:
                self.l.append("    " + x)
    def c(self, s):
        self.l.append("    ; " + s)
    def raw(self, s):
        self.l.append(s)
    def text(self):
        return "\n".join(self.l) + "\n"

def srd(a, r, lo, hi, size, stride=0):
    a(f"s_mov_b32 s{r}, s{lo}")
    if stride:
        a(f"s_and_b32 s{r+1}, s{hi}, 0xffff")
        a(f"s_or_b32 s{r+1}, s{r+1}, {stride << 16:#x}")
    else:
        a(f"s_and_b32 s{r+1}, s{hi}, 0xffff")
    a(f"s_mov_b32 s{r+2}, {size:#x}")
    a(f"s_mov_b32 s{r+3}, 0x20000")

def wave_scan(a, v):
    for sh in (1, 2, 4, 8):
        a("s_nop 1")
        a(f"v_add_u32_dpp v{v}, v{v}, v{v} row_shr:{sh} row_mask:0xf bank_mask:0xf bound_ctrl:1")
    a("s_nop 1")
    a(f"v_add_u32_dpp v{v}, v{v}, v{v} row_bcast:15 row_mask:0xa bank_mask:0xf")
    a("s_nop 1")
    a(f"v_add_u32_dpp v{v}, v{v}, v{v} row_bcast:31 row_mask:0xc bank_mask:0xf")
    a("s_nop 1")

def header(a, name):
    a.raw(f".globl {name}")
    a.raw(".p2align 8")
    a.raw(f".type {name},@function")
    a.raw(f"{name}:")

def descriptor(name, vgpr, sgpr):
    acc = (vgpr + 3) // 4 * 4
    return f""".section .rodata,"a"
.p2align 6
.amdhsa_kernel {name}
  .amdhsa_next_free_vgpr {vgpr}
  .amdhsa_next_free_sgpr {sgpr}
  .amdhsa_accum_offset {acc}
  .amdhsa_group_segment_fixed_size 0
  .amdhsa_kernarg_size 80
  .amdhsa_user_sgpr_count 2
  .amdhsa_user_sgpr_kernarg_segment_ptr 1
  .amdhsa_system_sgpr_workgroup_id_x 1
  .amdhsa_float_denorm_mode_32 3
.end_amdhsa_kernel
.text
"""

P_BLOCK = 320
P_WWG = 27
P_GRID = NCH + P_WWG
P_HIST, P_START, P_SORT = 0, 2048, 4096
P_LDS = 4096 + 5120

def prep_kernel():
    a = A()
    header(a, "prep_kernel")
    a(f"s_cmp_ge_u32 s2, {P_GRID}")
    a("s_cbranch_scc1 P_end")
    a(f"s_cmp_ge_u32 s2, {NCH}")
    a("s_cbranch_scc1 P_weights")
    a("s_load_dwordx4 s[4:7], s[0:1], 16")
    a("s_load_dwordx2 s[8:9], s[0:1], 72")
    a("v_lshlrev_b32 v1, 4, v0")
    a("v_mov_b32 v4, 0\nv_mov_b32 v5, 0\nv_mov_b32 v6, 0\nv_mov_b32 v7, 0")
    a("ds_write_b128 v1, v[4:7]")
    a(f"s_mul_i32 s3, s2, {CH*4}")
    a("s_mov_b32 s20, 214749")
    a("s_movk_i32 s21, 625")
    a("v_lshrrev_b32 v2, 6, v0")
    a("v_mov_b32 v3, 1")
    a("v_readfirstlane_b32 s22, v2")
    a("s_waitcnt lgkmcnt(0)")
    srd(a, 12, 4, 5, E * 4)
    srd(a, 16, 6, 7, E * 4)
    a("buffer_load_dwordx4 v[8:11], v1, s[16:19], s3 offen")
    a("buffer_load_dwordx4 v[12:15], v1, s[12:15], s3 offen")
    srd(a, 24, 8, 9, WS_SZ)
    a("v_lshlrev_b32 v40, 2, v0")
    a("s_barrier")
    a("s_waitcnt vmcnt(1)")
    for i in range(4):
        a(f"v_mul_u32_u24 v{16+i}, s20, v{8+i}")
    for i in range(4):
        a(f"v_lshrrev_b32 v{16+i}, 22, v{16+i}")
    for i in range(4):
        a(f"v_lshlrev_b32 v{20+i}, 2, v{16+i}")
    for i in range(4):
        a(f"ds_add_rtn_u32 v{24+i}, v{20+i}, v3")
    for i in range(4):
        a(f"v_mad_u32_u24 v{28+i}, v{16+i}, s21, 31")
    for i in range(4):
        a(f"v_lshrrev_b32 v{28+i}, 5, v{28+i}")
    for i in range(4):
        a(f"v_sub_u32 v{28+i}, v{8+i}, v{28+i}")
    for i in range(4):
        a(f"v_lshrrev_b32 v{32+i}, 1, v{28+i}")
    for i in range(4):
        a(f"v_xor_b32 v{32+i}, v{32+i}, v{28+i}")
    for i in range(4):
        a(f"v_and_b32 v{32+i}, 4, v{32+i}")
    for i in range(4):
        a(f"v_mul_u32_u24 v{32+i}, 3, v{32+i}")
    for i in range(4):
        a(f"v_xor_b32 v{28+i}, v{28+i}, v{32+i}")
    a("s_waitcnt vmcnt(0)")
    for i in range(4):
        a(f"v_lshl_or_b32 v{28+i}, v{28+i}, 15, v{12+i}")
    for i in range(4):
        a(f"v_add_u32 v{32+i}, {i}, v40")
    for i in range(4):
        a(f"v_lshl_or_b32 v{28+i}, v{32+i}, 20, v{28+i}")
    a("s_waitcnt lgkmcnt(0)")
    a("s_barrier")
    a("s_cmp_lg_u32 s22, 0")
    a("s_cbranch_scc1 P_noscan")
    a("v_lshlrev_b32 v2, 5, v0")
    a(f"ds_read_b128 v[44:47], v2 offset:{P_HIST}")
    a(f"ds_read_b128 v[48:51], v2 offset:{P_HIST+16}")
    a("s_waitcnt lgkmcnt(0)")
    a("v_mov_b32 v52, 0")
    a("v_mov_b32 v53, v44")
    for k in range(2, 8):
        a(f"v_add_u32 v{52+k}, v{52+k-1}, v{44+k-1}")
    a("v_add_u32 v60, v59, v51")
    a("v_mov_b32 v61, v60")
    wave_scan(a, 61)
    a("v_sub_u32 v61, v61, v60")
    for k in range(8):
        a(f"v_add_u32 v{52+k}, v{52+k}, v61")
    a(f"ds_write_b128 v2, v[52:55] offset:{P_START}")
    a(f"ds_write_b128 v2, v[56:59] offset:{P_START+16}")
    for k in range(8):
        a(f"v_lshl_or_b32 v{44+k}, v{44+k}, 16, v{52+k}")
    a(f"s_lshl_b32 s23, s2, 11")
    a(f"buffer_store_dwordx4 v[44:47], v2, s[24:27], s23 offen offset:{WS_T}")
    a(f"buffer_store_dwordx4 v[48:51], v2, s[24:27], s23 offen offset:{WS_T+16}")
    a("s_waitcnt lgkmcnt(0)")
    a("P_noscan:")
    a("s_barrier")
    for i in range(4):
        a(f"ds_read_b32 v{36+i}, v{20+i} offset:{P_START}")
    a("s_waitcnt lgkmcnt(0)")
    for i in range(4):
        a(f"v_add_lshl_u32 v{36+i}, v{36+i}, v{24+i}, 2")
    for i in range(4):
        a(f"ds_write_b32 v{36+i}, v{28+i} offset:{P_SORT}")
    a("s_waitcnt lgkmcnt(0)")
    a("s_barrier")
    a(f"ds_read_b128 v[4:7], v1 offset:{P_SORT}")
    a(f"s_add_u32 s3, s3, {WS_REC}")
    a("s_waitcnt lgkmcnt(0)")
    a("buffer_store_dwordx4 v[4:7], v1, s[24:27], s3 offen")
    a("s_endpgm")
    a("P_weights:")
    a("s_load_dwordx4 s[4:7], s[0:1], 32")
    a("s_load_dwordx2 s[8:9], s[0:1], 48")
    a("s_load_dwordx2 s[10:11], s[0:1], 72")
    a("v_lshrrev_b32 v2, 6, v0")
    a("v_and_b32 v1, 63, v0")
    a("v_readfirstlane_b32 s22, v2")
    a(f"s_sub_u32 s3, s2, {NCH}")
    a("s_mul_i32 s3, s3, 5")
    a("s_add_u32 s3, s3, s22")
    a("s_cmp_ge_u32 s3, 132")
    a("s_cbranch_scc1 P_end")
    a("s_lshr_b32 s20, s3, 5")
    a("s_lshr_b32 s21, s3, 3")
    a("s_and_b32 s21, s21, 3")
    a("s_and_b32 s23, s3, 7")
    a("s_cmp_eq_u32 s20, 4")
    a("s_cbranch_scc0 P_w_notC")
    a("s_and_b32 s21, s3, 3")
    a("s_mov_b32 s23, 0")
    a("P_w_notC:")
    a("s_waitcnt lgkmcnt(0)")
    a("s_mov_b32 s12, s8\ns_mov_b32 s13, s9")
    a(f"s_mov_b32 s14, {272*256}")
    a("s_cmp_eq_u32 s20, 1")
    a("s_cselect_b32 s12, s6, s12\ns_cselect_b32 s13, s7, s13")
    a(f"s_cselect_b32 s14, {128*256}, s14")
    a("s_cmp_eq_u32 s20, 3")
    a("s_cselect_b32 s12, s4, s12\ns_cselect_b32 s13, s5, s13")
    a(f"s_cselect_b32 s14, {128*256}, s14")
    a("s_and_b32 s13, s13, 0xffff")
    a("s_mov_b32 s15, 0x20000")
    a("s_mov_b32 s28, 0")
    a("s_mov_b32 s29, 1.0")
    a("s_cmp_eq_u32 s20, 0")
    a(f"s_cselect_b32 s28, {128*256}, s28")
    a(f"s_cselect_b32 s29, {NEG_LOG2E:#x}, s29")
    a("s_cmp_eq_u32 s20, 4")
    a(f"s_cselect_b32 s28, {256*256}, s28")
    a(f"s_cselect_b32 s29, {NEG_LOG2E:#x}, s29")
    a("s_lshl_b32 s23, s23, 12")
    a("s_add_u32 s28, s28, s23")
    a("s_lshl_b32 s21, s21, 6")
    a("s_add_u32 s28, s28, s21")
    a("v_lshrrev_b32 v2, 5, v1")
    a("v_lshlrev_b32 v2, 11, v2")
    a("v_and_b32 v3, 31, v1")
    a("v_lshl_add_u32 v2, v3, 1, v2")
    for j in range(8):
        a(f"buffer_load_ushort v{8+j}, v2, s[12:15], s28 offen offset:{j*256}")
    srd(a, 16, 10, 11, WS_SZ)
    a("s_lshl_b32 s3, s3, 10")
    a(f"s_add_u32 s3, s3, {WS_W}")
    a("v_lshlrev_b32 v1, 4, v1")
    a("s_waitcnt vmcnt(0)")
    for j in range(8):
        a(f"v_lshlrev_b32 v{8+j}, 16, v{8+j}")
    for j in range(8):
        a(f"v_mul_f32 v{8+j}, s29, v{8+j}")
    for j in range(4):
        a(f"v_cvt_pk_bf16_f32 v{16+j}, v{8+2*j}, v{9+2*j}")
    a("buffer_store_dwordx4 v[16:19], v1, s[16:19], s3 offen")
    a("P_end:")
    a("s_endpgm")
    return a.text() + descriptor("prep_kernel", 64, 40)

CAP = 1024
XSLOT = 8704
L_XR = 0
L_XL = L_XR + 4 * XSLOT
L_ER = L_XL + XSLOT
L_OR = L_ER + 4096
L_LS = L_OR + 8192
LSZ = (CAP + 160) * 4
L_LE = L_LS + LSZ
L_LQG = L_LE + LSZ
L_LQ = L_LQG + 32
L_SC = L_LQ + (CAP + 160)
L_SC = (L_SC + 15) // 16 * 16
M_LDS = L_SC + 64
OUT_STRIDE = 272

vB, vV, vC, vXA, vACC, vZ, vHV, vAX, vAE, vAO, vSO, vMSG = 64, 96, 128, 132, 140, 156, 172, 188, 220, 224, 232, 240
vLANE, vE5, vH = 1, 2, 3
vX0, vX1, vEA, vO0, vO1, vT0, vT1 = 4, 5, 6, 7, 8, 9, 10
vLs, vLe, vLq = 11, 12, 13
pX0, pX1, pE = 14, 16, 18
vQ, vOHa, vOHd = 20, 21, 22
vK = 24
vT = 28
U_REC = 12

def main_kernel(dbg=False):
    a = A()
    header(a, "gather_scatter__edge_featured_mpnn_egc__graph_kernel")
    a(f"s_cmp_ge_u32 s2, {NB}")
    a("s_cbranch_scc1 M_end")
    a("s_load_dwordx4 s[4:7], s[0:1], 0")
    a("s_load_dwordx2 s[8:9], s[0:1], 56")
    a("s_load_dwordx2 s[10:11], s[0:1], 72")
    a(f"v_lshrrev_b32 v{vT}, 6, v0")
    a(f"v_and_b32 v{vLANE}, 63, v0")
    a(f"v_readfirstlane_b32 s32, v{vT}")
    a(f"v_and_b32 v{vE5}, 31, v{vLANE}")
    a(f"v_lshrrev_b32 v{vH}, 5, v{vLANE}")
    a("s_mul_i32 s33, s2, 625")
    a("s_add_u32 s34, s33, 656")
    a("s_add_u32 s33, s33, 31")
    a("s_lshr_b32 s33, s33, 5")
    a("s_lshr_b32 s34, s34, 5")
    a("s_sub_u32 s34, s34, s33")
    a("s_waitcnt lgkmcnt(0)")
    srd(a, 24, 10, 11, WS_T_SZ)
    a(f"v_lshlrev_b32 v{vT}, 11, v0")
    a("s_lshl_b32 s38, s2, 2")
    a(f"buffer_load_dword v{vT+1}, v{vT}, s[24:27], s38 offen")
    srd(a, 12, 4, 5, N, stride=256)
    srd(a, 16, 6, 7, E, stride=32)
    srd(a, 20, 10, 11, WS_SZ)
    srd(a, 28, 8, 9, N * 256)
    t0, t1, t2, t3 = vT + 2, vT + 3, vT + 4, vT + 5
    a(f"v_lshrrev_b32 v{t0}, 4, v{vLANE}")
    a(f"v_and_b32 v{t1}, 15, v{vLANE}")
    a(f"v_xor_b32 v{t1}, v{t1}, v{t0}")
    a(f"v_lshlrev_b32 v{pX0+1}, 4, v{t1}")
    a(f"v_mov_b32 v{pX1+1}, v{pX0+1}")
    a(f"s_mul_i32 s40, s32, {2*1088}")
    a("s_lshl_b32 s41, s32, 8")
    a(f"s_add_u32 s41, s41, {L_ER}")
    a("s_lshl_b32 s38, s32, 3")
    a("s_add_u32 s38, s38, s33")
    a(f"v_add_u32 v{pX0}, s38, v{t0}")
    a(f"v_add_u32 v{pX1}, 4, v{pX0}")
    a(f"s_add_u32 m0, s40, {L_XL}")
    a("s_nop 0")
    a(f"buffer_load_dwordx4 v[{pX0}:{pX0+1}], s[12:15], 0 idxen offen lds")
    a(f"s_add_u32 m0, s40, {L_XL + 1088}")
    a("s_nop 0")
    a(f"buffer_load_dwordx4 v[{pX1}:{pX1+1}], s[12:15], 0 idxen offen lds")
    vW = vT + 6
    a(f"v_lshlrev_b32 v{vW}, 4, v{vLANE}")
    a("s_lshl_b32 s39, s32, 13")
    a(f"s_add_u32 s42, s39, {WS_W + F_A*1024}")
    areg = [vHV + 4*s for s in range(4)] + [vAO + 4*s for s in range(4)]
    for s in range(8):
        if s < 4:
            a(f"buffer_load_dwordx4 v[{areg[s]}:{areg[s]+3}], v{vW}, s[20:23], s42 offen offset:{s*1024}")
        else:
            if s == 4: a("s_add_u32 s42, s42, 4096")
            a(f"buffer_load_dwordx4 v[{areg[s]}:{areg[s]+3}], v{vW}, s[20:23], s42 offen offset:{(s-4)*1024}")
    a(f"v_lshrrev_b32 v{t0}, 2, v{vE5}")
    a(f"v_mul_u32_u24 v{t0}, 1088, v{t0}")
    a(f"v_and_b32 v{t1}, 3, v{vE5}")
    a(f"v_lshl_add_u32 v{t0}, v{t1}, 8, v{t0}")
    a(f"v_xor_b32 v{t2}, v{vH}, v{t1}")
    a(f"v_lshl_add_u32 v{vX0}, v{t2}, 4, v{t0}")
    a(f"v_xor_b32 v{t2}, 2, v{t2}")
    a(f"v_lshl_add_u32 v{vX1}, v{t2}, 4, v{t0}")
    a(f"v_lshrrev_b32 v{t0}, 3, v{vE5}")
    a(f"v_and_b32 v{t0}, 1, v{t0}")
    a(f"v_xor_b32 v{t0}, v{t0}, v{vH}")
    a(f"v_lshlrev_b32 v{t0}, 4, v{t0}")
    a(f"v_lshl_add_u32 v{vEA}, v{vE5}, 5, v{t0}")
    a(f"v_add_u32 v{vEA}, {L_ER}, v{vEA}")
    a(f"v_lshrrev_b32 v{t0}, 2, v{vE5}")
    a(f"v_and_b32 v{t0}, 3, v{t0}")
    a(f"v_xor_b32 v{t0}, v{t0}, v{vH}")
    a(f"v_lshlrev_b32 v{t0}, 4, v{t0}")
    a(f"v_lshl_add_u32 v{vO0}, v{vE5}, 6, v{t0}")
    a(f"v_add_u32 v{vO0}, {L_OR}, v{vO0}")
    a(f"v_xor_b32 v{vO1}, 32, v{vO0}")
    a(f"v_lshrrev_b32 v{t0}, 4, v{vLANE}")
    a(f"v_and_b32 v{t0}, 1, v{t0}")
    a(f"v_lshlrev_b32 v{t0}, 1, v{t0}")
    a(f"v_lshrrev_b32 v{t1}, 1, v{vLANE}")
    a(f"v_and_b32 v{t1}, 1, v{t1}")
    a(f"v_add_u32 v{t0}, v{t0}, v{t1}")
    a(f"v_xor_b32 v{t0}, v{t0}, v{vH}")
    a(f"v_lshlrev_b32 v{t0}, 4, v{t0}")
    a(f"v_and_b32 v{t1}, 1, v{vLANE}")
    a(f"v_lshl_add_u32 v{t0}, v{t1}, 3, v{t0}")
    a(f"v_lshrrev_b32 v{t1}, 2, v{vLANE}")
    a(f"v_and_b32 v{t1}, 3, v{t1}")
    a(f"v_lshl_add_u32 v{t1}, v{vH}, 2, v{t1}")
    a(f"v_lshl_add_u32 v{vT0}, v{t1}, 6, v{t0}")
    a(f"v_add_u32 v{vT0}, {L_OR}, v{vT0}")
    a(f"v_xor_b32 v{vT1}, 32, v{vT0}")
    a(f"v_add_u32 v{vT1}, 512, v{vT1}")
    a("s_lshl_b32 s38, s32, 5")
    a(f"s_add_u32 s38, s38, {L_LS}")
    a(f"v_lshrrev_b32 v{t0}, 4, v{vLANE}")
    a(f"v_lshl_add_u32 v{vLs}, v{t0}, 2, s38")
    a(f"s_add_u32 s38, s38, {L_LE - L_LS}")
    a(f"v_and_b32 v{t0}, 15, v{vLANE}")
    a(f"v_lshrrev_b32 v{t0}, 1, v{t0}")
    a(f"v_lshl_add_u32 v{vLe}, v{t0}, 2, s38")
    a("s_and_b32 s38, s32, 1")
    a(f"v_and_b32 v{t0}, 1, v{vLANE}")
    a(f"v_xor_b32 v{t0}, s38, v{t0}")
    a(f"v_lshlrev_b32 v{pE+1}, 4, v{t0}")
    a(f"v_and_b32 v{t0}, 7, v{vLANE}")
    a("s_lshl_b32 s38, s32, 3")
    a(f"v_add_u32 v{t0}, s38, v{t0}")
    a(f"v_lshlrev_b32 v{t1}, 6, v{t0}")
    a(f"v_and_b32 v{t2}, 12, v{t0}")
    a(f"v_lshl_add_u32 v{t1}, v{t2}, 2, v{t1}")
    a(f"v_lshrrev_b32 v{t2}, 3, v{vLANE}")
    a(f"v_and_b32 v{t2}, 1, v{t2}")
    a(f"v_lshlrev_b32 v{t3}, 12, v{t2}")
    a(f"v_xor_b32 v{t1}, v{t1}, v{t3}")
    for k in range(4):
        a(f"v_xor_b32 v{vK+k}, {k*2048}, v{t1}")
    a(f"v_sub_u32 v{t3}, 1, v{t2}")
    a(f"v_mul_u32_u24 v{vOHd}, 0x3f80, v{t3}")
    a(f"v_lshlrev_b32 v{t2}, 6, v{t2}")
    a(f"v_sub_u32 v{t0}, v{t0}, v{t2}")
    a(f"v_add_u32 v{vLq}, {L_LQ + 32}, v{t0}")
    for r in range(16):
        a(f"v_mov_b32 v{vACC+r}, 0")
    vTv, vStart, vCnt, vPref = vT + 1, vT + 8, vT + 9, vT + 10
    a("s_waitcnt vmcnt(10)")
    a(f"v_and_b32 v{vStart}, 0xffff, v{vTv}")
    a(f"v_lshrrev_b32 v{vCnt}, 16, v{vTv}")
    a(f"v_mov_b32 v{vPref}, v{vCnt}")
    wave_scan(a, vPref)
    a(f"v_readlane_b32 s38, v{vPref}, 63")
    a(f"v_sub_u32 v{vPref}, v{vPref}, v{vCnt}")
    a(f"v_mov_b32 v{t0}, s38")
    a("s_lshl_b32 s39, s32, 2")
    a(f"s_add_u32 s39, s39, {L_SC}")
    a(f"v_mov_b32 v{t1}, s39")
    a(f"ds_write_b32 v{t1}, v{t0}")
    a("s_waitcnt lgkmcnt(0)")
    a("s_barrier")
    a(f"v_mov_b32 v{t1}, {L_SC}")
    a(f"ds_read_b128 v[{vT+12}:{vT+15}], v{t1}")
    a("s_waitcnt lgkmcnt(0)")
    for k in range(4):
        a(f"v_readfirstlane_b32 s{44+k}, v{vT+12+k}")
    a("s_nop 3")
    a("s_add_u32 s35, s44, s45")
    a("s_add_u32 s35, s35, s46")
    a("s_add_u32 s35, s35, s47")
    a("s_mov_b32 s38, 0")
    a("s_cmp_gt_u32 s32, 0\ns_cselect_b32 s39, s44, 0\ns_add_u32 s38, s38, s39")
    a("s_cmp_gt_u32 s32, 1\ns_cselect_b32 s39, s45, 0\ns_add_u32 s38, s38, s39")
    a("s_cmp_gt_u32 s32, 2\ns_cselect_b32 s39, s46, 0\ns_add_u32 s38, s38, s39")
    a(f"v_add_u32 v{vPref}, s38, v{vPref}")
    vRec0 = vT + 11
    a(f"v_mul_u32_u24 v{vRec0}, {CH}, v0")
    vEb = vT + 7
    a(f"v_mov_b32 v{vEb}, v{vRec0}")
    a(f"v_add_u32 v{vRec0}, v{vRec0}, v{vStart}")
    a(f"v_lshlrev_b32 v{vRec0}, 2, v{vRec0}")
    a("s_mov_b32 s36, 0")
    a("s_mov_b32 s43, 1")
    a("s_cmp_eq_u32 s35, 0")
    a("s_cbranch_scc1 M_epilogue")

    a("M_batch:")
    z = vT + 12
    for k in range(4): a(f"v_mov_b32 v{z+k}, 0")
    a(f"v_lshlrev_b32 v{t0}, 4, v0")
    a(f"ds_write_b128 v{t0}, v[{z}:{z+3}] offset:{L_OR}")
    a(f"ds_write_b128 v{t0}, v[{z}:{z+3}] offset:{L_OR+4096}")
    a("s_sub_u32 s37, s35, s36")
    a(f"s_min_u32 s37, s37, {CAP}")
    vJ, vRem, vP4, vP1, vRa = vT + 16, vT + 17, vT + 18, vT + 19, vT + 20
    a(f"v_sub_u32 v{vJ}, s36, v{vPref}")
    a(f"v_add_u32 v{vRem}, {CAP}, v{vJ}")
    a(f"v_max_i32 v{vJ}, 0, v{vJ}")
    a(f"v_min_i32 v{vRem}, v{vRem}, v{vCnt}")
    a(f"v_sub_u32 v{vRem}, v{vRem}, v{vJ}")
    a(f"v_add_u32 v{vP1}, v{vPref}, v{vJ}")
    a(f"v_subrev_u32 v{vP1}, s36, v{vP1}")
    a(f"v_lshlrev_b32 v{vP4}, 2, v{vP1}")
    a(f"v_add_u32 v{vP4}, {L_LS}, v{vP4}")
    a(f"v_add_u32 v{vP1}, {L_LQ}, v{vP1}")
    a(f"v_lshl_add_u32 v{vRa}, v{vJ}, 2, v{vRec0}")
    a(f"s_mov_b32 s48, {WS_REC}")
    vR = vT + 22
    assert vR + U_REC <= 64
    a("M_round:")
    for u in range(U_REC):
        a(f"v_cmp_lt_i32 vcc, {u}, v{vRem}")
        a("s_mov_b64 exec, vcc")
        a(f"buffer_load_dword v{vR+u}, v{vRa}, s[20:23], s48 offen offset:{4*u}")
    a("s_mov_b64 exec, -1")
    a("s_cmp_eq_u32 s43, 0")
    a("s_cbranch_scc1 M_round_w0")
    a("s_lshl_b32 s39, s32, 13")
    for (f0, reg) in ((F_B, vB),):
        a(f"s_add_u32 s42, s39, {WS_W + f0*1024}")
        for s in range(8):
            if s == 4: a("s_add_u32 s42, s42, 4096")
            a(f"buffer_load_dwordx4 v[{reg+4*s}:{reg+4*s+3}], v{vW}, s[20:23], s42 offen offset:{(s%4)*1024}")
    a("s_lshl_b32 s42, s32, 10")
    a(f"s_add_u32 s42, s42, {WS_W + F_C*1024}")
    a(f"buffer_load_dwordx4 v[{vC}:{vC+3}], v{vW}, s[20:23], s42 offen")
    a(f"s_add_u32 s42, s39, {WS_W + F_V*1024}")
    for s in range(8):
        if s == 4: a("s_add_u32 s42, s42, 4096")
        a(f"buffer_load_dwordx4 v[{vV+4*s}:{vV+4*s+3}], v{vW}, s[20:23], s42 offen offset:{(s%4)*1024}")
    a("s_waitcnt vmcnt(17)")
    a("s_branch M_round_proc")
    a("M_round_w0:")
    a("s_waitcnt vmcnt(0)")
    a("M_round_proc:")
    for u in range(U_REC):
        a(f"v_cmp_lt_i32 vcc, {u}, v{vRem}")
        a("s_mov_b64 exec, vcc")
        a("s_cbranch_execz M_round_done")
        a(f"v_and_b32 v{t0}, 0x3fff, v{vR+u}")
        a(f"v_bfe_u32 v{t1}, v{vR+u}, 14, 6")
        a(f"v_lshrrev_b32 v{t2}, 20, v{vR+u}")
        a(f"v_add_u32 v{t2}, v{t2}, v{vEb}")
        a(f"ds_write_b32 v{vP4}, v{t0} offset:{4*u}")
        a(f"ds_write_b8 v{vP1}, v{t1} offset:{u}")
        a(f"ds_write_b32 v{vP4}, v{t2} offset:{L_LE - L_LS + 4*u}")
    a("M_round_done:")
    a("s_mov_b64 exec, -1")
    a("s_mov_b32 s43, 0")
    a(f"v_subrev_u32 v{vRem}, {U_REC}, v{vRem}")
    a(f"v_add_u32 v{vRa}, {4*U_REC}, v{vRa}")
    a(f"v_add_u32 v{vP4}, {4*U_REC}, v{vP4}")
    a(f"v_add_u32 v{vP1}, {U_REC}, v{vP1}")
    a(f"v_cmp_lt_i32 vcc, 0, v{vRem}")
    a("s_cbranch_vccnz M_round")
    a(f"v_cmp_gt_u32 vcc, 160, v0")
    a("s_mov_b64 exec, vcc")
    a("s_cbranch_execz M_pad_done")
    a(f"v_add_u32 v{t0}, s37, v0")
    a(f"v_add_u32 v{t1}, {L_LQ}, v{t0}")
    a(f"v_lshlrev_b32 v{t0}, 2, v{t0}")
    a(f"v_add_u32 v{t0}, {L_LS}, v{t0}")
    a(f"v_mov_b32 v{t2}, 0xffffff")
    a(f"v_mov_b32 v{t3}, 62")
    a(f"ds_write_b32 v{t0}, v{t2}")
    a(f"ds_write_b32 v{t0}, v{t2} offset:{L_LE - L_LS}")
    a(f"ds_write_b8 v{t1}, v{t3}")
    a(f"v_cmp_gt_u32 vcc, 32, v0")
    a("s_mov_b64 exec, vcc")
    a("s_cbranch_execz M_pad_done")
    a(f"v_add_u32 v{t1}, {L_LQG}, v0")
    a(f"ds_write_b8 v{t1}, v{t3}")
    a("M_pad_done:")
    a("s_mov_b64 exec, -1")
    a("s_waitcnt lgkmcnt(0)")
    a("s_barrier")
    wLs, wLe, wLq = vT + 12, vT + 13, vT + 14
    a(f"v_mov_b32 v{wLs}, v{vLs}\nv_mov_b32 v{wLe}, v{vLe}\nv_mov_b32 v{wLq}, v{vLq}")
    def dma_tile(slot):
        a(f"s_add_u32 m0, s40, {L_XR + slot*XSLOT}")
        a("s_nop 0")
        a(f"buffer_load_dwordx4 v[{pX0}:{pX0+1}], s[12:15], 0 idxen offen lds")
        a(f"s_add_u32 m0, s40, {L_XR + slot*XSLOT + 1088}")
        a("s_nop 0")
        a(f"buffer_load_dwordx4 v[{pX1}:{pX1+1}], s[12:15], 0 idxen offen lds")
    def dma_e(slot):
        a(f"s_add_u32 m0, s41, {slot*1024}")
        a("s_nop 0")
        a(f"buffer_load_dwordx4 v[{pE}:{pE+1}], s[16:19], 0 idxen offen lds")
    for T in range(3):
        a(f"ds_read_b32 v{pX0}, v{wLs} offset:{128*T}")
        a(f"ds_read_b32 v{pX1}, v{wLs} offset:{128*T+16}")
        a(f"ds_read_b32 v{pE}, v{wLe} offset:{128*T}")
        a("s_waitcnt lgkmcnt(0)")
        dma_tile(T)
        a("s_mov_b64 exec, 0xffff")
        dma_e(T)
        a("s_mov_b64 exec, -1")
    a(f"v_subrev_u32 v{t0}, 32, v{wLq}")
    a(f"ds_read_u8 v{vQ}, v{t0}")
    a("s_waitcnt lgkmcnt(0)")
    a(f"v_xor_b32 v{vOHa}, v{vQ}, v{vK+0}")
    a("s_mov_b64 exec, 0xff")
    a(f"ds_write_b16 v{vOHa}, v{vOHd} offset:{L_OR}")
    a("s_mov_b64 exec, -1")
    a("s_cmp_lg_u32 s36, 0")
    a("s_cbranch_scc1 M_noxa")
    for s in range(8):
        ad = vX0 if s % 2 == 0 else vX1
        a(f"ds_read_b128 v[{vAX+4*s}:{vAX+4*s+3}], v{ad} offset:{L_XL + (s>>1)*64}")
    a("s_waitcnt lgkmcnt(0)")
    for s in range(8):
        c = "0" if s == 0 else f"v[{vZ}:{vZ+15}]"
        a(f"v_mfma_f32_32x32x16_bf16 v[{vZ}:{vZ+15}], v[{vAX+4*s}:{vAX+4*s+3}], v[{areg[s]}:{areg[s]+3}], {c}")
    a(f"s_mov_b32 s38, {NEG_LOG2E:#x}")
    a("s_nop 7\ns_nop 3")
    for r in range(16):
        a(f"v_mul_f32 v{vZ+r}, s38, v{vZ+r}")
    for r in range(8):
        a(f"v_cvt_pk_bf16_f32 v{vXA+r}, v{vZ+2*r}, v{vZ+2*r+1}")
    a("M_noxa:")
    a("s_add_u32 s37, s37, 31")
    a("s_lshr_b32 s37, s37, 5")
    a("M_loop:")
    for k in range(4):
        sl = k
        sl3 = (k + 3) & 3
        sl1 = (k + 1) & 3
        a.c(f"---- tile slot {k} ----")
        a("s_waitcnt vmcnt(6) lgkmcnt(0)")
        a("s_barrier")
        a(f"ds_read_b32 v{pX0}, v{wLs} offset:{128*(k+3)}")
        a(f"ds_read_b32 v{pX1}, v{wLs} offset:{128*(k+3)+16}")
        a(f"ds_read_b32 v{pE}, v{wLe} offset:{128*(k+3)}")
        a(f"ds_read_u8 v{vQ}, v{wLq} offset:{32*k}")
        for s in range(8):
            ad = vX0 if s % 2 == 0 else vX1
            a(f"ds_read_b128 v[{vAX+4*s}:{vAX+4*s+3}], v{ad} offset:{L_XR + sl*XSLOT + (s>>1)*64}")
        a(f"ds_read_b128 v[{vAE}:{vAE+3}], v{vEA} offset:{sl*1024}")
        a(f"ds_read_b128 v[{vAO}:{vAO+3}], v{vO0} offset:{sl*2048}")
        a(f"ds_read_b128 v[{vAO+4}:{vAO+7}], v{vO1} offset:{sl*2048}")
        a("s_waitcnt lgkmcnt(11)")
        dma_tile(sl3)
        a(f"v_xor_b32 v{vOHa}, v{vQ}, v{vK+sl1}")
        a("s_mov_b64 exec, 0xffff")
        dma_e(sl3)
        a(f"ds_write_b16 v{vOHa}, v{vOHd} offset:{L_OR}")
        a("s_mov_b64 exec, -1")
        for s in range(8):
            if s % 2 == 0:
                a(f"s_waitcnt lgkmcnt({11 - (s+1)})")
            c = "0" if s == 0 else f"v[{vZ}:{vZ+15}]"
            a(f"v_mfma_f32_32x32x16_bf16 v[{vZ}:{vZ+15}], v[{vAX+4*s}:{vAX+4*s+3}], v[{vB+4*s}:{vB+4*s+3}], {c}")
        a("s_waitcnt lgkmcnt(2)")
        a(f"v_mfma_f32_32x32x16_bf16 v[{vZ}:{vZ+15}], v[{vAE}:{vAE+3}], v[{vC}:{vC+3}], v[{vZ}:{vZ+15}]")
        a(f"v_mfma_f32_32x32x16_bf16 v[{vZ}:{vZ+15}], v[{vAO}:{vAO+3}], v[{vXA}:{vXA+3}], v[{vZ}:{vZ+15}]")
        a("s_waitcnt lgkmcnt(1)")
        a(f"v_mfma_f32_32x32x16_bf16 v[{vZ}:{vZ+15}], v[{vAO+4}:{vAO+7}], v[{vXA+4}:{vXA+7}], v[{vZ}:{vZ+15}]")
        for s in range(2):
            a(f"ds_read_b64_tr_b16 v[{vSO+4*s}:{vSO+4*s+1}], v{vT0} offset:{sl*2048 + s*1024}")
            a(f"ds_read_b64_tr_b16 v[{vSO+4*s+2}:{vSO+4*s+3}], v{vT1} offset:{sl*2048 + s*1024}")
        def H(s):
            c = "0" if s == 0 else f"v[{vHV}:{vHV+15}]"
            a(f"v_mfma_f32_32x32x16_bf16 v[{vHV}:{vHV+15}], v[{vAX+4*s}:{vAX+4*s+3}], v[{vV+4*s}:{vV+4*s+3}], {c}")
        for s in range(4): H(s)
        a("s_nop 3")
        for s in range(4, 8):
            H(s)
            for r in range(4 * (s - 4), 4 * (s - 4) + 4):
                a(f"v_exp_f32 v{vZ+r}, v{vZ+r}")
        for r in range(16): a(f"v_add_f32 v{vZ+r}, 1.0, v{vZ+r}")
        for r in range(16): a(f"v_rcp_f32 v{vZ+r}, v{vZ+r}")
        for r in range(16): a(f"v_mul_f32 v{vZ+r}, v{vZ+r}, v{vHV+r}")
        for r in range(8): a(f"v_cvt_pk_bf16_f32 v{vMSG+r}, v{vZ+2*r}, v{vZ+2*r+1}")
        a("s_waitcnt lgkmcnt(0)")
        a("s_nop 0")
        for s in range(2):
            a(f"v_mfma_f32_32x32x16_bf16 v[{vACC}:{vACC+15}], v[{vSO+4*s}:{vSO+4*s+3}], v[{vMSG+4*s}:{vMSG+4*s+3}], v[{vACC}:{vACC+15}]")
        a("s_sub_u32 s37, s37, 1")
        a("s_cmp_eq_u32 s37, 0")
        a("s_cbranch_scc1 M_loop_done")
    a(f"v_add_u32 v{wLs}, 512, v{wLs}")
    a(f"v_add_u32 v{wLe}, 512, v{wLe}")
    a(f"v_add_u32 v{wLq}, 128, v{wLq}")
    a("s_branch M_loop")
    a("M_loop_done:")
    a("s_waitcnt vmcnt(0) lgkmcnt(0)")
    a("s_barrier")
    a(f"s_add_u32 s36, s36, {CAP}")
    a("s_cmp_lt_u32 s36, s35")
    a("s_cbranch_scc1 M_batch")

    a("M_epilogue:")
    a("s_lshl_b32 s39, s32, 13")
    a(f"s_add_u32 s42, s39, {WS_W + F_U*1024}")
    for s in range(8):
        if s == 4: a("s_add_u32 s42, s42, 4096")
        a(f"buffer_load_dwordx4 v[{vB+4*s}:{vB+4*s+3}], v{vW}, s[20:23], s42 offen offset:{(s%4)*1024}")
    a(f"v_lshrrev_b32 v{t0}, 1, v{vE5}")
    a(f"v_xor_b32 v{t0}, v{t0}, v{vE5}")
    a(f"v_and_b32 v{t0}, 4, v{t0}")
    a(f"v_mul_u32_u24 v{t0}, 3, v{t0}")
    a(f"v_xor_b32 v{t3}, v{t0}, v{vE5}")
    a(f"v_lshrrev_b32 v{t0}, 2, v{t3}")
    a(f"v_mul_u32_u24 v{t0}, 1088, v{t0}")
    a(f"v_and_b32 v{t1}, 3, v{t3}")
    a(f"v_lshl_add_u32 v{t0}, v{t1}, 8, v{t0}")
    a(f"v_xor_b32 v{t2}, v{vH}, v{t1}")
    a(f"v_lshl_add_u32 v{vX0}, v{t2}, 4, v{t0}")
    a(f"v_xor_b32 v{t2}, 2, v{t2}")
    a(f"v_lshl_add_u32 v{vX1}, v{t2}, 4, v{t0}")
    a("s_waitcnt vmcnt(0)")
    a("s_barrier")
    for s in range(8):
        ad = vX0 if s % 2 == 0 else vX1
        a(f"ds_read_b128 v[{vAX+4*s}:{vAX+4*s+3}], v{ad} offset:{L_XL + (s>>1)*64}")
    a("s_waitcnt lgkmcnt(0)")
    for s in range(8):
        a(f"v_mfma_f32_32x32x16_bf16 v[{vACC}:{vACC+15}], v[{vAX+4*s}:{vAX+4*s+3}], v[{vB+4*s}:{vB+4*s+3}], v[{vACC}:{vACC+15}]")
    a(f"s_mov_b32 s38, {NEG_LOG2E:#x}")
    a(f"v_mul_u32_u24 v{t0}, {8*OUT_STRIDE}, v{vH}")
    a(f"v_lshl_add_u32 v{t0}, v{vE5}, 1, v{t0}")
    a("s_lshl_b32 s39, s32, 6")
    a(f"v_add_u32 v{t0}, s39, v{t0}")
    a("s_nop 7\ns_nop 1")
    NR = 12
    for r in range(NR): a(f"v_mul_f32 v{vZ+r}, s38, v{vACC+r}")
    for r in range(NR): a(f"v_exp_f32 v{vZ+r}, v{vZ+r}")
    for r in range(NR): a(f"v_add_f32 v{vZ+r}, 1.0, v{vZ+r}")
    for r in range(NR): a(f"v_rcp_f32 v{vZ+r}, v{vZ+r}")
    for r in range(NR): a(f"v_mul_f32 v{vZ+r}, v{vZ+r}, v{vACC+r}")
    for r in range(NR // 2): a(f"v_cvt_pk_bf16_f32 v{vMSG+r}, v{vZ+2*r}, v{vZ+2*r+1}")
    for r in range(NR):
        cr = 16 * (r >> 3) + 4 * ((r >> 2) & 1) + (r & 3)
        op = "ds_write_b16" if r % 2 == 0 else "ds_write_b16_d16_hi"
        a(f"{op} v{t0}, v{vMSG + r//2} offset:{L_XR + cr*OUT_STRIDE}")
    a("s_waitcnt lgkmcnt(0)")
    a("s_barrier")
    a(f"v_lshrrev_b32 v{t0}, 4, v0")
    a(f"v_and_b32 v{t1}, 15, v0")
    a(f"v_mul_u32_u24 v{t2}, {OUT_STRIDE}, v{t0}")
    a(f"v_lshl_add_u32 v{t2}, v{t1}, 4, v{t2}")
    a(f"ds_read_b128 v[{vZ}:{vZ+3}], v{t2} offset:{L_XR}")
    a(f"ds_read_b128 v[{vZ+4}:{vZ+7}], v{t2} offset:{L_XR + 16*OUT_STRIDE}")
    a(f"v_add_u32 v{t3}, s33, v{t0}")
    a(f"v_lshlrev_b32 v{t3}, 8, v{t3}")
    a(f"v_lshl_add_u32 v{t3}, v{t1}, 4, v{t3}")
    a("s_waitcnt lgkmcnt(0)")
    a(f"buffer_store_dwordx4 v[{vZ}:{vZ+3}], v{t3}, s[28:31], 0 offen")
    a(f"v_add_u32 v{t0}, 16, v{t0}")
    a(f"v_cmp_gt_u32 vcc, s34, v{t0}")
    a("s_mov_b64 exec, vcc")
    a("s_cbranch_execz M_end")
    a(f"v_add_u32 v{t3}, 4096, v{t3}")
    a(f"buffer_store_dwordx4 v[{vZ+4}:{vZ+7}], v{t3}, s[28:31], 0 offen")
    a("M_end:")
    a("s_endpgm")
    return a.text() + descriptor("gather_scatter__edge_featured_mpnn_egc__graph_kernel", 256, 56)

HEAD = f"""; Edge-gated message passing (EGC / gated graph conv) for gfx950.
; @launch kernel=prep_kernel grid=({P_GRID},1,1) block=({P_BLOCK},1,1) lds={P_LDS}
; @launch kernel=gather_scatter__edge_featured_mpnn_egc__graph_kernel grid=({NB},1,1) block=(256,1,1) lds={M_LDS}
.amdgcn_target "amdgcn-amd-amdhsa--gfx950"
.text
"""

def build():
    return HEAD + prep_kernel() + main_kernel()

if __name__ == "__main__":
    out = sys.argv[1] if len(sys.argv) > 1 else "gather_scatter__edge_featured_mpnn_egc__graph.s"
    open(out, "w").write(build())
    print("wrote", out, "M_LDS", M_LDS)
```

```python
import sys

N = 10000; E = 320000
NB = 768
NCH = 64; CH = 5000
MAGIC_B = 322123
MAGIC_48 = 89478486
WS_T = 0
WS_W = 0x60000
WS_REC = 0x80000
MAGIC_R = 6554
WS_SZ = 0x200000
WS_TAB = 0x200000
WS_XA = 0x700000
WS_XU = 0x980000
DBG2, DBG1 = 0xC00000, 0xE00000
NEG_LOG2E = 0xBFB8AA3B
KNAME = "gather_scatter__edge_featured_mpnn_egc__graph_kernel"
ARGS = sys.argv[1:]
def flag(n): return ("--" + n) in ARGS
def opt(n, d):
    for x in ARGS:
        if x.startswith("--" + n + "="): return x.split("=", 1)[1]
    return d

class A:
    def __init__(self):
        self.l = []
    def __call__(self, s=""):
        for x in s.split("\n"):
            x = x.strip()
            if not x: continue
            if x.endswith(":"):
                self.l.append(x)
            else:
                self.l.append("    " + x)
    def c(self, s):
        self.l.append("    ; " + s)
    def raw(self, s):
        self.l.append(s)
    def text(self):
        return "\n".join(self.l) + "\n"

def srd(a, r, lo, hi, size, stride=0, add=0):
    if add:
        a(f"s_add_u32 s{r}, s{lo}, {add:#x}")
        a(f"s_addc_u32 s{r+1}, s{hi}, 0")
        a(f"s_and_b32 s{r+1}, s{r+1}, 0xffff")
    else:
        a(f"s_mov_b32 s{r}, s{lo}")
        a(f"s_and_b32 s{r+1}, s{hi}, 0xffff")
    if stride:
        a(f"s_or_b32 s{r+1}, s{r+1}, {stride << 16:#x}")
    a(f"s_mov_b32 s{r+2}, {size:#x}")
    a(f"s_mov_b32 s{r+3}, 0x20000")

def wave_scan(a, v):
    for sh in (1, 2, 4, 8):
        a("s_nop 1")
        a(f"v_add_u32_dpp v{v}, v{v}, v{v} row_shr:{sh} row_mask:0xf bank_mask:0xf bound_ctrl:1")
    a("s_nop 1")
    a(f"v_add_u32_dpp v{v}, v{v}, v{v} row_bcast:15 row_mask:0xa bank_mask:0xf")
    a("s_nop 1")
    a(f"v_add_u32_dpp v{v}, v{v}, v{v} row_bcast:31 row_mask:0xc bank_mask:0xf")
    a("s_nop 1")

def header(a, name):
    a.raw(f".globl {name}")
    a.raw(".p2align 8")
    a.raw(f".type {name},@function")
    a.raw(f"{name}:")

def descriptor(name, vgpr, sgpr):
    acc = (vgpr + 3) // 4 * 4
    return f""".section .rodata,"a"
.p2align 6
.amdhsa_kernel {name}
  .amdhsa_next_free_vgpr {vgpr}
  .amdhsa_next_free_sgpr {sgpr}
  .amdhsa_accum_offset {acc}
  .amdhsa_group_segment_fixed_size 0
  .amdhsa_kernarg_size 80
  .amdhsa_user_sgpr_count 2
  .amdhsa_user_sgpr_kernarg_segment_ptr 1
  .amdhsa_system_sgpr_workgroup_id_x 1
  .amdhsa_float_denorm_mode_32 3
.end_amdhsa_kernel
.text
"""

def mf(d, x, y, c):
    cs = "0" if c is None else f"v[{c}:{c+15}]"
    return f"v_mfma_f32_32x32x16_bf16 v[{d}:{d+15}], v[{x}:{x+3}], v[{y}:{y+3}], {cs}"

XGRP = 1088
XSLOT = 8 * XGRP

def xfrag_addr(a, d0, d1, row, h, t0, t1, t2):
    a(f"v_lshrrev_b32 v{t0}, 2, v{row}")
    a(f"v_mul_u32_u24 v{t0}, {XGRP}, v{t0}")
    a(f"v_and_b32 v{t1}, 3, v{row}")
    a(f"v_lshl_add_u32 v{t0}, v{t1}, 8, v{t0}")
    a(f"v_xor_b32 v{t2}, v{h}, v{t1}")
    a(f"v_lshl_add_u32 v{d0}, v{t2}, 4, v{t0}")
    a(f"v_xor_b32 v{t2}, 2, v{t2}")
    a(f"v_lshl_add_u32 v{d1}, v{t2}, 4, v{t0}")

P_BLOCK = 640
P_NG = 79
P_GRID = NCH + 2 * P_NG + 1
P_HIST, P_START, P_TOT, P_SORT = 0, 12288, 24576, 24640
G_W0, G_W1, G_X = 0, 32768, 65536
P_LDS = G_X + 4 * XSLOT

def prep_kernel(dbg=False):
    SF = opt("sflag", "").replace("_", " ")
    a = A()
    nst = [0]
    def stamp():
        if not dbg: return
        a("s_waitcnt lgkmcnt(0)\ns_memtime s[40:41]\ns_waitcnt lgkmcnt(0)")
        a(f"s_mov_b32 s{50+nst[0]}, s40")
        nst[0] += 1
    def dump(role):
        if not dbg: return
        while nst[0] < 8: stamp()
        a("s_memrealtime s[46:47]\ns_load_dwordx2 s[42:43], s[0:1], 72\ns_waitcnt lgkmcnt(0)")
        a("s_mov_b32 s60, s42\ns_and_b32 s61, s43, 0xffff\ns_mov_b32 s62, 0x1000000\ns_mov_b32 s63, 0x20000")
        a("v_lshrrev_b32 v158, 6, v0\ns_nop 0\nv_readfirstlane_b32 s48, v158\ns_nop 3")
        a(f"s_lshl_b32 s49, s2, 4\ns_add_u32 s49, s49, s48\ns_lshl_b32 s49, s49, 6\ns_add_u32 s49, s49, {DBG1:#x}")
        a("s_mov_b64 exec, 1")
        for i, r in enumerate([50,51,52,53,54,55,56,57,44,46]):
            a(f"v_mov_b32 v158, s{r}\nv_mov_b32 v159, 0\nbuffer_store_dword v158, v159, s[60:63], s49 offen offset:{4*i}")
        a(f"v_mov_b32 v158, {role}\nv_mov_b32 v159, 0\nbuffer_store_dword v158, v159, s[60:63], s49 offen offset:40")
        nst[0] = 0
    header(a, "prep_kernel")
    if dbg:
        a("s_memrealtime s[44:45]")
        stamp()
    a(f"s_cmp_ge_u32 s2, {P_GRID}")
    a("s_cbranch_scc1 P_end")
    a(f"s_cmp_ge_u32 s2, {NCH + 2*P_NG}")
    a("s_cbranch_scc1 P_weights")
    a(f"s_cmp_ge_u32 s2, {NCH}")
    a("s_cbranch_scc1 P_gemm")
    a("s_load_dwordx4 s[4:7], s[0:1], 16")
    a("s_load_dwordx2 s[8:9], s[0:1], 72")
    a("v_lshlrev_b32 v2, 4, v0")
    a("v_mov_b32 v4, 0\nv_mov_b32 v5, 0\nv_mov_b32 v6, 0\nv_mov_b32 v7, 0")
    a("ds_write_b128 v2, v[4:7]")
    a("ds_write_b128 v2, v[4:7] offset:10240")
    a("v_lshlrev_b32 v1, 5, v0")
    a(f"s_mul_i32 s3, s2, {CH*4}")
    a(f"s_mov_b32 s20, {MAGIC_B}")
    a("s_movk_i32 s21, 625")
    a(f"s_mov_b32 s28, {MAGIC_48}")
    a("v_lshrrev_b32 v2, 6, v0")
    a("v_mov_b32 v3, 1")
    a("v_readfirstlane_b32 s22, v2")
    a("s_waitcnt lgkmcnt(0)")
    srd(a, 16, 6, 7, E * 4)
    a(f"v_cmp_gt_u32 vcc, {CH//8}, v0")
    a("s_mov_b64 exec, vcc")
    a("buffer_load_dwordx4 v[8:11], v1, s[16:19], s3 offen")
    a("buffer_load_dwordx4 v[12:15], v1, s[16:19], s3 offen offset:16")
    srd(a, 12, 4, 5, E * 4)
    a("buffer_load_dwordx4 v[16:19], v1, s[12:15], s3 offen")
    a("buffer_load_dwordx4 v[20:23], v1, s[12:15], s3 offen offset:16")
    srd(a, 24, 8, 9, WS_SZ)
    a("v_lshlrev_b32 v64, 3, v0")
    a("s_barrier")
    stamp()
    a("s_waitcnt vmcnt(2)")
    vD, vS, vBk, vAd, vRk, vRec, vT = 8, 16, 24, 32, 40, 48, 56
    for i in range(8): a(f"v_mul_u32_u24 v{vBk+i}, s20, v{vD+i}")
    for i in range(8): a(f"v_lshrrev_b32 v{vBk+i}, 22, v{vBk+i}")
    for i in range(8): a(f"v_mad_u32_u24 v{vRec+i}, v{vBk+i}, s21, 47")
    for i in range(8): a(f"v_mul_hi_u32 v{vRec+i}, v{vRec+i}, s28")
    for i in range(8): a(f"v_sub_u32 v{vRec+i}, v{vD+i}, v{vRec+i}")
    for i in range(8): a(f"v_lshrrev_b32 v{vT+i}, 1, v{vRec+i}")
    for i in range(8): a(f"v_xor_b32 v{vT+i}, v{vT+i}, v{vRec+i}")
    for i in range(8): a(f"v_and_b32 v{vT+i}, 4, v{vT+i}")
    for i in range(8): a(f"v_mul_u32_u24 v{vT+i}, 3, v{vT+i}")
    for i in range(8): a(f"v_xor_b32 v{vRec+i}, v{vRec+i}, v{vT+i}")
    a("s_waitcnt vmcnt(0)")
    stamp()
    a(f"s_movk_i32 s29, {6554}")
    for i in range(8): a(f"v_mul_u32_u24 v{vT+i}, s29, v{vS+i}")
    for i in range(8): a(f"v_lshrrev_b32 v{vT+i}, 24, v{vT+i}")
    for i in range(8): a(f"v_lshl_add_u32 v{vAd+i}, v{vBk+i}, 2, v{vT+i}")
    for i in range(8): a(f"v_lshlrev_b32 v{vAd+i}, 2, v{vAd+i}")
    for i in range(8): a(f"ds_add_rtn_u32 v{vRk+i}, v{vAd+i}, v3")
    for i in range(8): a(f"v_lshl_or_b32 v{vRec+i}, v{vRec+i}, 14, v{vS+i}")
    for i in range(8): a(f"v_add_u32 v{vT+i}, {i}, v64")
    for i in range(8): a(f"v_lshl_or_b32 v{vRec+i}, v{vT+i}, 19, v{vRec+i}")
    a("s_waitcnt lgkmcnt(0)")
    stamp()
    a("s_barrier")
    c0, p0 = 68, 76
    a("s_cmp_ge_u32 s22, 6")
    a("s_cbranch_scc1 P_scan1_done")
    a("v_lshlrev_b32 v2, 5, v0")
    a(f"ds_read_b128 v[{c0}:{c0+3}], v2 offset:{P_HIST}")
    a(f"ds_read_b128 v[{c0+4}:{c0+7}], v2 offset:{P_HIST+16}")
    a("s_waitcnt lgkmcnt(0)")
    a(f"v_mov_b32 v{p0}, 0")
    a(f"v_mov_b32 v{p0+1}, v{c0}")
    for k in range(2, 8): a(f"v_add_u32 v{p0+k}, v{p0+k-1}, v{c0+k-1}")
    a(f"v_add_u32 v84, v{p0+7}, v{c0+7}")
    a("v_mov_b32 v85, v84")
    wave_scan(a, 85)
    a("v_readlane_b32 s23, v85, 63")
    a("v_sub_u32 v85, v85, v84")
    a("s_lshl_b32 s30, s22, 2")
    a("v_mov_b32 v87, s30")
    a("v_mov_b32 v86, s23")
    a(f"ds_write_b32 v87, v86 offset:{P_TOT}")
    a("s_waitcnt lgkmcnt(0)")
    a("P_scan1_done:")
    a("s_barrier")
    a("s_cmp_ge_u32 s22, 6")
    a("s_cbranch_scc1 P_noscan")
    a("v_mov_b32 v87, 0")
    a(f"ds_read_b128 v[88:91], v87 offset:{P_TOT}")
    a(f"ds_read_b64 v[92:93], v87 offset:{P_TOT+16}")
    a("s_waitcnt lgkmcnt(0)")
    a("s_mov_b32 s30, 0")
    for k in range(5):
        a(f"v_readfirstlane_b32 s23, v{88+k}")
        a(f"s_cmp_gt_u32 s22, {k}")
        a("s_nop 1")
        a("s_cselect_b32 s23, s23, 0")
        a("s_add_u32 s30, s30, s23")
    a("v_add_u32 v85, s30, v85")
    for k in range(8): a(f"v_add_u32 v{p0+k}, v{p0+k}, v85")
    a(f"ds_write_b128 v2, v[{p0}:{p0+3}] offset:{P_START}")
    a(f"ds_write_b128 v2, v[{p0+4}:{p0+7}] offset:{P_START+16}")
    for b in range(2):
        cc = c0 + 4*b; pp = p0 + 4*b; o = 88 + 2*b
        a(f"v_add3_u32 v86, v{cc}, v{cc+1}, v{cc+2}")
        a(f"v_add_u32 v86, v86, v{cc+3}")
        a(f"v_lshl_or_b32 v{o}, v86, 16, v{pp}")
        for k in range(3): a(f"v_min_u32 v{cc+k}, 0xff, v{cc+k}")
        a(f"v_lshl_or_b32 v{o+1}, v{cc+1}, 8, v{cc}")
        a(f"v_lshl_or_b32 v{o+1}, v{cc+2}, 16, v{o+1}")
    a(f"s_mul_i32 s23, s2, {NB*8}")
    a("v_lshlrev_b32 v86, 4, v0")
    a(f"buffer_store_dwordx4 v[88:91], v86, s[24:27], s23 offen offset:{WS_T} {SF}")
    a("s_waitcnt lgkmcnt(0)")
    a("P_noscan:")
    a("s_barrier")
    stamp()
    for i in range(8): a(f"ds_read_b32 v{vT+i}, v{vAd+i} offset:{P_START}")
    a("s_waitcnt lgkmcnt(0)")
    for i in range(8): a(f"v_add_lshl_u32 v{vT+i}, v{vT+i}, v{vRk+i}, 2")
    for i in range(8): a(f"ds_write_b32 v{vT+i}, v{vRec+i} offset:{P_SORT}")
    a("s_waitcnt lgkmcnt(0)")
    a("s_barrier")
    a(f"ds_read_b128 v[4:7], v1 offset:{P_SORT}")
    a(f"ds_read_b128 v[8:11], v1 offset:{P_SORT+16}")
    a(f"s_add_u32 s3, s3, {WS_REC}")
    a("s_waitcnt lgkmcnt(0)")
    a(f"buffer_store_dwordx4 v[4:7], v1, s[24:27], s3 offen {SF}")
    a(f"buffer_store_dwordx4 v[8:11], v1, s[24:27], s3 offen offset:16 {SF}")
    stamp()
    if dbg: a("s_waitcnt vmcnt(0)")
    dump(1)
    a("s_endpgm")
    a("P_gemm:")
    nst[0] = 1
    a("s_load_dwordx2 s[4:5], s[0:1], 0")
    a("s_load_dwordx4 s[8:11], s[0:1], 32")
    a("s_load_dwordx2 s[34:35], s[0:1], 48")
    a("s_load_dwordx2 s[6:7], s[0:1], 72")
    a("v_lshrrev_b32 v2, 6, v0")
    a("v_and_b32 v1, 63, v0")
    a("v_readfirstlane_b32 s22, v2")
    a(f"s_sub_u32 s3, s2, {NCH}")
    a(f"s_cmp_ge_u32 s3, {P_NG}")
    a("s_cselect_b32 s36, 1, 0")
    a(f"s_cselect_b32 s37, {P_NG}, 0")
    a("s_sub_u32 s3, s3, s37")
    a("s_cmp_ge_u32 s22, 8")
    a("s_cbranch_scc1 P_end")
    a("s_lshr_b32 s23, s22, 2")
    a("s_and_b32 s28, s22, 3")
    a("s_lshl_b32 s3, s3, 2")
    a("s_add_u32 s3, s3, s23")
    a("s_lshl_b32 s29, s3, 5")
    a("v_lshrrev_b32 v3, 4, v1")
    a("v_and_b32 v4, 15, v1")
    a("v_lshlrev_b32 v5, 2, v3")
    a("v_xor_b32 v5, v5, v4")
    a("v_lshlrev_b32 v5, 4, v5")
    a("v_lshl_add_u32 v5, v3, 8, v5")
    a("v_xor_b32 v4, v4, v3")
    a("v_lshlrev_b32 v7, 4, v4")
    a("v_mov_b32 v9, v7")
    a("s_waitcnt lgkmcnt(0)")
    a("s_cmp_eq_u32 s36, 0")
    a("s_cselect_b32 s30, 32768, 0")
    a("s_cselect_b32 s38, s10, s8\ns_cselect_b32 s39, s11, s9")
    a("s_add_u32 s16, s34, s30\ns_addc_u32 s17, s35, 0")
    a("s_cmp_eq_u32 s23, 1")
    a("s_cselect_b32 s16, s38, s16\ns_cselect_b32 s17, s39, s17")
    a("s_and_b32 s17, s17, 0xffff")
    a("s_mov_b32 s18, 32768\ns_mov_b32 s19, 0x20000")
    a("s_lshl_b32 s30, s28, 13")
    a("s_lshl_b32 s31, s23, 15")
    a("s_add_u32 s31, s31, s30")
    for half in range(2):
        a(f"s_add_u32 m0, s31, {half*4096}")
        a(f"s_add_u32 s33, s30, {half*4096}")
        for ii in range(4):
            a(f"buffer_load_dwordx4 v5, s[16:19], s33 offen offset:{ii*1024} lds")
    srd(a, 12, 4, 5, N, stride=256)
    a("s_lshl_b32 s30, s28, 3")
    a("s_add_u32 s30, s30, s29")
    a(f"s_mul_i32 s31, s23, {XSLOT}")
    a(f"s_mul_i32 s33, s28, {2*XGRP}")
    a("s_add_u32 s31, s31, s33")
    for ps in range(2):
        a("v_add_u32 v6, s30, v3")
        a("v_add_u32 v8, 4, v6")
        a(f"s_add_u32 m0, s31, {G_X + ps*2*XSLOT}")
        a("s_add_u32 s30, s30, 64")
        a("buffer_load_dwordx4 v[6:7], s[12:15], 0 idxen offen lds")
        a(f"s_add_u32 m0, s31, {G_X + ps*2*XSLOT + XGRP}")
        a("s_nop 0")
        a("buffer_load_dwordx4 v[8:9], s[12:15], 0 idxen offen lds")
    vE5, vH, vX0, vX1, vWt = 10, 11, 12, 13, 14
    a(f"v_and_b32 v{vE5}, 31, v1")
    a(f"v_lshrrev_b32 v{vH}, 5, v1")
    xfrag_addr(a, vX0, vX1, vE5, vH, 15, 16, 17)
    a(f"s_mul_i32 s30, s23, {XSLOT}")
    a(f"s_add_u32 s30, s30, {G_X}")
    a(f"v_add_u32 v{vX0}, s30, v{vX0}")
    a(f"v_add_u32 v{vX1}, s30, v{vX1}")
    a("v_lshrrev_b32 v15, 2, v1\nv_and_b32 v15, 3, v15")
    a("s_lshl_b32 s30, s28, 2")
    a("v_lshlrev_b32 v16, 2, v15")
    a("v_xor_b32 v16, s30, v16")
    a("v_lshrrev_b32 v17, 4, v1\nv_and_b32 v17, 1, v17")
    a("v_lshl_add_u32 v16, v17, 1, v16")
    a("v_lshrrev_b32 v17, 1, v1\nv_and_b32 v17, 1, v17")
    a("v_add_u32 v16, v16, v17")
    a("v_lshlrev_b32 v16, 4, v16")
    a("v_and_b32 v17, 1, v1")
    a("v_lshl_add_u32 v16, v17, 3, v16")
    a(f"v_lshl_add_u32 v15, v{vH}, 3, v15")
    a(f"v_lshl_add_u32 v{vWt}, v15, 8, v16")
    srd(a, 24, 6, 7, N * 512, add=WS_TAB)
    a("s_cmp_eq_u32 s36, 0")
    a("s_cbranch_scc1 P_g_bvsrd")
    srd(a, 24, 6, 7, N * 256, add=WS_XA)
    srd(a, 40 if not dbg else 64, 6, 7, N * 256, add=WS_XU)
    a("P_g_bvsrd:")
    sXU = 40 if not dbg else 64
    f0, f1, fX, d0, d1 = 32, 64, 96, 128, 144
    a("s_lshl_b32 s31, s22, 12")
    a(f"v_and_b32 v15, 7, v{vE5}")
    a(f"v_lshlrev_b32 v16, 1, v{vH}")
    a("v_xor_b32 v16, v16, v15")
    a("v_lshlrev_b32 v16, 4, v16")
    a(f"v_lshl_add_u32 v16, v{vE5}, 7, v16")
    a("v_add_u32 v16, s31, v16")
    a("v_lshrrev_b32 v20, 3, v1")
    a("v_and_b32 v21, 7, v1")
    a("v_xor_b32 v22, v21, v20")
    a("v_lshlrev_b32 v22, 4, v22")
    a("v_lshl_add_u32 v22, v20, 7, v22")
    a("v_add_u32 v22, s31, v22")
    a("v_add_u32 v20, s29, v20")
    a("v_lshlrev_b32 v20, 9, v20")
    a("v_lshl_add_u32 v20, v21, 4, v20")
    a("s_lshl_b32 s30, s28, 7")
    a("v_add_u32 v20, s30, v20")
    a(f"v_lshrrev_b32 v23, 2, v{vE5}")
    a("v_and_b32 v23, 3, v23")
    a("v_lshlrev_b32 v23, 4, v23")
    a(f"v_lshl_add_u32 v23, v{vE5}, 6, v23")
    a(f"v_lshl_add_u32 v23, v{vH}, 3, v23")
    a("v_add_u32 v23, s31, v23")
    a("v_lshrrev_b32 v24, 4, v1\nv_and_b32 v24, 3, v24")
    a("v_and_b32 v25, 3, v1")
    a("v_xor_b32 v24, v24, v25")
    a("v_lshlrev_b32 v24, 4, v24")
    a("v_lshrrev_b32 v26, 2, v1")
    a("v_lshl_add_u32 v24, v26, 6, v24")
    a("v_add_u32 v24, s31, v24")
    a("v_add_u32 v26, s29, v26")
    a("v_lshlrev_b32 v26, 8, v26")
    a("v_lshl_add_u32 v26, v25, 4, v26")
    a("s_lshl_b32 s30, s28, 6")
    a("v_add_u32 v26, s30, v26")
    stamp()
    a("s_waitcnt vmcnt(0)")
    stamp()
    a("s_barrier")
    stamp()
    for s in range(8):
        for part in range(2):
            a(f"ds_read_b64_tr_b16 v[{f0+4*s+2*part}:{f0+4*s+2*part+1}], v{vWt} offset:{G_W0 + (16*s+4*part)*256}")
        if s == 5: a("s_waitcnt lgkmcnt(4)")
    for s in range(8):
        for part in range(2):
            a(f"ds_read_b64_tr_b16 v[{f1+4*s+2*part}:{f1+4*s+2*part+1}], v{vWt} offset:{G_W1 + (16*s+4*part)*256}")
        if s in (1, 5): a("s_waitcnt lgkmcnt(4)")
    a("s_waitcnt lgkmcnt(0)")
    a("s_barrier")
    a(f"s_mov_b32 s30, {NEG_LOG2E:#x}")
    for ps in range(2):
        for s in range(8):
            ad = vX0 if s % 2 == 0 else vX1
            a(f"ds_read_b128 v[{fX+4*s}:{fX+4*s+3}], v{ad} offset:{ps*2*XSLOT + (s>>1)*64}")
        for s in range(8):
            if s % 2 == 0: a(f"s_waitcnt lgkmcnt({6-s})")
            a(mf(d0, f0 + 4*s, fX + 4*s, None if s == 0 else d0))
        for s in range(8):
            a(mf(d1, f1 + 4*s, fX + 4*s, None if s == 0 else d1))
        a("s_nop 3")
        for r in range(16): a(f"v_mul_f32 v{d0+r}, s30, v{d0+r}")
        for r in range(8): a(f"v_cvt_pk_bf16_f32 v{d0+r}, v{d0+2*r}, v{d0+2*r+1}")
        for r in range(8): a(f"v_cvt_pk_bf16_f32 v{d0+8+r}, v{d1+2*r}, v{d1+2*r+1}")
        a("s_cmp_eq_u32 s36, 0")
        a(f"s_cbranch_scc0 P_g_au{ps}")
        a(f"ds_write_b128 v16, v[{d0}:{d0+3}]")
        a("v_xor_b32 v17, 16, v16")
        a(f"ds_write_b128 v17, v[{d0+4}:{d0+7}]")
        a("v_xor_b32 v18, 64, v16")
        a(f"ds_write_b128 v18, v[{d0+8}:{d0+11}]")
        a("v_xor_b32 v19, 64, v17")
        a(f"ds_write_b128 v19, v[{d0+12}:{d0+15}]")
        a("s_waitcnt lgkmcnt(0)")
        for i in range(4):
            a(f"ds_read_b128 v[{d1+4*i}:{d1+4*i+3}], v22 offset:{i*1024}")
        a(f"s_mov_b32 s33, {ps*64*512}")
        for i in range(4):
            a(f"s_waitcnt lgkmcnt({3-i})")
            a(f"buffer_store_dwordx4 v[{d1+4*i}:{d1+4*i+3}], v20, s[24:27], s33 offen {SF}")
            if i < 3: a("s_add_u32 s33, s33, 4096")
        a(f"s_branch P_g_done{ps}")
        a(f"P_g_au{ps}:")
        for j in range(4):
            if j: a(f"v_xor_b32 v17, {16*j}, v23")
            ad = 23 if j == 0 else 17
            a(f"ds_write_b64 v{ad}, v[{d0+2*j}:{d0+2*j+1}]")
            a(f"ds_write_b64 v{ad}, v[{d0+8+2*j}:{d0+8+2*j+1}] offset:2048")
        a("s_waitcnt lgkmcnt(0)")
        for i in range(4):
            a(f"ds_read_b128 v[{d1+4*i}:{d1+4*i+3}], v24 offset:{i*1024}")
        a(f"s_mov_b32 s33, {ps*64*256}")
        for i in range(4):
            a(f"s_waitcnt lgkmcnt({3-i})")
            sr = 24 if i < 2 else sXU
            a(f"buffer_store_dwordx4 v[{d1+4*i}:{d1+4*i+3}], v26, s[{sr}:{sr+3}], s33 offen offset:0 {SF}")
            if i == 0: a("s_add_u32 s33, s33, 4096")
            if i == 1: a("s_sub_u32 s33, s33, 4096")
            if i == 2: a("s_add_u32 s33, s33, 4096")
        a(f"P_g_done{ps}:")
    stamp()
    if dbg: a("s_waitcnt vmcnt(0)")
    dump(2)
    a("s_endpgm")
    a("P_weights:")
    a("s_load_dwordx2 s[8:9], s[0:1], 48")
    a("s_load_dwordx2 s[10:11], s[0:1], 72")
    a("v_lshrrev_b32 v2, 6, v0")
    a("v_and_b32 v1, 63, v0")
    a("v_readfirstlane_b32 s3, v2")
    a("s_nop 0")
    a("s_cmp_ge_u32 s3, 4")
    a("s_cbranch_scc1 P_end")
    a("s_waitcnt lgkmcnt(0)")
    srd(a, 12, 8, 9, 272 * 256)
    a("s_lshl_b32 s28, s3, 6")
    a(f"s_add_u32 s28, s28, {256*256}")
    a("v_lshrrev_b32 v2, 5, v1")
    a("v_lshlrev_b32 v2, 11, v2")
    a("v_and_b32 v3, 31, v1")
    a("v_lshl_add_u32 v2, v3, 1, v2")
    for j in range(8):
        a(f"buffer_load_ushort v{8+j}, v2, s[12:15], s28 offen offset:{j*256}")
    srd(a, 16, 10, 11, WS_SZ)
    a("s_lshl_b32 s3, s3, 10")
    a(f"s_add_u32 s3, s3, {WS_W}")
    a("v_lshlrev_b32 v1, 4, v1")
    a(f"s_mov_b32 s29, {NEG_LOG2E:#x}")
    a("s_waitcnt vmcnt(0)")
    for j in range(8): a(f"v_lshlrev_b32 v{8+j}, 16, v{8+j}")
    for j in range(8): a(f"v_mul_f32 v{8+j}, s29, v{8+j}")
    for j in range(4): a(f"v_cvt_pk_bf16_f32 v{16+j}, v{8+2*j}, v{9+2*j}")
    a("buffer_store_dwordx4 v[16:19], v1, s[16:19], s3 offen")
    a("P_end:")
    a("s_endpgm")
    return a.text() + descriptor("prep_kernel", 160, 80 if dbg else 48)

CAP = 640
NPAD = 128
L_GR = 0
L_XA = L_GR + 4 * 2 * 4096
L_ER = L_XA + 4096
L_OR = L_ER + 3 * 1024
L_LS = L_OR + 3 * 1024
LSZ = (CAP + NPAD) * 4
L_LE = L_LS + LSZ
L_LQ = L_LE + LSZ
M_LDS = (L_LQ + CAP + NPAD + 63) // 64 * 64
AGG_STRIDE = 528

vLANE, vE5, vH = 1, 2, 3
vG = 4
vEA, vO0, vT0, vT1 = 8, 9, 10, 11
vLs, vLe, vLq = 12, 13, 14
pG = 16
pE = 24
vQ, vOHa, vOHd = 26, 27, 28
vK = 29
vT = 32
vC, vXA, vI, vACC, vZ, vHV = 56, 60, 64, 72, 88, 104
vFX, vFH, vAE, vAO, vSO, vMSG, vXU = 120, 128, 136, 140, 144, 152, 160
NVGPR = 164
U_REC = 8

def main_kernel(dbg=False):
    a = A()
    nst = [0]
    def stamp():
        if not dbg: return
        a("s_waitcnt lgkmcnt(0)")
        a("s_memtime s[58:59]")
        a("s_waitcnt lgkmcnt(0)")
        a(f"s_mov_b32 s{64+nst[0]}, s58")
        nst[0] += 1
    PRIO = opt("prio", "pair")
    header(a, KNAME)
    a(f"s_cmp_ge_u32 s2, {NB}")
    a("s_cbranch_scc1 M_end")
    a("s_load_dwordx2 s[6:7], s[0:1], 8")
    a("s_load_dwordx2 s[8:9], s[0:1], 56")
    a("s_load_dwordx2 s[10:11], s[0:1], 72")
    if PRIO != "none": a("s_setprio 3")
    if dbg: a("s_memrealtime s[60:61]")
    stamp()
    t0, t1, t2, t3 = vT, vT + 1, vT + 2, vT + 3
    vTv = vT + 4
    a(f"v_lshrrev_b32 v{t0}, 6, v0")
    a(f"v_and_b32 v{vLANE}, 63, v0")
    a(f"v_readfirstlane_b32 s32, v{t0}")
    a(f"v_mul_u32_u24 v{t1}, {NB*8}, v{vLANE}")
    a("s_lshl_b32 s38, s2, 3")
    a("s_mul_i32 s33, s2, 625")
    a("s_add_u32 s34, s33, 672")
    a("s_add_u32 s33, s33, 47")
    a(f"s_mul_hi_u32 s33, s33, {MAGIC_48}")
    a(f"s_mul_hi_u32 s34, s34, {MAGIC_48}")
    a("s_sub_u32 s34, s34, s33")
    a(f"v_and_b32 v{vE5}, 31, v{vLANE}")
    a(f"v_lshrrev_b32 v{vH}, 5, v{vLANE}")
    a("s_waitcnt lgkmcnt(0)")
    srd(a, 20, 10, 11, WS_SZ)
    a("s_cmp_lg_u32 s32, 0")
    a("s_cbranch_scc1 M_noT")
    a(f"buffer_load_dwordx2 v[{vTv}:{vTv+1}], v{t1}, s[20:23], s38 offen")
    a("M_noT:")
    srd(a, 16, 6, 7, E, stride=32)
    srd(a, 24, 10, 11, N, stride=512, add=WS_TAB)
    srd(a, 28, 8, 9, N * 256)
    srd(a, 12, 10, 11, N, stride=256, add=WS_XA)
    srd(a, 44, 10, 11, N * 256, add=WS_XU)
    a(f"v_lshrrev_b32 v{t0}, 4, v{vLANE}")
    a(f"v_and_b32 v{t1}, 7, v{vLANE}")
    a(f"v_xor_b32 v{t1}, v{t1}, v{t0}")
    a("s_lshl_b32 s38, s32, 7")
    a(f"v_lshl_add_u32 v{pG+1}, v{t1}, 4, s38")
    a(f"v_xor_b32 v{pG+3}, 64, v{pG+1}")
    a(f"v_mov_b32 v{pG+5}, v{pG+1}")
    a(f"v_mov_b32 v{pG+7}, v{pG+3}")
    a(f"v_lshrrev_b32 v{t0}, 1, v{vE5}")
    a(f"v_and_b32 v{t0}, 7, v{t0}")
    a(f"v_xor_b32 v{t0}, v{t0}, v{vH}")
    a(f"v_lshlrev_b32 v{t0}, 4, v{t0}")
    a(f"v_lshl_add_u32 v{t0}, v{vE5}, 7, v{t0}")
    a("s_lshl_b32 s40, s32, 13")
    a(f"v_add_u32 v{vG}, s40, v{t0}")
    for k in range(1, 4):
        a(f"v_xor_b32 v{vG+k}, {32*k}, v{vG}")
    a("s_lshl_b32 s41, s32, 8")
    a(f"s_add_u32 s41, s41, {L_ER}")
    a(f"v_lshlrev_b32 v{t1}, 5, v{vE5}")
    a(f"v_bfe_u32 v{t0}, v{vE5}, 3, 1")
    a(f"v_xor_b32 v{t0}, v{t0}, v{vH}")
    a(f"v_lshl_add_u32 v{t0}, v{t0}, 4, v{t1}")
    a(f"v_add_u32 v{vEA}, {L_ER}, v{t0}")
    a(f"v_lshl_add_u32 v{t0}, v{vH}, 4, v{t1}")
    a(f"v_add_u32 v{vO0}, {L_OR}, v{t0}")
    a(f"v_bfe_u32 v{t1}, v{vLANE}, 2, 2")
    a(f"v_lshl_add_u32 v{t1}, v{vH}, 2, v{t1}")
    a(f"v_and_b32 v{t0}, 3, v{vLANE}")
    a(f"v_lshlrev_b32 v{t0}, 3, v{t0}")
    a(f"v_lshl_add_u32 v{t0}, v{t1}, 5, v{t0}")
    a(f"v_add_u32 v{vT0}, {L_OR}, v{t0}")
    a("s_and_b32 s38, s32, 1")
    a(f"v_and_b32 v{t0}, 1, v{vLANE}")
    a(f"v_xor_b32 v{t0}, s38, v{t0}")
    a(f"v_lshlrev_b32 v{pE+1}, 4, v{t0}")
    a(f"v_and_b32 v{t0}, 7, v{vLANE}")
    a("s_lshl_b32 s38, s32, 3")
    a(f"v_add_u32 v{t0}, s38, v{t0}")
    a(f"v_lshlrev_b32 v{t1}, 5, v{t0}")
    a(f"v_bfe_u32 v{t2}, v{vLANE}, 3, 1")
    for k in range(3):
        s_set, s_clr = (k + 2) % 3, k
        a(f"v_mul_i32_i24 v{t3}, {(s_clr - s_set) * 1024}, v{t2}")
        a(f"v_add_u32 v{t3}, {s_set*1024 + L_OR}, v{t3}")
        a(f"v_add_u32 v{vK+k}, v{t3}, v{t1}")
    a(f"v_sub_u32 v{t3}, 1, v{t2}")
    a(f"v_mul_u32_u24 v{vOHd}, 0x3f80, v{t3}")
    vLq0 = vT + 22
    a(f"v_lshlrev_b32 v{t2}, 6, v{t2}")
    a(f"v_sub_u32 v{t0}, v{t0}, v{t2}")
    a(f"v_add_u32 v{vLq0}, {L_LQ + 64}, v{t0}")
    a(f"v_and_b32 v{t0}, 1, v{vE5}")
    a(f"v_lshlrev_b32 v{t0}, 4, v{t0}")
    a(f"v_mov_b32 v{t1}, 0x3f80")
    a(f"v_lshlrev_b32 v{t0}, v{t0}, v{t1}")
    a(f"v_bfe_u32 v{t1}, v{vE5}, 1, 1")
    a(f"v_lshrrev_b32 v{t2}, 2, v{vE5}")
    a(f"v_and_b32 v{t3}, 2, v{t2}")
    a(f"v_or_b32 v{t1}, v{t1}, v{t3}")
    a(f"v_and_b32 v{t2}, 1, v{t2}")
    a(f"v_lshl_add_u32 v{t1}, v{t2}, 2, v{t1}")
    a(f"v_lshrrev_b32 v{t2}, 4, v{vE5}")
    a(f"v_xor_b32 v{t2}, v{t2}, v{vH}")
    a(f"v_lshl_add_u32 v{t1}, v{t2}, 3, v{t1}")
    for g in range(2):
        pairs = ["vcc", "s[48:49]", "s[50:51]", "s[54:55]"]
        for k in range(4): a(f"v_cmp_eq_u32 {pairs[k]}, {4*g+k}, v{t1}")
        for k in range(4): a(f"v_cndmask_b32 v{vI+4*g+k}, 0, v{t0}, {pairs[k]}")
    for r in range(8):
        a(f"v_mov_b32 v{vACC+r}, 0")
    vRecI, vPos0, vCnt, vEb = vT + 4, vT + 5, vT + 6, vT + 7
    vc = vHV
    vp = vHV + 4
    tb = vZ
    L_TB = L_GR
    a("s_cmp_lg_u32 s32, 0")
    a("s_cbranch_scc1 M_scan_done")
    a(f"v_mul_u32_u24 v{t3}, {CH}, v{vLANE}")
    a("s_waitcnt vmcnt(0)")
    stamp()
    a(f"v_lshrrev_b32 v{t1}, 16, v{vTv}")
    a(f"v_and_b32 v{vc}, 0xff, v{vTv+1}")
    a(f"v_bfe_u32 v{vc+1}, v{vTv+1}, 8, 8")
    a(f"v_bfe_u32 v{vc+2}, v{vTv+1}, 16, 8")
    a(f"v_add3_u32 v{t0}, v{vc}, v{vc+1}, v{vc+2}")
    a(f"v_sub_u32 v{vc+3}, v{t1}, v{t0}")
    for k in range(4): a(f"v_mov_b32 v{vp+k}, v{vc+k}")
    a(f"v_and_b32 v{t2}, 0xffff, v{vTv}")
    for sh in (1, 2, 4, 8):
        for k in range(4):
            a(f"v_add_u32_dpp v{vp+k}, v{vp+k}, v{vp+k} row_shr:{sh} row_mask:0xf bank_mask:0xf bound_ctrl:1")
    for k in range(4): a(f"v_add_u32_dpp v{vp+k}, v{vp+k}, v{vp+k} row_bcast:15 row_mask:0xa bank_mask:0xf")
    for k in range(4): a(f"v_add_u32_dpp v{vp+k}, v{vp+k}, v{vp+k} row_bcast:31 row_mask:0xc bank_mask:0xf")
    a(f"v_add_u32 v{tb}, v{t3}, v{t2}")
    for k in range(4): a(f"v_readlane_b32 s{48+k}, v{vp+k}, 63")
    for k in range(1, 4): a(f"v_add_u32 v{tb+4*k}, v{tb+4*k-4}, v{vc+k-1}")
    a("s_add_u32 s49, s49, s48")
    a("s_add_u32 s50, s50, s49")
    a("s_add_u32 s35, s51, s50")
    for k in range(4): a(f"v_sub_u32 v{tb+4*k+1}, v{vp+k}, v{vc+k}")
    for k in range(1, 4): a(f"v_add_u32 v{tb+4*k+1}, s{47+k}, v{tb+4*k+1}")
    for k in range(4): a(f"v_mov_b32 v{tb+4*k+2}, v{vc+k}")
    for k in range(4): a(f"v_mov_b32 v{tb+4*k+3}, v{t3}")
    wa = vHV + 8
    a(f"v_and_b32 v{wa+1}, 3, v{tb}")
    a(f"v_and_b32 v{wa}, 0xfffffffc, v{tb}")
    a(f"v_lshlrev_b32 v{wa}, 2, v{wa}")
    a(f"v_lshrrev_b32 v{t1}, 16, v{vTv}")
    a(f"v_add_u32 v{wa+1}, v{wa+1}, v{t1}")
    a(f"v_cmp_lt_u32 vcc, 32, v{wa+1}")
    a(f"s_cmp_le_u32 s35, {CAP}")
    a("s_cselect_b32 s54, 1, 0")
    a("s_cmp_eq_u64 vcc, 0")
    a("s_cselect_b32 s54, s54, 0")
    a(f"v_lshlrev_b32 v{t0}, 6, v{vLANE}")
    a(f"v_lshlrev_b32 v{t3}, 3, v{vLANE}")
    a(f"v_mov_b32 v{wa+2}, s35")
    a(f"v_mov_b32 v{wa+3}, s54")
    a(f"v_mov_b32 v{t2}, {L_TB + 4096}")
    for k in range(4): a(f"ds_write_b128 v{t0}, v[{tb+4*k}:{tb+4*k+3}] offset:{L_TB+16*k}")
    a(f"ds_write_b64 v{t3}, v[{wa}:{wa+1}] offset:{L_TB + 4160}")
    a(f"ds_write_b64 v{t2}, v[{wa+2}:{wa+3}]")
    a("s_waitcnt lgkmcnt(0)")
    a("M_scan_done:")
    if dbg: nst[0] = 2
    a(f"v_lshlrev_b32 v{t0}, 4, v0")
    a(f"v_mov_b32 v{t2}, {L_TB + 4096}")
    a("s_barrier")
    wb = vHV
    a(f"ds_read_b128 v[{vRecI}:{vRecI+3}], v{t0} offset:{L_TB}")
    a(f"ds_read_b64 v[{wb+4}:{wb+5}], v{t2}")
    a(f"v_lshrrev_b32 v{t1}, 3, v{vLANE}")
    a("s_lshl_b32 s38, s32, 7")
    a(f"v_lshl_add_u32 v{t1}, v{t1}, 3, s38")
    a(f"ds_read_b64 v[{wb}:{wb+1}], v{t1} offset:{L_TB + 4160}")
    a(f"ds_read_b64 v[{wb+2}:{wb+3}], v{t1} offset:{L_TB + 4160 + 64}")
    a(f"v_and_b32 v{t3}, 7, v{vLANE}")
    a(f"v_lshlrev_b32 v{t3}, 2, v{t3}")
    a("s_waitcnt lgkmcnt(0)")
    a(f"v_readfirstlane_b32 s35, v{wb+4}")
    a(f"v_readfirstlane_b32 s54, v{wb+5}")
    stamp()
    def side_loads():
        b0 = vMSG
        a(f"v_lshlrev_b32 v{b0+2}, 4, v{vLANE}")
        a("s_lshl_b32 s42, s32, 10")
        a(f"s_add_u32 m0, s42, {L_XA}")
        a(f"s_add_u32 s42, s42, {WS_W}")
        a(f"buffer_load_dwordx4 v[{vC}:{vC+3}], v{b0+2}, s[20:23], s42 offen")
        a(f"v_lshrrev_b32 v{b0}, 4, v0")
        a(f"v_add_u32 v{b0}, s33, v{b0}")
        a(f"v_and_b32 v{b0+1}, 15, v0")
        a(f"v_lshlrev_b32 v{b0+1}, 4, v{b0+1}")
        a(f"buffer_load_dwordx4 v[{b0}:{b0+1}], s[12:15], 0 idxen offen lds")
    def xu_load():
        a(f"v_lshrrev_b32 v{vOHa}, 4, v0")
        a(f"v_add_u32 v{vOHa}, s33, v{vOHa}")
        a(f"v_lshlrev_b32 v{vOHa}, 8, v{vOHa}")
        a(f"v_and_b32 v{vXU}, 15, v0")
        a(f"v_lshl_add_u32 v{vOHa}, v{vXU}, 4, v{vOHa}")
        a(f"buffer_load_dwordx4 v[{vXU}:{vXU+3}], v{vOHa}, s[44:47], 0 offen")
    a("s_mov_b32 s36, 0")
    a("s_mov_b32 s43, 1")
    a("s_mov_b32 s53, 1")
    a("s_cmp_eq_u32 s35, 0")
    a("s_cbranch_scc1 M_empty")

    a("s_cmp_eq_u32 s54, 0")
    a("s_cbranch_scc1 M_batch")
    L_RW = L_GR + 8192
    a(f"s_mov_b32 s52, {WS_REC}")
    a("s_lshl_b32 s38, s32, 11")
    for i in range(2):
        a(f"v_cmp_lt_u32 vcc, v{t3}, v{wb+2*i+1}")
        a(f"v_lshl_add_u32 v{wb+2*i}, v{t3}, 2, v{wb+2*i}")
        a(f"s_add_u32 m0, s38, {L_RW + 1024*i}")
        a("s_mov_b64 exec, vcc")
        a(f"buffer_load_dwordx4 v{wb+2*i}, s[20:23], s52 offen lds")
        a("s_mov_b64 exec, -1")
    side_loads()
    a("s_mov_b32 s43, 0")
    z = vT + 10
    for k in range(4): a(f"v_mov_b32 v{z+k}, 0")
    a(f"v_lshlrev_b32 v{t0}, 4, v0")
    a(f"v_cmp_gt_u32 vcc, 192, v0")
    a("s_mov_b64 exec, vcc")
    a(f"ds_write_b128 v{t0}, v[{z}:{z+3}] offset:{L_OR}")
    a("s_mov_b64 exec, -1")
    a("s_mov_b32 s37, s35")
    vP4, vP1, vA = vT + 12, vT + 13, vT + 3
    vR = vT + 14
    a(f"v_lshrrev_b32 v{t0}, 2, v0")
    a(f"v_lshlrev_b32 v{t0}, 7, v{t0}")
    a(f"v_mov_b32_dpp v{t2}, v{vRecI} quad_perm:[0,0,0,0] row_mask:0xf bank_mask:0xf")
    a(f"v_and_b32 v{t2}, 0xfffffffc, v{t2}")
    a(f"v_sub_u32 v{t2}, v{vRecI}, v{t2}")
    a(f"v_lshl_add_u32 v{vA}, v{t2}, 2, v{t0}")
    a(f"v_mov_b32 v{vP1}, v{vPos0}")
    a(f"v_lshlrev_b32 v{vP4}, 2, v{vPos0}")
    a("s_waitcnt vmcnt(2)")
    if dbg:
        a("s_memtime s[58:59]\ns_waitcnt lgkmcnt(0)\ns_mov_b32 s67, s58")
    a("M_fast_round:")
    for u in range(8): a(f"ds_read_b32 v{vR+u}, v{vA} offset:{L_RW + 4*u}")
    for u in range(8):
        a(f"v_cmp_lt_i32 vcc, {u}, v{vCnt}")
        a("s_mov_b64 exec, vcc")
        a("s_cbranch_execz M_fast_done")
        if u == 0: a("s_waitcnt lgkmcnt(0)")
        a(f"v_and_b32 v{t0}, 0x3fff, v{vR+u}")
        a(f"v_bfe_u32 v{t1}, v{vR+u}, 14, 5")
        a(f"v_lshrrev_b32 v{t2}, 19, v{vR+u}")
        a(f"v_add_u32 v{t2}, v{t2}, v{vEb}")
        if flag("exp_e"): a(f"v_and_b32 v{t2}, 0x3fff, v{t2}")
        if flag("exp_t"): a(f"v_and_b32 v{t0}, 0x7ff, v{t0}")
        a(f"ds_write_b32 v{vP4}, v{t0} offset:{L_LS + 4*u}")
        a(f"ds_write_b8 v{vP1}, v{t1} offset:{L_LQ + u}")
        a(f"ds_write_b32 v{vP4}, v{t2} offset:{L_LE + 4*u}")
    a("s_mov_b64 exec, -1")
    a(f"v_subrev_u32 v{vCnt}, 8, v{vCnt}")
    a(f"v_add_u32 v{vA}, 32, v{vA}")
    a(f"v_add_u32 v{vP4}, 32, v{vP4}")
    a(f"v_add_u32 v{vP1}, 8, v{vP1}")
    a(f"v_cmp_lt_i32 vcc, 0, v{vCnt}")
    a("s_cbranch_vccnz M_fast_round")
    a("M_fast_done:")
    a("s_mov_b64 exec, -1")
    a("s_branch M_pads")
    a("M_batch:")
    z = vT + 10
    for k in range(4): a(f"v_mov_b32 v{z+k}, 0")
    a(f"v_lshlrev_b32 v{t0}, 4, v0")
    a(f"v_cmp_gt_u32 vcc, 192, v0")
    a("s_mov_b64 exec, vcc")
    a(f"ds_write_b128 v{t0}, v[{z}:{z+3}] offset:{L_OR}")
    a("s_mov_b64 exec, -1")
    a("s_sub_u32 s37, s35, s36")
    a(f"s_min_u32 s37, s37, {CAP}")
    vJ, vRem, vRa, vP4, vP1 = vT + 10, vT + 11, vT + 3, vT + 12, vT + 13
    a(f"v_sub_u32 v{vJ}, s36, v{vPos0}")
    a(f"v_add_u32 v{vRem}, {CAP}, v{vJ}")
    a(f"v_max_i32 v{vJ}, 0, v{vJ}")
    a(f"v_min_i32 v{vRem}, v{vRem}, v{vCnt}")
    a(f"v_sub_u32 v{vRem}, v{vRem}, v{vJ}")
    a(f"v_add_lshl_u32 v{vRa}, v{vJ}, v{vRecI}, 2")
    a(f"v_add_u32 v{vP1}, v{vPos0}, v{vJ}")
    a(f"v_subrev_u32 v{vP1}, s36, v{vP1}")
    a(f"v_lshlrev_b32 v{vP4}, 2, v{vP1}")
    a(f"s_mov_b32 s52, {WS_REC}")
    vR = vT + 14
    a("M_round:")
    for half in range(2):
        a(f"v_cmp_lt_i32 vcc, {4*half}, v{vRem}")
        a("s_mov_b64 exec, vcc")
        a("s_cbranch_execz M_round_issued")
        a(f"buffer_load_dwordx4 v[{vR+4*half}:{vR+4*half+3}], v{vRa}, s[20:23], s52 offen offset:{16*half}")
    a("M_round_issued:")
    a("s_mov_b64 exec, -1")
    a("s_cmp_eq_u32 s43, 0")
    a("s_cbranch_scc1 M_round_w0")
    side_loads()
    a("s_mov_b32 s43, 0")
    a("s_waitcnt vmcnt(2)")
    a("s_branch M_round_proc")
    a("M_round_w0:")
    a("s_waitcnt vmcnt(0)")
    a("M_round_proc:")
    if dbg:
        a("s_memtime s[58:59]\ns_waitcnt lgkmcnt(0)\ns_mov_b32 s67, s58"); nst[0] = 4
    for u in range(8):
        a(f"v_cmp_lt_i32 vcc, {u}, v{vRem}")
        a("s_mov_b64 exec, vcc")
        a("s_cbranch_execz M_round_done")
        a(f"v_and_b32 v{t0}, 0x3fff, v{vR+u}")
        a(f"v_bfe_u32 v{t1}, v{vR+u}, 14, 5")
        a(f"v_lshrrev_b32 v{t2}, 19, v{vR+u}")
        a(f"v_add_u32 v{t2}, v{t2}, v{vEb}")
        if flag("exp_e"): a(f"v_and_b32 v{t2}, 0x3fff, v{t2}")
        if flag("exp_t"): a(f"v_and_b32 v{t0}, 0x7ff, v{t0}")
        a(f"ds_write_b32 v{vP4}, v{t0} offset:{L_LS + 4*u}")
        a(f"ds_write_b8 v{vP1}, v{t1} offset:{L_LQ + u}")
        a(f"ds_write_b32 v{vP4}, v{t2} offset:{L_LE + 4*u}")
    a("M_round_done:")
    a("s_mov_b64 exec, -1")
    a(f"v_subrev_u32 v{vRem}, 8, v{vRem}")
    a(f"v_add_u32 v{vRa}, 32, v{vRa}")
    a(f"v_add_u32 v{vP4}, 32, v{vP4}")
    a(f"v_add_u32 v{vP1}, 8, v{vP1}")
    a(f"v_cmp_lt_i32 vcc, 0, v{vRem}")
    a("s_cbranch_vccnz M_round")
    a("M_pads:")
    a("s_cmp_ge_u32 s32, 2")
    a("s_cbranch_scc1 M_pad_done")
    a(f"v_add_u32 v{t0}, s37, v0")
    a(f"v_add_u32 v{t1}, {L_LQ}, v{t0}")
    a(f"v_lshlrev_b32 v{t0}, 2, v{t0}")
    a(f"v_add_u32 v{t0}, {L_LS}, v{t0}")
    a(f"v_mov_b32 v{t2}, 0xffffff")
    a(f"v_mov_b32 v{t3}, 15")
    a(f"ds_write_b32 v{t0}, v{t2}")
    a(f"ds_write_b32 v{t0}, v{t2} offset:{L_LE - L_LS}")
    a(f"ds_write_b8 v{t1}, v{t3}")
    a("M_pad_done:")
    a(f"v_lshrrev_b32 v{t0}, 3, v{vLANE}")
    a(f"v_lshlrev_b32 v{t0}, 2, v{t0}")
    a(f"v_add_u32 v{vLs}, {L_LS}, v{t0}")
    a("s_lshl_b32 s38, s32, 5")
    a(f"s_add_u32 s38, s38, {L_LE}")
    a(f"v_and_b32 v{t0}, 15, v{vLANE}")
    a(f"v_lshrrev_b32 v{t0}, 1, v{t0}")
    a(f"v_lshl_add_u32 v{vLe}, v{t0}, 2, s38")
    a(f"v_mov_b32 v{vLq}, v{vLq0}")
    a("s_waitcnt lgkmcnt(0)")
    a("s_barrier")
    stamp()
    def idx_reads(T):
        for q in range(4):
            a(f"ds_read_b32 v{pG+2*q}, v{vLs} offset:{128*T + 32*q}")
        a(f"ds_read_b32 v{pE}, v{vLe} offset:{128*T}")
    def dma_tile(gslot, eslot):
        for q in range(4):
            a(f"s_add_u32 m0, s40, {L_GR + gslot*4096 + q*1024}")
            a("s_nop 0")
            a(f"buffer_load_dwordx4 v[{pG+2*q}:{pG+2*q+1}], s[24:27], 0 idxen offen {opt('gflag', '')} lds")
        a(f"s_add_u32 m0, s41, {eslot*1024}")
        a("s_mov_b64 exec, 0xffff")
        a(f"buffer_load_dwordx4 v[{pE}:{pE+1}], s[16:19], 0 idxen offen {opt('eflag', '')} lds")
        a("s_mov_b64 exec, -1")
    def frag_reads(gs, es):
        a(f"ds_read_b128 v[{vFX}:{vFX+3}], v{vG} offset:{L_GR + gs*4096}")
        a(f"ds_read_b128 v[{vFX+4}:{vFX+7}], v{vG+1} offset:{L_GR + gs*4096}")
        a(f"ds_read_b128 v[{vAE}:{vAE+3}], v{vEA} offset:{es*1024}")
        a(f"ds_read_b128 v[{vAO}:{vAO+3}], v{vO0} offset:{es*1024}")
        a(f"ds_read_b128 v[{vFH}:{vFH+3}], v{vG+2} offset:{L_GR + gs*4096}")
        a(f"ds_read_b128 v[{vFH+4}:{vFH+7}], v{vG+3} offset:{L_GR + gs*4096}")
    idx_reads(0)
    a(f"v_subrev_u32 v{t0}, 64, v{vLq}")
    a(f"ds_read_u8 v{vQ}, v{t0}")
    a(f"ds_read_u8 v{vOHa}, v{t0} offset:32")
    a("s_waitcnt lgkmcnt(2)")
    dma_tile(0, 0)
    idx_reads(1)
    a("s_waitcnt lgkmcnt(5)")
    a(f"v_lshl_add_u32 v{vQ}, v{vQ}, 1, v{vK+1}")
    a(f"v_lshl_add_u32 v{vOHa}, v{vOHa}, 1, v{vK+2}")
    a("s_mov_b64 exec, 0xff")
    a(f"ds_write_b16 v{vQ}, v{vOHd}")
    a(f"ds_write_b16 v{vOHa}, v{vOHd}")
    a("s_mov_b64 exec, -1")
    a("s_waitcnt vmcnt(0) lgkmcnt(0)")
    a("s_barrier")
    dma_tile(1, 1)
    idx_reads(2)
    frag_reads(0, 0)
    a("s_cmp_lg_u32 s36, 0")
    a("s_cbranch_scc1 M_noxa")
    a(f"v_lshrrev_b32 v{t0}, 2, v{vLANE}\nv_and_b32 v{t0}, 3, v{t0}")
    a(f"v_lshl_add_u32 v{t0}, v{vH}, 2, v{t0}")
    a(f"v_lshlrev_b32 v{t0}, 8, v{t0}")
    a(f"v_lshrrev_b32 v{t1}, 4, v{vLANE}\nv_and_b32 v{t1}, 1, v{t1}")
    a(f"v_lshl_add_u32 v{t0}, v{t1}, 5, v{t0}")
    a(f"v_and_b32 v{t1}, 3, v{vLANE}")
    a(f"v_lshl_add_u32 v{t0}, v{t1}, 3, v{t0}")
    a("s_lshl_b32 s38, s32, 6")
    a(f"v_add_u32 v{t0}, s38, v{t0}")
    a(f"ds_read_b64_tr_b16 v[{vXA}:{vXA+1}], v{t0} offset:{L_XA}")
    a(f"ds_read_b64_tr_b16 v[{vXA+2}:{vXA+3}], v{t0} offset:{L_XA + 2048}")
    a("M_noxa:")
    a("s_waitcnt lgkmcnt(0)")
    SPREAD = opt("spread", "1") != "0"
    LATE = [0, 1] if SPREAD else [0, 1, 2, 3, 4]
    EARLY = [p for p in range(5) if p not in LATE]
    def dma_part(p, gslot, eslot, filler=None):
        if p < 4:
            a(f"s_add_u32 m0, s40, {L_GR + gslot*4096 + p*1024}")
            a(filler if filler else "s_nop 0")
            a(f"buffer_load_dwordx4 v[{pG+2*p}:{pG+2*p+1}], s[24:27], 0 idxen offen {opt('gflag', '')} lds")
        else:
            a(f"s_add_u32 m0, s41, {eslot*1024}")
            a("s_mov_b64 exec, 0xffff")
            a(f"buffer_load_dwordx4 v[{pE}:{pE+1}], s[16:19], 0 idxen offen {opt('eflag', '')} lds")
            a("s_mov_b64 exec, -1")
            if filler: a(filler)
    for p in LATE: dma_part(p, 0, 2)
    stamp()
    if dbg: a("s_memrealtime s[72:73]\ns_waitcnt lgkmcnt(0)")
    a("s_add_u32 s37, s37, 31")
    a("s_lshr_b32 s37, s37, 5")
    def chain(z, h):
        return [mf(z, vFX, vI, None), mf(z, vFX + 4, vI + 4, z), mf(z, vAE, vC, z), mf(z, vAO, vXA, z),
                mf(h, vFH, vI, None), mf(h, vFH + 4, vI + 4, h)]
    nlab = [0]
    def prio(p):
        if PRIO == "pair": a(f"s_setprio {p}")
        if PRIO == "pairbal":
            nlab[0] += 1
            a(f"s_setprio {p}")
            a(f"s_cbranch_vccz M_pr{nlab[0]}")
            a(f"s_setprio {p + 2}")
            a(f"M_pr{nlab[0]}:")
    a("M_loop:")
    loop_start = len(a.l)
    for k in range(6):
        es = k % 3; es1 = (k + 1) % 3; gs1 = (k + 1) % 2
        gs2 = k % 2; es2 = (k + 2) % 3
        z, h = vZ, vHV
        a.c(f"---- position {k}: e/one-hot slot {es} ----")
        if PRIO == "bal" and k % 2 == 0:
            a(f"s_cmp_ge_u32 s37, 9\ns_cbranch_scc1 M_prio_done{k}\ns_setprio 2\ns_cmp_ge_u32 s37, 5\ns_cbranch_scc1 M_prio_done{k}\ns_setprio 1\ns_cmp_ge_u32 s37, 2\ns_cbranch_scc1 M_prio_done{k}\ns_setprio 0\nM_prio_done{k}:")
        if PRIO == "pairbal":
            a(f"s_cmp_gt_u32 s37, {opt('X', '4')}")
            a("s_cselect_b64 vcc, -1, 0")
        early = list(EARLY)
        if early: dma_part(early.pop(0), gs2, es2)
        a("s_waitcnt lgkmcnt(0)")
        for s_ in range(2):
            a(f"ds_read_b64_tr_b16 v[{vSO+4*s_}:{vSO+4*s_+1}], v{vT0} offset:{es*1024 + s_*512}")
            a(f"ds_read_b64_tr_b16 v[{vSO+4*s_+2}:{vSO+4*s_+3}], v{vT0} offset:{es*1024 + s_*512 + 256}")
        ch = chain(z, h)
        for x in ch[0:4]: a(x)
        if early: dma_part(early.pop(0), gs2, es2)
        for x in ch[4:6]: a(x)
        while early: dma_part(early.pop(0), gs2, es2)
        a("s_waitcnt vmcnt(5) lgkmcnt(0)")
        a("s_barrier")
        frag_reads(gs1, es1)
        T3 = k + 3
        for q in range(4):
            a(f"ds_read_b32 v{pG+2*q}, v{vLs} offset:{128*T3 + 32*q}")
        a(f"ds_read_b32 v{pE}, v{vLe} offset:{128*T3}")
        a(f"ds_read_u8 v{vQ}, v{vLq} offset:{32*k}")
        if k == 1:
            a("s_cmp_eq_u32 s53, 0")
            a("s_cbranch_scc1 M_xu_done")
            xu_load()
            a("s_mov_b32 s53, 0")
            a("M_xu_done:")
        ex = [f"v_exp_f32 v{z+r}, v{z+r}" for r in range(16)]
        ad = [f"v_add_f32 v{z+r}, 1.0, v{z+r}" for r in range(16)]
        rc = [f"v_rcp_f32 v{z+r}, v{z+r}" for r in range(16)]
        mu = [f"v_mul_f32 v{z+r}, v{z+r}, v{h+r}" for r in range(16)]
        cv = [f"v_cvt_pk_bf16_f32 v{vMSG+r}, v{z+2*r}, v{z+2*r+1}" for r in range(8)]
        for x in ex: a(x)
        prio(0)
        for x in ad: a(x)
        prio(1)
        a("s_waitcnt lgkmcnt(0)")
        late = list(LATE)
        pos = {5: [0, 3, 6, 9, 12], 2: [1, 9]}[len(late)]
        r0 = 0
        for p, at in zip(late, pos):
            for x in rc[r0:at]: a(x)
            dma_part(p, gs1, es, rc[at])
            r0 = at + 1
        for x in rc[r0:16]: a(x)
        a(f"v_lshl_add_u32 v{vOHa}, v{vQ}, 1, v{vK+es}")
        a("s_mov_b64 exec, 0xffff")
        a(f"ds_write_b16 v{vOHa}, v{vOHd}")
        a("s_mov_b64 exec, -1")
        prio(0)
        for x in mu: a(x)
        prio(1)
        for x in cv: a(x)
        a("s_sub_u32 s37, s37, 1")
        a(mf(vACC, vSO, vMSG, vACC))
        a(mf(vACC, vSO + 4, vMSG + 4, vACC))
        a("s_cmp_eq_u32 s37, 0")
        a("s_cbranch_scc1 M_loop_done")
    a(f"v_add_u32 v{vLs}, {128*6}, v{vLs}")
    a(f"v_add_u32 v{vLe}, {128*6}, v{vLe}")
    a(f"v_add_u32 v{vLq}, {32*6}, v{vLq}")
    a("s_branch M_loop")
    abl = [x[6:] for x in ARGS if x.startswith("--abl_")]
    if abl:
        body = a.l[loop_start:]
        def drop(l):
            t = l.strip()
            if "dma" in abl and t.startswith("buffer_load") and " lds" in t: return True
            if "valu" in abl and t.startswith(("v_exp", "v_add_f32", "v_rcp", "v_mul_f32", "v_cvt_pk")): return True
            if "mfma" in abl and t.startswith("v_mfma"): return True
            if "bar" in abl and t.startswith("s_barrier"): return True
            if "frag" in abl and t.startswith("ds_read_b128"): return True
            if "tr" in abl and t.startswith("ds_read_b64_tr"): return True
            if "idx" in abl and t.startswith(("ds_read_b32", "ds_read_u8")): return True
            if "oh" in abl and t.startswith("ds_write_b16"): return True
            if "dmae" in abl and t.startswith("buffer_load") and "s[16:19]" in t: return True
            if "dmag" in abl and t.startswith("buffer_load") and "s[24:27]" in t: return True
            return False
        body = [l for l in body if not drop(l)]
        if "vmw" in abl: body = [l.replace("vmcnt(5) ", "") for l in body]
        a.l[loop_start:] = body
    a("M_loop_done:")
    stamp()
    if dbg: a("s_memrealtime s[74:75]\ns_waitcnt lgkmcnt(0)")
    a("s_cmp_eq_u32 s53, 0")
    a("s_cbranch_scc1 M_xu_done2")
    xu_load()
    a("s_mov_b32 s53, 0")
    a("M_xu_done2:")
    a("s_waitcnt vmcnt(0) lgkmcnt(0)")
    a("s_barrier")
    a(f"s_add_u32 s36, s36, {CAP}")
    a("s_cmp_lt_u32 s36, s35")
    a("s_cbranch_scc1 M_batch")
    a("s_branch M_epilogue")
    a("M_empty:")
    xu_load()
    a("s_waitcnt vmcnt(0)")
    a("M_epilogue:")
    a(f"v_mul_u32_u24 v{t0}, {8*AGG_STRIDE}, v{vH}")
    a(f"v_lshl_add_u32 v{t0}, v{vE5}, 2, v{t0}")
    a("s_lshl_b32 s39, s32, 7")
    a(f"v_add_u32 v{t0}, s39, v{t0}")
    a("s_nop 7")
    for r in range(8):
        a(f"ds_write_b32 v{t0}, v{vACC+r} offset:{L_GR + r*AGG_STRIDE}")
    a(f"v_lshrrev_b32 v{t0}, 4, v0")
    a(f"v_and_b32 v{t1}, 15, v0")
    a(f"v_mul_u32_u24 v{t2}, {AGG_STRIDE}, v{t0}")
    a(f"v_lshl_add_u32 v{t2}, v{t1}, 5, v{t2}")
    a(f"v_add_u32 v{t3}, s33, v{t0}")
    a(f"v_lshlrev_b32 v{t3}, 8, v{t3}")
    a(f"v_lshl_add_u32 v{t3}, v{t1}, 4, v{t3}")
    a(f"s_mov_b32 s38, {NEG_LOG2E:#x}")
    a("s_waitcnt lgkmcnt(0)")
    a("s_barrier")
    y = vZ; w_ = vHV
    a(f"ds_read_b128 v[{y}:{y+3}], v{t2} offset:{L_GR}")
    a(f"ds_read_b128 v[{y+4}:{y+7}], v{t2} offset:{L_GR + 16}")
    for i in range(4):
        a(f"v_lshlrev_b32 v{w_+2*i}, 16, v{vXU+i}")
        a(f"v_and_b32 v{w_+2*i+1}, 0xffff0000, v{vXU+i}")
    a("s_waitcnt lgkmcnt(0)")
    for r in range(8): a(f"v_add_f32 v{y+r}, v{y+r}, v{w_+r}")
    for r in range(8): a(f"v_mul_f32 v{w_+r}, s38, v{y+r}")
    for r in range(8): a(f"v_exp_f32 v{w_+r}, v{w_+r}")
    for r in range(8): a(f"v_add_f32 v{w_+r}, 1.0, v{w_+r}")
    for r in range(8): a(f"v_rcp_f32 v{w_+r}, v{w_+r}")
    a("s_nop 0")
    for r in range(8): a(f"v_mul_f32 v{y+r}, v{y+r}, v{w_+r}")
    for r in range(4): a(f"v_cvt_pk_bf16_f32 v{vMSG+r}, v{y+2*r}, v{y+2*r+1}")
    if dbg:
        stamp()
        a("s_memrealtime s[62:63]\ns_waitcnt lgkmcnt(0)")
        a("s_mov_b32 s52, s10\ns_and_b32 s53, s11, 0xffff\ns_mov_b32 s54, 0x1000000\ns_mov_b32 s55, 0x20000")
        a(f"s_lshl_b32 s56, s2, 2\ns_add_u32 s56, s56, s32\ns_lshl_b32 s56, s56, 6\ns_add_u32 s56, s56, {DBG2:#x}")
        vals = [64, 65, 66, 67, 68, 69, 70, 71, 60, 62, 35, 72, 74]
        a("s_mov_b64 s[50:51], exec\ns_mov_b64 exec, 1")
        for i, r in enumerate(vals):
            a(f"v_mov_b32 v{vT+20}, s{r}")
            a(f"v_mov_b32 v{vT+21}, 0")
            a(f"buffer_store_dword v{vT+20}, v{vT+21}, s[52:55], s56 offen offset:{4*i}")
        a("s_mov_b64 exec, s[50:51]")
    a(f"v_cmp_gt_u32 vcc, s34, v{t0}")
    a("s_mov_b64 exec, vcc")
    a("s_cbranch_execz M_end")
    a(f"buffer_store_dwordx4 v[{vMSG}:{vMSG+3}], v{t3}, s[28:31], 0 offen")
    a("M_end:")
    a("s_endpgm")
    return a.text() + descriptor(KNAME, NVGPR, 96 if dbg else 56)

HEAD = f"""; Edge-gated message passing (gated graph conv) for gfx950.
;                 [-log2e * x@B | x@V], -log2e * x@A, x@U; C fragments in MFMA layout
;   main kernel : per bucket of 13/14 destination nodes: gather node-table rows and e_attr rows into LDS,
;                 gate pre-activation on the matrix cores, sigmoid gate, one-hot segment sum, silu
; @launch kernel=prep_kernel grid=({P_GRID},1,1) block=({P_BLOCK},1,1) lds={P_LDS}
; @launch kernel={KNAME} grid=({NB},1,1) block=(256,1,1) lds={M_LDS}
.amdgcn_target "amdgcn-amd-amdhsa--gfx950"
.text
"""

def build(dbg=False):
    return HEAD + prep_kernel(dbg) + main_kernel(dbg)

if __name__ == "__main__":
    args = [x for x in ARGS if not x.startswith("--")]
    out = args[0] if args else "gather_scatter__edge_featured_mpnn_egc__graph.s"
    open(out, "w").write(build(dbg=flag("dbg")))
    print("wrote", out, "M_LDS", M_LDS, "P_LDS", P_LDS)
```

```python
import sys

N = 10000; E = 320000
NB = 768
NCH = 64; CH = 5000
MAGIC_G = 214749
WS_T = 0
WS_W = 0x60000
WS_REC = 0x80000
MAGIC_R = 6554
WS_SZ = 0x200000
WS_TAB = 0x200000
WS_XA = 0x700000
WS_XU = 0x980000
DBG2, DBG1 = 0xC00000, 0xE00000
NEG_LOG2E = 0xBFB8AA3B
KNAME = "gather_scatter__edge_featured_mpnn_egc__graph_kernel"
ARGS = sys.argv[1:]
def flag(n): return ("--" + n) in ARGS
def opt(n, d):
    for x in ARGS:
        if x.startswith("--" + n + "="): return x.split("=", 1)[1]
    return d

S0 = int(opt('s0', '16')); S1 = int(opt('s1', '13'))
assert S0 <= 16 and S1 <= 16 and 40 - S0 - S1 <= 16

class A:
    def __init__(self):
        self.l = []
    def __call__(self, s=""):
        for x in s.split("\n"):
            x = x.strip()
            if not x: continue
            if x.endswith(":"):
                self.l.append(x)
            else:
                self.l.append("    " + x)
    def c(self, s):
        self.l.append("    ; " + s)
    def raw(self, s):
        self.l.append(s)
    def text(self):
        return "\n".join(self.l) + "\n"

def srd(a, r, lo, hi, size, stride=0, add=0):
    if add:
        a(f"s_add_u32 s{r}, s{lo}, {add:#x}")
        a(f"s_addc_u32 s{r+1}, s{hi}, 0")
        a(f"s_and_b32 s{r+1}, s{r+1}, 0xffff")
    else:
        a(f"s_mov_b32 s{r}, s{lo}")
        a(f"s_and_b32 s{r+1}, s{hi}, 0xffff")
    if stride:
        a(f"s_or_b32 s{r+1}, s{r+1}, {stride << 16:#x}")
    a(f"s_mov_b32 s{r+2}, {size:#x}")
    a(f"s_mov_b32 s{r+3}, 0x20000")

def wave_scan(a, v):
    for sh in (1, 2, 4, 8):
        a("s_nop 1")
        a(f"v_add_u32_dpp v{v}, v{v}, v{v} row_shr:{sh} row_mask:0xf bank_mask:0xf bound_ctrl:1")
    a("s_nop 1")
    a(f"v_add_u32_dpp v{v}, v{v}, v{v} row_bcast:15 row_mask:0xa bank_mask:0xf")
    a("s_nop 1")
    a(f"v_add_u32_dpp v{v}, v{v}, v{v} row_bcast:31 row_mask:0xc bank_mask:0xf")
    a("s_nop 1")

def header(a, name):
    a.raw(f".globl {name}")
    a.raw(".p2align 8")
    a.raw(f".type {name},@function")
    a.raw(f"{name}:")

def descriptor(name, vgpr, sgpr):
    acc = (vgpr + 3) // 4 * 4
    return f""".section .rodata,"a"
.p2align 6
.amdhsa_kernel {name}
  .amdhsa_next_free_vgpr {vgpr}
  .amdhsa_next_free_sgpr {sgpr}
  .amdhsa_accum_offset {acc}
  .amdhsa_group_segment_fixed_size 0
  .amdhsa_kernarg_size 80
  .amdhsa_user_sgpr_count 2
  .amdhsa_user_sgpr_kernarg_segment_ptr 1
  .amdhsa_system_sgpr_workgroup_id_x 1
  .amdhsa_float_denorm_mode_32 3
.end_amdhsa_kernel
.text
"""

def mf(d, x, y, c):
    cs = "0" if c is None else f"v[{c}:{c+15}]"
    return f"v_mfma_f32_32x32x16_bf16 v[{d}:{d+15}], v[{x}:{x+3}], v[{y}:{y+3}], {cs}"

XGRP = 1088
XSLOT = 8 * XGRP

def xfrag_addr(a, d0, d1, row, h, t0, t1, t2):
    a(f"v_lshrrev_b32 v{t0}, 2, v{row}")
    a(f"v_mul_u32_u24 v{t0}, {XGRP}, v{t0}")
    a(f"v_and_b32 v{t1}, 3, v{row}")
    a(f"v_lshl_add_u32 v{t0}, v{t1}, 8, v{t0}")
    a(f"v_xor_b32 v{t2}, v{h}, v{t1}")
    a(f"v_lshl_add_u32 v{d0}, v{t2}, 4, v{t0}")
    a(f"v_xor_b32 v{t2}, 2, v{t2}")
    a(f"v_lshl_add_u32 v{d1}, v{t2}, 4, v{t0}")

P_BLOCK = 640
P_NG = 79
P_GRID = NCH + 2 * P_NG + 1
P_HIST, P_START, P_TOT, P_SORT = 0, 12288, 24576, 24640
G_W0, G_W1, G_X = 0, 32768, 65536
G_ST = G_X + 4 * XSLOT
P_LDS = G_ST + 8 * 4096

def prep_kernel(dbg=False):
    SF = opt("sflag", "").replace("_", " ")
    a = A()
    nst = [0]
    def stamp():
        if not dbg: return
        a("s_waitcnt lgkmcnt(0)\ns_memtime s[40:41]\ns_waitcnt lgkmcnt(0)")
        a(f"s_mov_b32 s{50+nst[0]}, s40")
        nst[0] += 1
    def dump(role):
        if not dbg: return
        while nst[0] < 8: stamp()
        a("s_memrealtime s[46:47]\ns_load_dwordx2 s[42:43], s[0:1], 72\ns_waitcnt lgkmcnt(0)")
        a("s_mov_b32 s60, s42\ns_and_b32 s61, s43, 0xffff\ns_mov_b32 s62, 0x1000000\ns_mov_b32 s63, 0x20000")
        a("v_lshrrev_b32 v158, 6, v0\ns_nop 0\nv_readfirstlane_b32 s48, v158\ns_nop 3")
        a(f"s_lshl_b32 s49, s2, 4\ns_add_u32 s49, s49, s48\ns_lshl_b32 s49, s49, 6\ns_add_u32 s49, s49, {DBG1:#x}")
        a("s_mov_b64 exec, 1")
        for i, r in enumerate([50,51,52,53,54,55,56,57,44,46]):
            a(f"v_mov_b32 v158, s{r}\nv_mov_b32 v159, 0\nbuffer_store_dword v158, v159, s[60:63], s49 offen offset:{4*i}")
        a(f"v_mov_b32 v158, {role}\nv_mov_b32 v159, 0\nbuffer_store_dword v158, v159, s[60:63], s49 offen offset:40")
        nst[0] = 0
    header(a, "prep_kernel")
    if dbg:
        a("s_memrealtime s[44:45]")
        stamp()
    a(f"s_cmp_ge_u32 s2, {P_GRID}")
    a("s_cbranch_scc1 P_end")
    a(f"s_cmp_ge_u32 s2, {NCH + 2*P_NG}")
    a("s_cbranch_scc1 P_weights")
    a(f"s_cmp_ge_u32 s2, {NCH}")
    a("s_cbranch_scc1 P_gemm")
    a("s_load_dwordx4 s[4:7], s[0:1], 16")
    a("s_load_dwordx2 s[8:9], s[0:1], 72")
    a("v_lshlrev_b32 v2, 4, v0")
    a("v_mov_b32 v4, 0\nv_mov_b32 v5, 0\nv_mov_b32 v6, 0\nv_mov_b32 v7, 0")
    a("ds_write_b128 v2, v[4:7]")
    a("ds_write_b128 v2, v[4:7] offset:10240")
    a("v_lshlrev_b32 v1, 4, v0")
    a(f"s_mul_i32 s3, s2, {CH*4}")
    a(f"s_mov_b32 s20, {MAGIC_G}")
    a("s_movk_i32 s21, 625")
    a(f"s_movk_i32 s28, {-S0}")
    a(f"s_movk_i32 s31, {-S1}")
    a("v_lshrrev_b32 v2, 6, v0")
    a("v_mov_b32 v3, 1")
    a("v_readfirstlane_b32 s22, v2")
    a("s_waitcnt lgkmcnt(0)")
    srd(a, 16, 6, 7, E * 4)
    a(f"v_cmp_gt_u32 vcc, {CH//8}, v0")
    a("s_mov_b64 exec, vcc")
    a(f"s_add_u32 s33, s3, {CH*2}")
    a("buffer_load_dwordx4 v[8:11], v1, s[16:19], s3 offen")
    a("buffer_load_dwordx4 v[12:15], v1, s[16:19], s33 offen")
    srd(a, 12, 4, 5, E * 4)
    a("buffer_load_dwordx4 v[16:19], v1, s[12:15], s3 offen")
    a("buffer_load_dwordx4 v[20:23], v1, s[12:15], s33 offen")
    srd(a, 24, 8, 9, WS_SZ)
    a("v_lshlrev_b32 v64, 2, v0")
    a("s_barrier")
    stamp()
    a("s_waitcnt vmcnt(2)")
    vD, vS, vBk, vAd, vRk, vRec, vT = 8, 16, 24, 32, 40, 48, 56
    for i in range(8): a(f"v_mul_u32_u24 v{vBk+i}, s20, v{vD+i}")
    for i in range(8): a(f"v_lshrrev_b32 v{vBk+i}, 23, v{vBk+i}")
    for i in range(8): a(f"v_mad_u32_u24 v{vRec+i}, v{vBk+i}, s21, 15")
    for i in range(8): a(f"v_lshrrev_b32 v{vRec+i}, 4, v{vRec+i}")
    for i in range(8): a(f"v_sub_u32 v{vRec+i}, v{vD+i}, v{vRec+i}")
    for i in range(8): a(f"v_add_u32 v{vT+i}, {64 - S0}, v{vRec+i}")
    for i in range(8): a(f"v_add_u32 v{vAd+i}, {64 - S0 - S1}, v{vRec+i}")
    for i in range(8): a(f"v_lshrrev_b32 v{vT+i}, 6, v{vT+i}")
    for i in range(8): a(f"v_lshrrev_b32 v{vAd+i}, 6, v{vAd+i}")
    for i in range(8): a(f"v_mad_i32_i24 v{vRec+i}, v{vT+i}, s28, v{vRec+i}")
    for i in range(8): a(f"v_mad_i32_i24 v{vRec+i}, v{vAd+i}, s31, v{vRec+i}")
    for i in range(8): a(f"v_add_u32 v{vT+i}, v{vT+i}, v{vAd+i}")
    for i in range(8): a(f"v_lshl_add_u32 v{vBk+i}, v{vT+i}, 8, v{vBk+i}")
    for i in range(8): a(f"v_lshrrev_b32 v{vT+i}, 1, v{vRec+i}")
    for i in range(8): a(f"v_xor_b32 v{vT+i}, v{vT+i}, v{vRec+i}")
    for i in range(8): a(f"v_and_b32 v{vT+i}, 4, v{vT+i}")
    for i in range(8): a(f"v_mul_u32_u24 v{vT+i}, 3, v{vT+i}")
    for i in range(8): a(f"v_xor_b32 v{vRec+i}, v{vRec+i}, v{vT+i}")
    a("s_waitcnt vmcnt(0)")
    stamp()
    a(f"s_movk_i32 s29, {6554}")
    for i in range(8): a(f"v_mul_u32_u24 v{vT+i}, s29, v{vS+i}")
    for i in range(8): a(f"v_lshrrev_b32 v{vT+i}, 24, v{vT+i}")
    for i in range(8): a(f"v_lshl_add_u32 v{vAd+i}, v{vBk+i}, 2, v{vT+i}")
    for i in range(8): a(f"v_lshlrev_b32 v{vAd+i}, 2, v{vAd+i}")
    for i in range(8): a(f"ds_add_rtn_u32 v{vRk+i}, v{vAd+i}, v3")
    for i in range(8): a(f"v_lshl_or_b32 v{vRec+i}, v{vRec+i}, 14, v{vS+i}")
    for i in range(8): a(f"v_add_u32 v{vT+i}, {(i & 3) + (CH // 2) * (i >> 2)}, v64")
    for i in range(8): a(f"v_lshl_or_b32 v{vRec+i}, v{vT+i}, 19, v{vRec+i}")
    a("s_waitcnt lgkmcnt(0)")
    stamp()
    a("s_barrier")
    c0, p0 = 68, 76
    a("s_cmp_ge_u32 s22, 6")
    a("s_cbranch_scc1 P_scan1_done")
    a("v_lshlrev_b32 v2, 5, v0")
    a(f"ds_read_b128 v[{c0}:{c0+3}], v2 offset:{P_HIST}")
    a(f"ds_read_b128 v[{c0+4}:{c0+7}], v2 offset:{P_HIST+16}")
    a("s_waitcnt lgkmcnt(0)")
    a(f"v_mov_b32 v{p0}, 0")
    a(f"v_mov_b32 v{p0+1}, v{c0}")
    for k in range(2, 8): a(f"v_add_u32 v{p0+k}, v{p0+k-1}, v{c0+k-1}")
    a(f"v_add_u32 v84, v{p0+7}, v{c0+7}")
    a("v_mov_b32 v85, v84")
    wave_scan(a, 85)
    a("v_readlane_b32 s23, v85, 63")
    a("v_sub_u32 v85, v85, v84")
    a("s_lshl_b32 s30, s22, 2")
    a("v_mov_b32 v87, s30")
    a("v_mov_b32 v86, s23")
    a(f"ds_write_b32 v87, v86 offset:{P_TOT}")
    a("s_waitcnt lgkmcnt(0)")
    a("P_scan1_done:")
    a("s_barrier")
    a("s_cmp_ge_u32 s22, 6")
    a("s_cbranch_scc1 P_noscan")
    a("v_mov_b32 v87, 0")
    a(f"ds_read_b128 v[88:91], v87 offset:{P_TOT}")
    a(f"ds_read_b64 v[92:93], v87 offset:{P_TOT+16}")
    a("s_waitcnt lgkmcnt(0)")
    a("s_mov_b32 s30, 0")
    for k in range(5):
        a(f"v_readfirstlane_b32 s23, v{88+k}")
        a(f"s_cmp_gt_u32 s22, {k}")
        a("s_nop 1")
        a("s_cselect_b32 s23, s23, 0")
        a("s_add_u32 s30, s30, s23")
    a("v_add_u32 v85, s30, v85")
    for k in range(8): a(f"v_add_u32 v{p0+k}, v{p0+k}, v85")
    a(f"ds_write_b128 v2, v[{p0}:{p0+3}] offset:{P_START}")
    a(f"ds_write_b128 v2, v[{p0+4}:{p0+7}] offset:{P_START+16}")
    for b in range(2):
        cc = c0 + 4*b; pp = p0 + 4*b; o = 88 + 2*b
        a(f"v_add3_u32 v86, v{cc}, v{cc+1}, v{cc+2}")
        a(f"v_add_u32 v86, v86, v{cc+3}")
        a(f"v_lshl_or_b32 v{o}, v86, 16, v{pp}")
        for k in range(3): a(f"v_min_u32 v{cc+k}, 0xff, v{cc+k}")
        a(f"v_lshl_or_b32 v{o+1}, v{cc+1}, 8, v{cc}")
        a(f"v_lshl_or_b32 v{o+1}, v{cc+2}, 16, v{o+1}")
    a(f"s_mul_i32 s23, s2, {NB*8}")
    a("v_lshlrev_b32 v86, 4, v0")
    a(f"buffer_store_dwordx4 v[88:91], v86, s[24:27], s23 offen offset:{WS_T} {SF}")
    a("s_waitcnt lgkmcnt(0)")
    a("P_noscan:")
    a("s_barrier")
    stamp()
    for i in range(8): a(f"ds_read_b32 v{vT+i}, v{vAd+i} offset:{P_START}")
    a("s_waitcnt lgkmcnt(0)")
    for i in range(8): a(f"v_add_lshl_u32 v{vT+i}, v{vT+i}, v{vRk+i}, 2")
    for i in range(8): a(f"ds_write_b32 v{vT+i}, v{vRec+i} offset:{P_SORT}")
    a("s_waitcnt lgkmcnt(0)")
    a("s_barrier")
    a(f"ds_read_b128 v[4:7], v1 offset:{P_SORT}")
    a(f"ds_read_b128 v[8:11], v1 offset:{P_SORT + CH*2}")
    a(f"s_add_u32 s3, s3, {WS_REC}")
    a(f"s_add_u32 s33, s3, {CH*2}")
    a("s_waitcnt lgkmcnt(1)")
    a(f"buffer_store_dwordx4 v[4:7], v1, s[24:27], s3 offen {SF}")
    a("s_waitcnt lgkmcnt(0)")
    a(f"buffer_store_dwordx4 v[8:11], v1, s[24:27], s33 offen {SF}")
    stamp()
    if dbg: a("s_waitcnt vmcnt(0)")
    dump(1)
    a("s_endpgm")
    a("P_gemm:")
    nst[0] = 1
    a("s_load_dwordx2 s[4:5], s[0:1], 0")
    a("s_load_dwordx4 s[8:11], s[0:1], 32")
    a("s_load_dwordx2 s[34:35], s[0:1], 48")
    a("s_load_dwordx2 s[6:7], s[0:1], 72")
    a("v_lshrrev_b32 v2, 6, v0")
    a("v_and_b32 v1, 63, v0")
    a("v_readfirstlane_b32 s22, v2")
    a(f"s_sub_u32 s3, s2, {NCH}")
    a(f"s_cmp_ge_u32 s3, {P_NG}")
    a("s_cselect_b32 s36, 1, 0")
    a(f"s_cselect_b32 s37, {P_NG}, 0")
    a("s_sub_u32 s3, s3, s37")
    a("s_cmp_ge_u32 s22, 8")
    a("s_cbranch_scc1 P_pf" if (flag("epf") or flag("cpf")) else "s_cbranch_scc1 P_end")
    a("s_lshr_b32 s23, s22, 2")
    a("s_and_b32 s28, s22, 3")
    a("s_lshl_b32 s3, s3, 2")
    a("s_add_u32 s3, s3, s23")
    a("s_lshl_b32 s29, s3, 5")
    a("v_lshrrev_b32 v3, 4, v1")
    a("v_and_b32 v4, 15, v1")
    a("v_lshlrev_b32 v5, 2, v3")
    a("v_xor_b32 v5, v5, v4")
    a("v_lshlrev_b32 v5, 4, v5")
    a("v_lshl_add_u32 v5, v3, 8, v5")
    a("v_xor_b32 v4, v4, v3")
    a("v_lshlrev_b32 v7, 4, v4")
    a("v_mov_b32 v9, v7")
    a("s_waitcnt lgkmcnt(0)")
    a("s_cmp_eq_u32 s36, 0")
    a("s_cselect_b32 s30, 32768, 0")
    a("s_cselect_b32 s38, s10, s8\ns_cselect_b32 s39, s11, s9")
    a("s_add_u32 s16, s34, s30\ns_addc_u32 s17, s35, 0")
    a("s_cmp_eq_u32 s23, 1")
    a("s_cselect_b32 s16, s38, s16\ns_cselect_b32 s17, s39, s17")
    a("s_and_b32 s17, s17, 0xffff")
    a("s_mov_b32 s18, 32768\ns_mov_b32 s19, 0x20000")
    srd(a, 12, 4, 5, N, stride=256)
    a("s_lshl_b32 s30, s28, 3")
    a("s_add_u32 s30, s30, s29")
    a(f"s_mul_i32 s31, s23, {XSLOT}")
    a(f"s_mul_i32 s33, s28, {2*XGRP}")
    a("s_add_u32 s31, s31, s33")
    for ps in range(2):
        a("v_add_u32 v6, s30, v3")
        a("v_add_u32 v8, 4, v6")
        a(f"s_add_u32 m0, s31, {G_X + ps*2*XSLOT}")
        a("s_add_u32 s30, s30, 64")
        a("buffer_load_dwordx4 v[6:7], s[12:15], 0 idxen offen lds")
        a(f"s_add_u32 m0, s31, {G_X + ps*2*XSLOT + XGRP}")
        a("s_nop 0")
        a("buffer_load_dwordx4 v[8:9], s[12:15], 0 idxen offen lds")
    a("s_lshl_b32 s30, s28, 13")
    a("s_lshl_b32 s31, s23, 15")
    a("s_add_u32 s31, s31, s30")
    for half in range(2):
        a(f"s_add_u32 m0, s31, {half*4096}")
        a(f"s_add_u32 s33, s30, {half*4096}")
        for ii in range(4):
            a(f"buffer_load_dwordx4 v5, s[16:19], s33 offen offset:{ii*1024} lds")
    vE5, vH, vX0, vX1, vWt = 10, 11, 12, 13, 14
    a(f"v_and_b32 v{vE5}, 31, v1")
    a(f"v_lshrrev_b32 v{vH}, 5, v1")
    xfrag_addr(a, vX0, vX1, vE5, vH, 15, 16, 17)
    a(f"s_mul_i32 s30, s23, {XSLOT}")
    a(f"s_add_u32 s30, s30, {G_X}")
    a(f"v_add_u32 v{vX0}, s30, v{vX0}")
    a(f"v_add_u32 v{vX1}, s30, v{vX1}")
    a("v_lshrrev_b32 v15, 2, v1\nv_and_b32 v15, 3, v15")
    a("s_lshl_b32 s30, s28, 2")
    a("v_lshlrev_b32 v16, 2, v15")
    a("v_xor_b32 v16, s30, v16")
    a("v_lshrrev_b32 v17, 4, v1\nv_and_b32 v17, 1, v17")
    a("v_lshl_add_u32 v16, v17, 1, v16")
    a("v_lshrrev_b32 v17, 1, v1\nv_and_b32 v17, 1, v17")
    a("v_add_u32 v16, v16, v17")
    a("v_lshlrev_b32 v16, 4, v16")
    a("v_and_b32 v17, 1, v1")
    a("v_lshl_add_u32 v16, v17, 3, v16")
    a(f"v_lshl_add_u32 v15, v{vH}, 3, v15")
    a(f"v_lshl_add_u32 v{vWt}, v15, 8, v16")
    srd(a, 24, 6, 7, N * 512, add=WS_TAB)
    a("s_cmp_eq_u32 s36, 0")
    a("s_cbranch_scc1 P_g_bvsrd")
    srd(a, 24, 6, 7, N * 256, add=WS_XA)
    srd(a, 40 if not dbg else 64, 6, 7, N * 256, add=WS_XU)
    a("P_g_bvsrd:")
    sXU = 40 if not dbg else 64
    f0, f1, fX, d0, d1 = 32, 64, 96, 128, 144
    a("s_lshl_b32 s31, s22, 12")
    a(f"s_add_u32 s31, s31, {G_ST}")
    a(f"v_and_b32 v15, 7, v{vE5}")
    a(f"v_lshlrev_b32 v16, 1, v{vH}")
    a("v_xor_b32 v16, v16, v15")
    a("v_lshlrev_b32 v16, 4, v16")
    a(f"v_lshl_add_u32 v16, v{vE5}, 7, v16")
    a("v_add_u32 v16, s31, v16")
    a("v_lshrrev_b32 v20, 3, v1")
    a("v_and_b32 v21, 7, v1")
    a("v_xor_b32 v22, v21, v20")
    a("v_lshlrev_b32 v22, 4, v22")
    a("v_lshl_add_u32 v22, v20, 7, v22")
    a("v_add_u32 v22, s31, v22")
    a("v_add_u32 v20, s29, v20")
    a("v_lshlrev_b32 v20, 9, v20")
    a("v_lshl_add_u32 v20, v21, 4, v20")
    a("s_lshl_b32 s30, s28, 7")
    a("v_add_u32 v20, s30, v20")
    a(f"v_lshrrev_b32 v23, 2, v{vE5}")
    a("v_and_b32 v23, 3, v23")
    a("v_lshlrev_b32 v23, 4, v23")
    a(f"v_lshl_add_u32 v23, v{vE5}, 6, v23")
    a(f"v_lshl_add_u32 v23, v{vH}, 3, v23")
    a("v_add_u32 v23, s31, v23")
    a("v_lshrrev_b32 v24, 4, v1\nv_and_b32 v24, 3, v24")
    a("v_and_b32 v25, 3, v1")
    a("v_xor_b32 v24, v24, v25")
    a("v_lshlrev_b32 v24, 4, v24")
    a("v_lshrrev_b32 v26, 2, v1")
    a("v_lshl_add_u32 v24, v26, 6, v24")
    a("v_add_u32 v24, s31, v24")
    a("v_add_u32 v26, s29, v26")
    a("v_lshlrev_b32 v26, 8, v26")
    a("v_lshl_add_u32 v26, v25, 4, v26")
    a("s_lshl_b32 s30, s28, 6")
    a("v_add_u32 v26, s30, v26")
    stamp()
    a("s_waitcnt vmcnt(0)")
    stamp()
    a("s_barrier")
    stamp()
    def xreads(ps):
        for s_ in range(8):
            ad = vX0 if s_ % 2 == 0 else vX1
            a(f"ds_read_b128 v[{fX+4*s_}:{fX+4*s_+3}], v{ad} offset:{ps*2*XSLOT + (s_>>1)*64}")
    for s in range(8):
        for part in range(2):
            a(f"ds_read_b64_tr_b16 v[{f0+4*s+2*part}:{f0+4*s+2*part+1}], v{vWt} offset:{G_W0 + (16*s+4*part)*256}")
        if s == 5: a("s_waitcnt lgkmcnt(4)")
    a("s_waitcnt lgkmcnt(4)")
    xreads(0)
    a("s_waitcnt lgkmcnt(4)")
    a(f"s_mov_b32 s30, {NEG_LOG2E:#x}")
    for ps in range(2):
        if ps == 0:
            for s_ in range(8):
                if s_ == 4: a("s_waitcnt lgkmcnt(6)")
                for part in range(2):
                    a(f"ds_read_b64_tr_b16 v[{f1+4*s_+2*part}:{f1+4*s_+2*part+1}], v{vWt} offset:{G_W1 + (16*s_+4*part)*256}")
                if s_ < 4:
                    if s_ == 0: pass
                    a(mf(d0, f0 + 4*s_, fX + 4*s_, None if s_ == 0 else d0))
            a("s_waitcnt lgkmcnt(8)")
            for s_ in range(4, 8): a(mf(d0, f0 + 4*s_, fX + 4*s_, d0))
            a("s_waitcnt lgkmcnt(0)")
        else:
            a("s_waitcnt lgkmcnt(0)")
            for s_ in range(8): a(mf(d0, f0 + 4*s_, fX + 4*s_, None if s_ == 0 else d0))
        for s_ in range(8):
            a(mf(d1, f1 + 4*s_, fX + 4*s_, None if s_ == 0 else d1))
        a("s_nop 3")
        for r in range(16): a(f"v_mul_f32 v{d0+r}, s30, v{d0+r}")
        for r in range(8): a(f"v_cvt_pk_bf16_f32 v{d0+r}, v{d0+2*r}, v{d0+2*r+1}")
        for r in range(8): a(f"v_cvt_pk_bf16_f32 v{d0+8+r}, v{d1+2*r}, v{d1+2*r+1}")
        a("s_cmp_eq_u32 s36, 0")
        a(f"s_cbranch_scc0 P_g_au{ps}")
        a(f"ds_write_b128 v16, v[{d0}:{d0+3}]")
        a("v_xor_b32 v17, 16, v16")
        a(f"ds_write_b128 v17, v[{d0+4}:{d0+7}]")
        a("v_xor_b32 v18, 64, v16")
        a(f"ds_write_b128 v18, v[{d0+8}:{d0+11}]")
        a("v_xor_b32 v19, 64, v17")
        a(f"ds_write_b128 v19, v[{d0+12}:{d0+15}]")
        for i in range(4):
            a(f"ds_read_b128 v[{d1+4*i}:{d1+4*i+3}], v22 offset:{i*1024}")
        if ps == 0:
            a("s_waitcnt lgkmcnt(4)")
            xreads(1)
        a(f"s_mov_b32 s33, {ps*64*512}")
        for i in range(4):
            a(f"s_waitcnt lgkmcnt({3-i + (8 if ps == 0 else 0)})")
            a(f"buffer_store_dwordx4 v[{d1+4*i}:{d1+4*i+3}], v20, s[24:27], s33 offen {SF}")
            if i < 3: a("s_add_u32 s33, s33, 4096")
        a(f"s_branch P_g_done{ps}")
        a(f"P_g_au{ps}:")
        for j in range(4):
            if j: a(f"v_xor_b32 v17, {16*j}, v23")
            ad = 23 if j == 0 else 17
            a(f"ds_write_b64 v{ad}, v[{d0+2*j}:{d0+2*j+1}]")
            a(f"ds_write_b64 v{ad}, v[{d0+8+2*j}:{d0+8+2*j+1}] offset:2048")
        for i in range(4):
            a(f"ds_read_b128 v[{d1+4*i}:{d1+4*i+3}], v24 offset:{i*1024}")
        if ps == 0:
            a("s_waitcnt lgkmcnt(4)")
            xreads(1)
        a(f"s_mov_b32 s33, {ps*64*256}")
        for i in range(4):
            a(f"s_waitcnt lgkmcnt({3-i + (8 if ps == 0 else 0)})")
            sr = 24 if i < 2 else sXU
            a(f"buffer_store_dwordx4 v[{d1+4*i}:{d1+4*i+3}], v26, s[{sr}:{sr+3}], s33 offen offset:0 {SF}")
            if i == 0: a("s_add_u32 s33, s33, 4096")
            if i == 1: a("s_sub_u32 s33, s33, 4096")
            if i == 2: a("s_add_u32 s33, s33, 4096")
        a(f"P_g_done{ps}:")
    stamp()
    if dbg: a("s_waitcnt vmcnt(0)")
    dump(2)
    a("s_endpgm")
    if flag("cpf"):
        a("P_pf:")
        a("s_cmp_lg_u32 s22, 8")
        a("s_cbranch_scc1 P_end")
        a("s_getpc_b64 s[12:13]")
        a("P_pc:")
        a(f"s_add_u32 s12, s12, {KNAME}-P_pc")
        a("s_addc_u32 s13, s13, 0")
        a("v_lshlrev_b32 v2, 6, v1")
        a("v_mov_b32 v3, 0")
        a("v_mov_b32 v5, s13")
        a("v_add_co_u32 v4, vcc, s12, v2")
        a("v_addc_co_u32 v5, vcc, v5, v3, vcc")
        for i in range(3):
            if i == 2:
                a(f"s_mov_b32 s14, (M_end-{KNAME}-8192+64)>>6")
                a("v_cmp_gt_u32 vcc, s14, v1")
                a("s_mov_b64 exec, vcc")
                a("s_cbranch_execz P_pf_done")
            a(f"global_load_dword v{8+i}, v[4:5], off")
            if i < 2:
                a("v_add_co_u32 v4, vcc, 0x1000, v4")
                a("v_addc_co_u32 v5, vcc, v5, v3, vcc")
        a("P_pf_done:")
        a("s_waitcnt vmcnt(0)")
        a("s_endpgm")
    if flag("epf"):
        a("P_pf:")
        a("s_load_dwordx2 s[12:13], s[0:1], 8")
        a(f"s_sub_u32 s3, s2, {NCH}")
        a("s_lshl_b32 s3, s3, 1")
        a("s_add_u32 s3, s3, s22")
        a("s_sub_u32 s3, s3, 8")
        a("s_lshl_b32 s3, s3, 15")
        a("v_lshlrev_b32 v2, 4, v1")
        a("s_waitcnt lgkmcnt(0)")
        a("s_and_b32 s13, s13, 0xffff")
        a(f"s_mov_b32 s14, {E*32}")
        a("s_mov_b32 s15, 0x20000")
        for i in range(32):
            a(f"buffer_load_dwordx4 v[{8+4*(i%8)}:{11+4*(i%8)}], v2, s[12:15], s3 offen offset:{(i%4)*1024} {opt('epfflag', '')}")
            if i % 4 == 3: a("s_add_u32 s3, s3, 4096")
        a("s_endpgm")
    a("P_weights:")
    a("s_load_dwordx2 s[8:9], s[0:1], 48")
    a("s_load_dwordx2 s[10:11], s[0:1], 72")
    a("v_lshrrev_b32 v2, 6, v0")
    a("v_and_b32 v1, 63, v0")
    a("v_readfirstlane_b32 s3, v2")
    a("s_nop 0")
    a("s_cmp_ge_u32 s3, 4")
    a("s_cbranch_scc1 P_end")
    a("s_waitcnt lgkmcnt(0)")
    srd(a, 12, 8, 9, 272 * 256)
    a("s_lshl_b32 s28, s3, 6")
    a(f"s_add_u32 s28, s28, {256*256}")
    a("v_lshrrev_b32 v2, 5, v1")
    a("v_lshlrev_b32 v2, 11, v2")
    a("v_and_b32 v3, 31, v1")
    a("v_lshl_add_u32 v2, v3, 1, v2")
    for j in range(8):
        a(f"buffer_load_ushort v{8+j}, v2, s[12:15], s28 offen offset:{j*256}")
    srd(a, 16, 10, 11, WS_SZ)
    a("s_lshl_b32 s3, s3, 10")
    a(f"s_add_u32 s3, s3, {WS_W}")
    a("v_lshlrev_b32 v1, 4, v1")
    a(f"s_mov_b32 s29, {NEG_LOG2E:#x}")
    a("s_waitcnt vmcnt(0)")
    for j in range(8): a(f"v_lshlrev_b32 v{8+j}, 16, v{8+j}")
    for j in range(8): a(f"v_mul_f32 v{8+j}, s29, v{8+j}")
    for j in range(4): a(f"v_cvt_pk_bf16_f32 v{16+j}, v{8+2*j}, v{9+2*j}")
    a("buffer_store_dwordx4 v[16:19], v1, s[16:19], s3 offen")
    a("P_end:")
    a("s_endpgm")
    return a.text() + descriptor("prep_kernel", 160, 80 if dbg else 48)

CAP = 640
NPAD = 128
L_GR = 0
L_XA = L_GR + 4 * 2 * 4096
L_ER = L_XA + 4096
L_OR = L_ER + 3 * 1024
L_LS = L_OR + 3 * 1024
LSZ = (CAP + NPAD) * 4
L_LE = L_LS + LSZ
L_LQ = L_LE + LSZ
M_LDS = (L_LQ + CAP + NPAD + 63) // 64 * 64
AGG_STRIDE = 528

vLANE, vE5, vH = 1, 2, 3
vG = 4
vEA, vO0, vT0, vT1 = 8, 9, 10, 11
vLs, vLe, vLq = 12, 13, 14
pG = 16
pE = 24
vQ, vOHa, vOHd = 26, 27, 28
vK = 29
vT = 32
vC, vXA, vI, vACC, vZ, vHV = 56, 60, 64, 72, 88, 104
vFX, vFH, vAE, vAO, vSO, vMSG, vXU = 120, 128, 136, 140, 144, 152, 160
NVGPR = 164
U_REC = 8

def main_kernel(dbg=False):
    a = A()
    nst = [0]
    def stamp():
        if not dbg: return
        a("s_waitcnt lgkmcnt(0)")
        a("s_memtime s[58:59]")
        a("s_waitcnt lgkmcnt(0)")
        a(f"s_mov_b32 s{64+nst[0]}, s58")
        nst[0] += 1
    PRIO = opt("prio", "pair")
    header(a, KNAME)
    a(f"s_cmp_ge_u32 s2, {NB}")
    a("s_cbranch_scc1 M_end")
    a("s_load_dwordx2 s[6:7], s[0:1], 8")
    a("s_load_dwordx2 s[8:9], s[0:1], 56")
    a("s_load_dwordx2 s[10:11], s[0:1], 72")
    if PRIO != "none": a("s_setprio 3")
    if dbg: a("s_memrealtime s[60:61]")
    stamp()
    t0, t1, t2, t3 = vT, vT + 1, vT + 2, vT + 3
    vTv = vT + 4
    a(f"v_lshrrev_b32 v{t0}, 6, v0")
    a(f"v_and_b32 v{vLANE}, 63, v0")
    a(f"v_readfirstlane_b32 s32, v{t0}")
    a(f"v_mul_u32_u24 v{t1}, {NB*8}, v{vLANE}")
    a("s_lshl_b32 s38, s2, 3")
    a("s_and_b32 s33, s2, 255")
    a("s_lshr_b32 s39, s2, 8")
    a("s_mul_i32 s33, s33, 625")
    a("s_add_u32 s34, s33, 640")
    a("s_add_u32 s33, s33, 15")
    a("s_lshr_b32 s33, s33, 4")
    a("s_lshr_b32 s34, s34, 4")
    a("s_sub_u32 s34, s34, s33")
    a(f"s_sub_u32 s34, s34, {S0 + S1}")
    a("s_cmp_eq_u32 s39, 1")
    a(f"s_cselect_b32 s34, {S1}, s34")
    a(f"s_cselect_b32 s42, {S0}, {S0 + S1}")
    a("s_cmp_eq_u32 s39, 0")
    a(f"s_cselect_b32 s34, {S0}, s34")
    a("s_cselect_b32 s42, 0, s42")
    a("s_add_u32 s33, s33, s42")
    a(f"v_and_b32 v{vE5}, 31, v{vLANE}")
    a(f"v_lshrrev_b32 v{vH}, 5, v{vLANE}")
    a("s_waitcnt lgkmcnt(0)")
    srd(a, 20, 10, 11, WS_SZ)
    a("s_cmp_lg_u32 s32, 0")
    a("s_cbranch_scc1 M_noT")
    a(f"buffer_load_dwordx2 v[{vTv}:{vTv+1}], v{t1}, s[20:23], s38 offen")
    a("M_noT:")
    srd(a, 16, 6, 7, E, stride=32)
    srd(a, 24, 10, 11, N, stride=512, add=WS_TAB)
    srd(a, 28, 8, 9, N * 256)
    srd(a, 12, 10, 11, N, stride=256, add=WS_XA)
    srd(a, 44, 10, 11, N * 256, add=WS_XU)
    a(f"v_lshrrev_b32 v{t0}, 4, v{vLANE}")
    a(f"v_and_b32 v{t1}, 7, v{vLANE}")
    a(f"v_xor_b32 v{t1}, v{t1}, v{t0}")
    a("s_lshl_b32 s38, s32, 7")
    a(f"v_lshl_add_u32 v{pG+1}, v{t1}, 4, s38")
    a(f"v_xor_b32 v{pG+3}, 64, v{pG+1}")
    a(f"v_mov_b32 v{pG+5}, v{pG+1}")
    a(f"v_mov_b32 v{pG+7}, v{pG+3}")
    a(f"v_lshrrev_b32 v{t0}, 1, v{vE5}")
    a(f"v_and_b32 v{t0}, 7, v{t0}")
    a(f"v_xor_b32 v{t0}, v{t0}, v{vH}")
    a(f"v_lshlrev_b32 v{t0}, 4, v{t0}")
    a(f"v_lshl_add_u32 v{t0}, v{vE5}, 7, v{t0}")
    a("s_lshl_b32 s40, s32, 13")
    a(f"v_add_u32 v{vG}, s40, v{t0}")
    for k in range(1, 4):
        a(f"v_xor_b32 v{vG+k}, {32*k}, v{vG}")
    a("s_lshl_b32 s41, s32, 8")
    a(f"s_add_u32 s41, s41, {L_ER}")
    a(f"v_lshlrev_b32 v{t1}, 5, v{vE5}")
    a(f"v_bfe_u32 v{t0}, v{vE5}, 3, 1")
    a(f"v_xor_b32 v{t0}, v{t0}, v{vH}")
    a(f"v_lshl_add_u32 v{t0}, v{t0}, 4, v{t1}")
    a(f"v_add_u32 v{vEA}, {L_ER}, v{t0}")
    a(f"v_lshl_add_u32 v{t0}, v{vH}, 4, v{t1}")
    a(f"v_add_u32 v{vO0}, {L_OR}, v{t0}")
    a(f"v_bfe_u32 v{t1}, v{vLANE}, 2, 2")
    a(f"v_lshl_add_u32 v{t1}, v{vH}, 2, v{t1}")
    a(f"v_and_b32 v{t0}, 3, v{vLANE}")
    a(f"v_lshlrev_b32 v{t0}, 3, v{t0}")
    a(f"v_lshl_add_u32 v{t0}, v{t1}, 5, v{t0}")
    a(f"v_add_u32 v{vT0}, {L_OR}, v{t0}")
    a("s_and_b32 s38, s32, 1")
    a(f"v_and_b32 v{t0}, 1, v{vLANE}")
    a(f"v_xor_b32 v{t0}, s38, v{t0}")
    a(f"v_lshlrev_b32 v{pE+1}, 4, v{t0}")
    a(f"v_and_b32 v{t0}, 7, v{vLANE}")
    a("s_lshl_b32 s38, s32, 3")
    a(f"v_add_u32 v{t0}, s38, v{t0}")
    a(f"v_lshlrev_b32 v{t1}, 5, v{t0}")
    a(f"v_bfe_u32 v{t2}, v{vLANE}, 3, 1")
    for k in range(3):
        s_set, s_clr = (k + 2) % 3, k
        a(f"v_mul_i32_i24 v{t3}, {(s_clr - s_set) * 1024}, v{t2}")
        a(f"v_add_u32 v{t3}, {s_set*1024 + L_OR}, v{t3}")
        a(f"v_add_u32 v{vK+k}, v{t3}, v{t1}")
    a(f"v_sub_u32 v{t3}, 1, v{t2}")
    a(f"v_mul_u32_u24 v{vOHd}, 0x3f80, v{t3}")
    vLq0 = vT + 22
    a(f"v_lshlrev_b32 v{t2}, 6, v{t2}")
    a(f"v_sub_u32 v{t0}, v{t0}, v{t2}")
    a(f"v_add_u32 v{vLq0}, {L_LQ + 64}, v{t0}")
    a(f"v_and_b32 v{t0}, 1, v{vE5}")
    a(f"v_lshlrev_b32 v{t0}, 4, v{t0}")
    a(f"v_mov_b32 v{t1}, 0x3f80")
    a(f"v_lshlrev_b32 v{t0}, v{t0}, v{t1}")
    a(f"v_bfe_u32 v{t1}, v{vE5}, 1, 1")
    a(f"v_lshrrev_b32 v{t2}, 2, v{vE5}")
    a(f"v_and_b32 v{t3}, 2, v{t2}")
    a(f"v_or_b32 v{t1}, v{t1}, v{t3}")
    a(f"v_and_b32 v{t2}, 1, v{t2}")
    a(f"v_lshl_add_u32 v{t1}, v{t2}, 2, v{t1}")
    a(f"v_lshrrev_b32 v{t2}, 4, v{vE5}")
    a(f"v_xor_b32 v{t2}, v{t2}, v{vH}")
    a(f"v_lshl_add_u32 v{t1}, v{t2}, 3, v{t1}")
    for g in range(2):
        pairs = ["vcc", "s[48:49]", "s[50:51]", "s[54:55]"]
        for k in range(4): a(f"v_cmp_eq_u32 {pairs[k]}, {4*g+k}, v{t1}")
        for k in range(4): a(f"v_cndmask_b32 v{vI+4*g+k}, 0, v{t0}, {pairs[k]}")
    for r in range(8):
        a(f"v_mov_b32 v{vACC+r}, 0")
    vRecI, vPos0, vCnt, vEb = vT + 4, vT + 5, vT + 6, vT + 7
    vc = vHV
    vp = vHV + 4
    tb = vZ
    L_TB = L_GR
    a("s_cmp_lg_u32 s32, 0")
    a("s_cbranch_scc1 M_scan_done")
    a(f"v_mul_u32_u24 v{t3}, {CH}, v{vLANE}")
    a("s_waitcnt vmcnt(0)")
    stamp()
    a(f"v_lshrrev_b32 v{t1}, 16, v{vTv}")
    a(f"v_and_b32 v{vc}, 0xff, v{vTv+1}")
    a(f"v_bfe_u32 v{vc+1}, v{vTv+1}, 8, 8")
    a(f"v_bfe_u32 v{vc+2}, v{vTv+1}, 16, 8")
    a(f"v_add3_u32 v{t0}, v{vc}, v{vc+1}, v{vc+2}")
    a(f"v_sub_u32 v{vc+3}, v{t1}, v{t0}")
    for k in range(4): a(f"v_mov_b32 v{vp+k}, v{vc+k}")
    a(f"v_and_b32 v{t2}, 0xffff, v{vTv}")
    for sh in (1, 2, 4, 8):
        for k in range(4):
            a(f"v_add_u32_dpp v{vp+k}, v{vp+k}, v{vp+k} row_shr:{sh} row_mask:0xf bank_mask:0xf bound_ctrl:1")
    for k in range(4): a(f"v_add_u32_dpp v{vp+k}, v{vp+k}, v{vp+k} row_bcast:15 row_mask:0xa bank_mask:0xf")
    for k in range(4): a(f"v_add_u32_dpp v{vp+k}, v{vp+k}, v{vp+k} row_bcast:31 row_mask:0xc bank_mask:0xf")
    a(f"v_add_u32 v{tb}, v{t3}, v{t2}")
    for k in range(4): a(f"v_readlane_b32 s{48+k}, v{vp+k}, 63")
    for k in range(1, 4): a(f"v_add_u32 v{tb+4*k}, v{tb+4*k-4}, v{vc+k-1}")
    a("s_add_u32 s49, s49, s48")
    a("s_add_u32 s50, s50, s49")
    a("s_add_u32 s35, s51, s50")
    for k in range(4): a(f"v_sub_u32 v{tb+4*k+1}, v{vp+k}, v{vc+k}")
    for k in range(1, 4): a(f"v_add_u32 v{tb+4*k+1}, s{47+k}, v{tb+4*k+1}")
    for k in range(4): a(f"v_mov_b32 v{tb+4*k+2}, v{vc+k}")
    for k in range(4): a(f"v_mov_b32 v{tb+4*k+3}, v{t3}")
    wa = vHV + 8
    a(f"v_and_b32 v{wa+1}, 3, v{tb}")
    a(f"v_and_b32 v{wa}, 0xfffffffc, v{tb}")
    a(f"v_lshlrev_b32 v{wa}, 2, v{wa}")
    a(f"v_lshrrev_b32 v{t1}, 16, v{vTv}")
    a(f"v_add_u32 v{wa+1}, v{wa+1}, v{t1}")
    a(f"v_cmp_lt_u32 vcc, 32, v{wa+1}")
    a(f"s_cmp_le_u32 s35, {CAP}")
    a("s_cselect_b32 s54, 1, 0")
    a("s_cmp_eq_u64 vcc, 0")
    a("s_cselect_b32 s54, s54, 0")
    a(f"v_lshlrev_b32 v{t0}, 6, v{vLANE}")
    a(f"v_lshlrev_b32 v{t3}, 3, v{vLANE}")
    a(f"v_mov_b32 v{wa+2}, s35")
    a(f"v_mov_b32 v{wa+3}, s54")
    a(f"v_mov_b32 v{t2}, {L_TB + 4096}")
    for k in range(4): a(f"ds_write_b128 v{t0}, v[{tb+4*k}:{tb+4*k+3}] offset:{L_TB+16*k}")
    a(f"ds_write_b64 v{t3}, v[{wa}:{wa+1}] offset:{L_TB + 4160}")
    a(f"ds_write_b64 v{t2}, v[{wa+2}:{wa+3}]")
    a("s_waitcnt lgkmcnt(0)")
    a("M_scan_done:")
    if dbg: nst[0] = 2
    a(f"v_lshlrev_b32 v{t0}, 4, v0")
    a(f"v_mov_b32 v{t2}, {L_TB + 4096}")
    a("s_barrier")
    wb = vHV
    a(f"ds_read_b128 v[{vRecI}:{vRecI+3}], v{t0} offset:{L_TB}")
    a(f"ds_read_b64 v[{wb+4}:{wb+5}], v{t2}")
    a(f"v_lshrrev_b32 v{t1}, 3, v{vLANE}")
    a("s_lshl_b32 s38, s32, 7")
    a(f"v_lshl_add_u32 v{t1}, v{t1}, 3, s38")
    a(f"ds_read_b64 v[{wb}:{wb+1}], v{t1} offset:{L_TB + 4160}")
    a(f"ds_read_b64 v[{wb+2}:{wb+3}], v{t1} offset:{L_TB + 4160 + 64}")
    a(f"v_and_b32 v{t3}, 7, v{vLANE}")
    a(f"v_lshlrev_b32 v{t3}, 2, v{t3}")
    a("s_waitcnt lgkmcnt(0)")
    a(f"v_readfirstlane_b32 s35, v{wb+4}")
    a(f"v_readfirstlane_b32 s54, v{wb+5}")
    stamp()
    def side_loads():
        b0 = vMSG
        a(f"v_lshlrev_b32 v{b0+2}, 4, v{vLANE}")
        a("s_lshl_b32 s42, s32, 10")
        a(f"s_add_u32 m0, s42, {L_XA}")
        a(f"s_add_u32 s42, s42, {WS_W}")
        a(f"buffer_load_dwordx4 v[{vC}:{vC+3}], v{b0+2}, s[20:23], s42 offen")
        a(f"v_lshrrev_b32 v{b0}, 4, v0")
        a(f"v_add_u32 v{b0}, s33, v{b0}")
        a(f"v_and_b32 v{b0+1}, 15, v0")
        a(f"v_lshlrev_b32 v{b0+1}, 4, v{b0+1}")
        a(f"buffer_load_dwordx4 v[{b0}:{b0+1}], s[12:15], 0 idxen offen lds")
    def xu_load():
        a(f"v_lshrrev_b32 v{vOHa}, 4, v0")
        a(f"v_add_u32 v{vOHa}, s33, v{vOHa}")
        a(f"v_lshlrev_b32 v{vOHa}, 8, v{vOHa}")
        a(f"v_and_b32 v{vXU}, 15, v0")
        a(f"v_lshl_add_u32 v{vOHa}, v{vXU}, 4, v{vOHa}")
        a(f"buffer_load_dwordx4 v[{vXU}:{vXU+3}], v{vOHa}, s[44:47], 0 offen")
    a("s_mov_b32 s36, 0")
    a("s_mov_b32 s43, 1")
    a("s_mov_b32 s53, 1")
    a("s_cmp_eq_u32 s35, 0")
    a("s_cbranch_scc1 M_empty")

    a("s_cmp_eq_u32 s54, 0")
    a("s_cbranch_scc1 M_batch")
    L_RW = L_GR + 8192
    a(f"s_mov_b32 s52, {WS_REC}")
    a("s_lshl_b32 s38, s32, 11")
    for i in range(2):
        a(f"v_cmp_lt_u32 vcc, v{t3}, v{wb+2*i+1}")
        a(f"v_lshl_add_u32 v{wb+2*i}, v{t3}, 2, v{wb+2*i}")
        a(f"s_add_u32 m0, s38, {L_RW + 1024*i}")
        a("s_mov_b64 exec, vcc")
        a(f"buffer_load_dwordx4 v{wb+2*i}, s[20:23], s52 offen lds")
        a("s_mov_b64 exec, -1")
    side_loads()
    a("s_mov_b32 s43, 0")
    z = vT + 10
    for k in range(4): a(f"v_mov_b32 v{z+k}, 0")
    a(f"v_lshlrev_b32 v{t0}, 4, v0")
    a(f"v_cmp_gt_u32 vcc, 192, v0")
    a("s_mov_b64 exec, vcc")
    a(f"ds_write_b128 v{t0}, v[{z}:{z+3}] offset:{L_OR}")
    a("s_mov_b64 exec, -1")
    a("s_mov_b32 s37, s35")
    vP4, vP1, vA = vT + 12, vT + 13, vT + 3
    vR = vT + 14
    a(f"v_lshrrev_b32 v{t0}, 2, v0")
    a(f"v_lshlrev_b32 v{t0}, 7, v{t0}")
    a(f"v_mov_b32_dpp v{t2}, v{vRecI} quad_perm:[0,0,0,0] row_mask:0xf bank_mask:0xf")
    a(f"v_and_b32 v{t2}, 0xfffffffc, v{t2}")
    a(f"v_sub_u32 v{t2}, v{vRecI}, v{t2}")
    a(f"v_lshl_add_u32 v{vA}, v{t2}, 2, v{t0}")
    a(f"v_mov_b32 v{vP1}, v{vPos0}")
    a(f"v_lshlrev_b32 v{vP4}, 2, v{vPos0}")
    a("s_waitcnt vmcnt(2)")
    if dbg:
        a("s_memtime s[58:59]\ns_waitcnt lgkmcnt(0)\ns_mov_b32 s67, s58")
    a("M_fast_round:")
    for u in range(8): a(f"ds_read_b32 v{vR+u}, v{vA} offset:{L_RW + 4*u}")
    for u in range(8):
        a(f"v_cmp_lt_i32 vcc, {u}, v{vCnt}")
        a("s_mov_b64 exec, vcc")
        a("s_cbranch_execz M_fast_done")
        if u == 0: a("s_waitcnt lgkmcnt(0)")
        a(f"v_and_b32 v{t0}, 0x3fff, v{vR+u}")
        a(f"v_bfe_u32 v{t1}, v{vR+u}, 14, 5")
        a(f"v_lshrrev_b32 v{t2}, 19, v{vR+u}")
        a(f"v_add_u32 v{t2}, v{t2}, v{vEb}")
        if flag("exp_e"): a(f"v_and_b32 v{t2}, 0x3fff, v{t2}")
        if flag("exp_t"): a(f"v_and_b32 v{t0}, 0x7ff, v{t0}")
        a(f"ds_write_b32 v{vP4}, v{t0} offset:{L_LS + 4*u}")
        a(f"ds_write_b8 v{vP1}, v{t1} offset:{L_LQ + u}")
        a(f"ds_write_b32 v{vP4}, v{t2} offset:{L_LE + 4*u}")
    a("s_mov_b64 exec, -1")
    a(f"v_subrev_u32 v{vCnt}, 8, v{vCnt}")
    a(f"v_add_u32 v{vA}, 32, v{vA}")
    a(f"v_add_u32 v{vP4}, 32, v{vP4}")
    a(f"v_add_u32 v{vP1}, 8, v{vP1}")
    a(f"v_cmp_lt_i32 vcc, 0, v{vCnt}")
    a("s_cbranch_vccnz M_fast_round")
    a("M_fast_done:")
    a("s_mov_b64 exec, -1")
    a("s_branch M_pads")
    a("M_batch:")
    z = vT + 10
    for k in range(4): a(f"v_mov_b32 v{z+k}, 0")
    a(f"v_lshlrev_b32 v{t0}, 4, v0")
    a(f"v_cmp_gt_u32 vcc, 192, v0")
    a("s_mov_b64 exec, vcc")
    a(f"ds_write_b128 v{t0}, v[{z}:{z+3}] offset:{L_OR}")
    a("s_mov_b64 exec, -1")
    a("s_sub_u32 s37, s35, s36")
    a(f"s_min_u32 s37, s37, {CAP}")
    vJ, vRem, vRa, vP4, vP1 = vT + 10, vT + 11, vT + 3, vT + 12, vT + 13
    a(f"v_sub_u32 v{vJ}, s36, v{vPos0}")
    a(f"v_add_u32 v{vRem}, {CAP}, v{vJ}")
    a(f"v_max_i32 v{vJ}, 0, v{vJ}")
    a(f"v_min_i32 v{vRem}, v{vRem}, v{vCnt}")
    a(f"v_sub_u32 v{vRem}, v{vRem}, v{vJ}")
    a(f"v_add_lshl_u32 v{vRa}, v{vJ}, v{vRecI}, 2")
    a(f"v_add_u32 v{vP1}, v{vPos0}, v{vJ}")
    a(f"v_subrev_u32 v{vP1}, s36, v{vP1}")
    a(f"v_lshlrev_b32 v{vP4}, 2, v{vP1}")
    a(f"s_mov_b32 s52, {WS_REC}")
    vR = vT + 14
    a("M_round:")
    for half in range(2):
        a(f"v_cmp_lt_i32 vcc, {4*half}, v{vRem}")
        a("s_mov_b64 exec, vcc")
        a("s_cbranch_execz M_round_issued")
        a(f"buffer_load_dwordx4 v[{vR+4*half}:{vR+4*half+3}], v{vRa}, s[20:23], s52 offen offset:{16*half}")
    a("M_round_issued:")
    a("s_mov_b64 exec, -1")
    a("s_cmp_eq_u32 s43, 0")
    a("s_cbranch_scc1 M_round_w0")
    side_loads()
    a("s_mov_b32 s43, 0")
    a("s_waitcnt vmcnt(2)")
    a("s_branch M_round_proc")
    a("M_round_w0:")
    a("s_waitcnt vmcnt(0)")
    a("M_round_proc:")
    if dbg:
        a("s_memtime s[58:59]\ns_waitcnt lgkmcnt(0)\ns_mov_b32 s67, s58"); nst[0] = 4
    for u in range(8):
        a(f"v_cmp_lt_i32 vcc, {u}, v{vRem}")
        a("s_mov_b64 exec, vcc")
        a("s_cbranch_execz M_round_done")
        a(f"v_and_b32 v{t0}, 0x3fff, v{vR+u}")
        a(f"v_bfe_u32 v{t1}, v{vR+u}, 14, 5")
        a(f"v_lshrrev_b32 v{t2}, 19, v{vR+u}")
        a(f"v_add_u32 v{t2}, v{t2}, v{vEb}")
        if flag("exp_e"): a(f"v_and_b32 v{t2}, 0x3fff, v{t2}")
        if flag("exp_t"): a(f"v_and_b32 v{t0}, 0x7ff, v{t0}")
        a(f"ds_write_b32 v{vP4}, v{t0} offset:{L_LS + 4*u}")
        a(f"ds_write_b8 v{vP1}, v{t1} offset:{L_LQ + u}")
        a(f"ds_write_b32 v{vP4}, v{t2} offset:{L_LE + 4*u}")
    a("M_round_done:")
    a("s_mov_b64 exec, -1")
    a(f"v_subrev_u32 v{vRem}, 8, v{vRem}")
    a(f"v_add_u32 v{vRa}, 32, v{vRa}")
    a(f"v_add_u32 v{vP4}, 32, v{vP4}")
    a(f"v_add_u32 v{vP1}, 8, v{vP1}")
    a(f"v_cmp_lt_i32 vcc, 0, v{vRem}")
    a("s_cbranch_vccnz M_round")
    a("M_pads:")
    a("s_cmp_ge_u32 s32, 2")
    a("s_cbranch_scc1 M_pad_done")
    a(f"v_add_u32 v{t0}, s37, v0")
    a(f"v_add_u32 v{t1}, {L_LQ}, v{t0}")
    a(f"v_lshlrev_b32 v{t0}, 2, v{t0}")
    a(f"v_add_u32 v{t0}, {L_LS}, v{t0}")
    a(f"v_mov_b32 v{t2}, 0xffffff")
    a(f"v_mov_b32 v{t3}, 15")
    a(f"ds_write_b32 v{t0}, v{t2}")
    a(f"ds_write_b32 v{t0}, v{t2} offset:{L_LE - L_LS}")
    a(f"ds_write_b8 v{t1}, v{t3}")
    a("M_pad_done:")
    a(f"v_lshrrev_b32 v{t0}, 3, v{vLANE}")
    a(f"v_lshlrev_b32 v{t0}, 2, v{t0}")
    a(f"v_add_u32 v{vLs}, {L_LS}, v{t0}")
    a("s_lshl_b32 s38, s32, 5")
    a(f"s_add_u32 s38, s38, {L_LE}")
    a(f"v_and_b32 v{t0}, 15, v{vLANE}")
    a(f"v_lshrrev_b32 v{t0}, 1, v{t0}")
    a(f"v_lshl_add_u32 v{vLe}, v{t0}, 2, s38")
    a(f"v_mov_b32 v{vLq}, v{vLq0}")
    a("s_waitcnt lgkmcnt(0)")
    a("s_barrier")
    stamp()
    def idx_reads(T):
        for q in range(4):
            a(f"ds_read_b32 v{pG+2*q}, v{vLs} offset:{128*T + 32*q}")
        a(f"ds_read_b32 v{pE}, v{vLe} offset:{128*T}")
    def dma_tile(gslot, eslot):
        for q in range(4):
            a(f"s_add_u32 m0, s40, {L_GR + gslot*4096 + q*1024}")
            a("s_nop 0")
            a(f"buffer_load_dwordx4 v[{pG+2*q}:{pG+2*q+1}], s[24:27], 0 idxen offen {opt('gflag', '')} lds")
        a(f"s_add_u32 m0, s41, {eslot*1024}")
        a("s_mov_b64 exec, 0xffff")
        a(f"buffer_load_dwordx4 v[{pE}:{pE+1}], s[16:19], 0 idxen offen {opt('eflag', '')} lds")
        a("s_mov_b64 exec, -1")
    def frag_reads(gs, es):
        a(f"ds_read_b128 v[{vFX}:{vFX+3}], v{vG} offset:{L_GR + gs*4096}")
        a(f"ds_read_b128 v[{vFX+4}:{vFX+7}], v{vG+1} offset:{L_GR + gs*4096}")
        a(f"ds_read_b128 v[{vAE}:{vAE+3}], v{vEA} offset:{es*1024}")
        a(f"ds_read_b128 v[{vAO}:{vAO+3}], v{vO0} offset:{es*1024}")
        a(f"ds_read_b128 v[{vFH}:{vFH+3}], v{vG+2} offset:{L_GR + gs*4096}")
        a(f"ds_read_b128 v[{vFH+4}:{vFH+7}], v{vG+3} offset:{L_GR + gs*4096}")
    idx_reads(0)
    a(f"v_subrev_u32 v{t0}, 64, v{vLq}")
    a(f"ds_read_u8 v{vQ}, v{t0}")
    a(f"ds_read_u8 v{vOHa}, v{t0} offset:32")
    a("s_waitcnt lgkmcnt(2)")
    dma_tile(0, 0)
    idx_reads(1)
    a("s_waitcnt lgkmcnt(5)")
    a(f"v_lshl_add_u32 v{vQ}, v{vQ}, 1, v{vK+1}")
    a(f"v_lshl_add_u32 v{vOHa}, v{vOHa}, 1, v{vK+2}")
    a("s_mov_b64 exec, 0xff")
    a(f"ds_write_b16 v{vQ}, v{vOHd}")
    a(f"ds_write_b16 v{vOHa}, v{vOHd}")
    a("s_mov_b64 exec, -1")
    a("s_waitcnt vmcnt(0) lgkmcnt(0)")
    a("s_barrier")
    dma_tile(1, 1)
    idx_reads(2)
    frag_reads(0, 0)
    a("s_cmp_lg_u32 s36, 0")
    a("s_cbranch_scc1 M_noxa")
    a(f"v_lshrrev_b32 v{t0}, 2, v{vLANE}\nv_and_b32 v{t0}, 3, v{t0}")
    a(f"v_lshl_add_u32 v{t0}, v{vH}, 2, v{t0}")
    a(f"v_lshlrev_b32 v{t0}, 8, v{t0}")
    a(f"v_lshrrev_b32 v{t1}, 4, v{vLANE}\nv_and_b32 v{t1}, 1, v{t1}")
    a(f"v_lshl_add_u32 v{t0}, v{t1}, 5, v{t0}")
    a(f"v_and_b32 v{t1}, 3, v{vLANE}")
    a(f"v_lshl_add_u32 v{t0}, v{t1}, 3, v{t0}")
    a("s_lshl_b32 s38, s32, 6")
    a(f"v_add_u32 v{t0}, s38, v{t0}")
    a(f"ds_read_b64_tr_b16 v[{vXA}:{vXA+1}], v{t0} offset:{L_XA}")
    a(f"ds_read_b64_tr_b16 v[{vXA+2}:{vXA+3}], v{t0} offset:{L_XA + 2048}")
    a("M_noxa:")
    a("s_waitcnt lgkmcnt(0)")
    SPREAD = opt("spread", "1") != "0"
    LATE = {"0": [0, 1, 2, 3, 4], "1": [0, 1], "2": [], "3": [0]}[opt("spread", "1")]
    EARLY = [p for p in range(5) if p not in LATE]
    def dma_part(p, gslot, eslot, filler=None):
        if p < 4:
            a(f"s_add_u32 m0, s40, {L_GR + gslot*4096 + p*1024}")
            a(filler if filler else "s_nop 0")
            a(f"buffer_load_dwordx4 v[{pG+2*p}:{pG+2*p+1}], s[24:27], 0 idxen offen {opt('gflag', '')} lds")
        else:
            a(f"s_add_u32 m0, s41, {eslot*1024}")
            a("s_mov_b64 exec, 0xffff")
            a(f"buffer_load_dwordx4 v[{pE}:{pE+1}], s[16:19], 0 idxen offen {opt('eflag', '')} lds")
            a("s_mov_b64 exec, -1")
            if filler: a(filler)
    for p in LATE: dma_part(p, 0, 2)
    stamp()
    if dbg: a("s_memrealtime s[72:73]\ns_waitcnt lgkmcnt(0)")
    a("s_add_u32 s37, s37, 31")
    a("s_lshr_b32 s37, s37, 5")
    def chain(z, h):
        return [mf(z, vFX, vI, None), mf(z, vFX + 4, vI + 4, z), mf(z, vAE, vC, z), mf(z, vAO, vXA, z),
                mf(h, vFH, vI, None), mf(h, vFH + 4, vI + 4, h)]
    nlab = [0]
    def prio(p):
        if PRIO == "pair": a(f"s_setprio {p}")
        if PRIO == "pairbal":
            nlab[0] += 1
            a(f"s_setprio {p}")
            a(f"s_cbranch_vccz M_pr{nlab[0]}")
            a(f"s_setprio {p + 2}")
            a(f"M_pr{nlab[0]}:")
    a("M_loop:")
    loop_start = len(a.l)
    for k in range(6):
        es = k % 3; es1 = (k + 1) % 3; gs1 = (k + 1) % 2
        gs2 = k % 2; es2 = (k + 2) % 3
        z, h = vZ, vHV
        a.c(f"---- position {k}: e/one-hot slot {es} ----")
        if PRIO == "bal" and k % 2 == 0:
            a(f"s_cmp_ge_u32 s37, 9\ns_cbranch_scc1 M_prio_done{k}\ns_setprio 2\ns_cmp_ge_u32 s37, 5\ns_cbranch_scc1 M_prio_done{k}\ns_setprio 1\ns_cmp_ge_u32 s37, 2\ns_cbranch_scc1 M_prio_done{k}\ns_setprio 0\nM_prio_done{k}:")
        if PRIO == "pairbal":
            a(f"s_cmp_gt_u32 s37, {opt('X', '4')}")
            a("s_cselect_b64 vcc, -1, 0")
        early = list(EARLY)
        ch = chain(z, h)
        if len(early) <= 3:
            if early: dma_part(early.pop(0), gs2, es2)
            a("s_waitcnt lgkmcnt(0)")
            for s_ in range(2):
                a(f"ds_read_b64_tr_b16 v[{vSO+4*s_}:{vSO+4*s_+1}], v{vT0} offset:{es*1024 + s_*512}")
                a(f"ds_read_b64_tr_b16 v[{vSO+4*s_+2}:{vSO+4*s_+3}], v{vT0} offset:{es*1024 + s_*512 + 256}")
            for x in ch[0:4]: a(x)
            if early: dma_part(early.pop(0), gs2, es2)
            for x in ch[4:6]: a(x)
            while early: dma_part(early.pop(0), gs2, es2)
        else:
            a("s_waitcnt lgkmcnt(0)")
            for s_ in range(2):
                a(f"ds_read_b64_tr_b16 v[{vSO+4*s_}:{vSO+4*s_+1}], v{vT0} offset:{es*1024 + s_*512}")
                a(f"ds_read_b64_tr_b16 v[{vSO+4*s_+2}:{vSO+4*s_+3}], v{vT0} offset:{es*1024 + s_*512 + 256}")
            for j, x in enumerate(ch):
                a(x)
                if early and j < 5: dma_part(early.pop(0), gs2, es2)
            while early: dma_part(early.pop(0), gs2, es2)
        a("s_waitcnt vmcnt(5) lgkmcnt(0)")
        a("s_barrier")
        frag_reads(gs1, es1)
        T3 = k + 3
        for q in range(4):
            a(f"ds_read_b32 v{pG+2*q}, v{vLs} offset:{128*T3 + 32*q}")
        a(f"ds_read_b32 v{pE}, v{vLe} offset:{128*T3}")
        a(f"ds_read_u8 v{vQ}, v{vLq} offset:{32*k}")
        if k == 1:
            a("s_cmp_eq_u32 s53, 0")
            a("s_cbranch_scc1 M_xu_done")
            xu_load()
            a("s_mov_b32 s53, 0")
            a("M_xu_done:")
        ex = [f"v_exp_f32 v{z+r}, v{z+r}" for r in range(16)]
        ad = [f"v_add_f32 v{z+r}, 1.0, v{z+r}" for r in range(16)]
        rc = [f"v_rcp_f32 v{z+r}, v{z+r}" for r in range(16)]
        mu = [f"v_mul_f32 v{z+r}, v{z+r}, v{h+r}" for r in range(16)]
        cv = [f"v_cvt_pk_bf16_f32 v{vMSG+r}, v{z+2*r}, v{z+2*r+1}" for r in range(8)]
        for x in ex: a(x)
        prio(0)
        for x in ad: a(x)
        prio(1)
        a("s_waitcnt lgkmcnt(0)")
        late = list(LATE)
        pos = {5: [0, 3, 6, 9, 12], 2: [1, 9], 1: [4], 0: []}[len(late)]
        r0 = 0
        for p, at in zip(late, pos):
            for x in rc[r0:at]: a(x)
            dma_part(p, gs1, es, rc[at])
            r0 = at + 1
        for x in rc[r0:16]: a(x)
        a(f"v_lshl_add_u32 v{vOHa}, v{vQ}, 1, v{vK+es}")
        a("s_mov_b64 exec, 0xffff")
        a(f"ds_write_b16 v{vOHa}, v{vOHd}")
        a("s_mov_b64 exec, -1")
        prio(0)
        for x in mu: a(x)
        prio(1)
        for x in cv: a(x)
        a("s_sub_u32 s37, s37, 1")
        a(mf(vACC, vSO, vMSG, vACC))
        a(mf(vACC, vSO + 4, vMSG + 4, vACC))
        a("s_cmp_eq_u32 s37, 0")
        a("s_cbranch_scc1 M_loop_done")
    a(f"v_add_u32 v{vLs}, {128*6}, v{vLs}")
    a(f"v_add_u32 v{vLe}, {128*6}, v{vLe}")
    a(f"v_add_u32 v{vLq}, {32*6}, v{vLq}")
    a("s_branch M_loop")
    abl = [x[6:] for x in ARGS if x.startswith("--abl_")]
    if abl:
        body = a.l[loop_start:]
        def drop(l):
            t = l.strip()
            if "dma" in abl and t.startswith("buffer_load") and " lds" in t: return True
            if "valu" in abl and t.startswith(("v_exp", "v_add_f32", "v_rcp", "v_mul_f32", "v_cvt_pk")): return True
            if "mfma" in abl and t.startswith("v_mfma"): return True
            if "bar" in abl and t.startswith("s_barrier"): return True
            if "frag" in abl and t.startswith("ds_read_b128"): return True
            if "tr" in abl and t.startswith("ds_read_b64_tr"): return True
            if "idx" in abl and t.startswith(("ds_read_b32", "ds_read_u8")): return True
            if "oh" in abl and t.startswith("ds_write_b16"): return True
            if "dmae" in abl and t.startswith("buffer_load") and "s[16:19]" in t: return True
            if "dmag" in abl and t.startswith("buffer_load") and "s[24:27]" in t: return True
            return False
        body = [l for l in body if not drop(l)]
        if "vmw" in abl: body = [l.replace("vmcnt(5) ", "") for l in body]
        a.l[loop_start:] = body
    a("M_loop_done:")
    stamp()
    if dbg: a("s_memrealtime s[74:75]\ns_waitcnt lgkmcnt(0)")
    a("s_cmp_eq_u32 s53, 0")
    a("s_cbranch_scc1 M_xu_done2")
    xu_load()
    a("s_mov_b32 s53, 0")
    a("M_xu_done2:")
    a("s_waitcnt vmcnt(0) lgkmcnt(0)")
    a("s_barrier")
    a(f"s_add_u32 s36, s36, {CAP}")
    a("s_cmp_lt_u32 s36, s35")
    a("s_cbranch_scc1 M_batch")
    a("s_branch M_epilogue")
    a("M_empty:")
    xu_load()
    a("s_waitcnt vmcnt(0)")
    a("M_epilogue:")
    a(f"v_mul_u32_u24 v{t0}, {8*AGG_STRIDE}, v{vH}")
    a(f"v_lshl_add_u32 v{t0}, v{vE5}, 2, v{t0}")
    a("s_lshl_b32 s39, s32, 7")
    a(f"v_add_u32 v{t0}, s39, v{t0}")
    a("s_nop 7")
    for r in range(8):
        a(f"ds_write_b32 v{t0}, v{vACC+r} offset:{L_GR + r*AGG_STRIDE}")
    a(f"v_lshrrev_b32 v{t0}, 4, v0")
    a(f"v_and_b32 v{t1}, 15, v0")
    a(f"v_mul_u32_u24 v{t2}, {AGG_STRIDE}, v{t0}")
    a(f"v_lshl_add_u32 v{t2}, v{t1}, 5, v{t2}")
    a(f"v_add_u32 v{t3}, s33, v{t0}")
    a(f"v_lshlrev_b32 v{t3}, 8, v{t3}")
    a(f"v_lshl_add_u32 v{t3}, v{t1}, 4, v{t3}")
    a(f"s_mov_b32 s38, {NEG_LOG2E:#x}")
    a("s_waitcnt lgkmcnt(0)")
    a("s_barrier")
    y = vZ; w_ = vHV
    a(f"ds_read_b128 v[{y}:{y+3}], v{t2} offset:{L_GR}")
    a(f"ds_read_b128 v[{y+4}:{y+7}], v{t2} offset:{L_GR + 16}")
    for i in range(4):
        a(f"v_lshlrev_b32 v{w_+2*i}, 16, v{vXU+i}")
        a(f"v_and_b32 v{w_+2*i+1}, 0xffff0000, v{vXU+i}")
    a("s_waitcnt lgkmcnt(0)")
    for r in range(8): a(f"v_add_f32 v{y+r}, v{y+r}, v{w_+r}")
    for r in range(8): a(f"v_mul_f32 v{w_+r}, s38, v{y+r}")
    for r in range(8): a(f"v_exp_f32 v{w_+r}, v{w_+r}")
    for r in range(8): a(f"v_add_f32 v{w_+r}, 1.0, v{w_+r}")
    for r in range(8): a(f"v_rcp_f32 v{w_+r}, v{w_+r}")
    a("s_nop 0")
    for r in range(8): a(f"v_mul_f32 v{y+r}, v{y+r}, v{w_+r}")
    for r in range(4): a(f"v_cvt_pk_bf16_f32 v{vMSG+r}, v{y+2*r}, v{y+2*r+1}")
    if dbg:
        stamp()
        a("s_memrealtime s[62:63]\ns_waitcnt lgkmcnt(0)")
        a("s_mov_b32 s52, s10\ns_and_b32 s53, s11, 0xffff\ns_mov_b32 s54, 0x1000000\ns_mov_b32 s55, 0x20000")
        a(f"s_lshl_b32 s56, s2, 2\ns_add_u32 s56, s56, s32\ns_lshl_b32 s56, s56, 6\ns_add_u32 s56, s56, {DBG2:#x}")
        vals = [64, 65, 66, 67, 68, 69, 70, 71, 60, 62, 35, 72, 74]
        a("s_mov_b64 s[50:51], exec\ns_mov_b64 exec, 1")
        for i, r in enumerate(vals):
            a(f"v_mov_b32 v{vT+20}, s{r}")
            a(f"v_mov_b32 v{vT+21}, 0")
            a(f"buffer_store_dword v{vT+20}, v{vT+21}, s[52:55], s56 offen offset:{4*i}")
        a("s_mov_b64 exec, s[50:51]")
    a(f"v_cmp_gt_u32 vcc, s34, v{t0}")
    a("s_mov_b64 exec, vcc")
    a("s_cbranch_execz M_end")
    a(f"buffer_store_dwordx4 v[{vMSG}:{vMSG+3}], v{t3}, s[28:31], 0 offen {opt('oflag', '').replace('_', ' ')}")
    a("M_end:")
    a("s_endpgm")
    return a.text() + descriptor(KNAME, NVGPR, 96 if dbg else 56)

HEAD = f"""; Edge-gated message passing (gated graph conv) for gfx950.
;                 [-log2e * x@B | x@V], -log2e * x@A, x@U; C fragments in MFMA layout
;   main kernel : per bucket of 13/14 destination nodes: gather node-table rows and e_attr rows into LDS,
;                 gate pre-activation on the matrix cores, sigmoid gate, one-hot segment sum, silu
; @launch kernel=prep_kernel grid=({P_GRID},1,1) block=({P_BLOCK},1,1) lds={P_LDS}
; @launch kernel={KNAME} grid=({NB},1,1) block=(256,1,1) lds={M_LDS}
.amdgcn_target "amdgcn-amd-amdhsa--gfx950"
.text
"""

def build(dbg=False):
    return HEAD + prep_kernel(dbg) + main_kernel(dbg)

if __name__ == "__main__":
    args = [x for x in ARGS if not x.startswith("--")]
    out = args[0] if args else "gather_scatter__edge_featured_mpnn_egc__graph.s"
    open(out, "w").write(build(dbg=flag("dbg")))
    print("wrote", out, "M_LDS", M_LDS, "P_LDS", P_LDS)
```

```python
import sys

N = 10000; E = 320000
NB = 768
NCH = 64; CH = 5000
MAGIC_G = 214749
WS_T = 0
WS_W = 0x60000
WS_REC = 0x80000
MAGIC_R = 6554
WS_SZ = 0x200000
WS_TAB = 0x200000
WS_XA = 0x700000
WS_XU = 0x980000
DBG2, DBG1 = 0xC00000, 0xE00000
NEG_LOG2E = 0xBFB8AA3B
KNAME = "gather_scatter__edge_featured_mpnn_egc__graph_kernel"
ARGS = sys.argv[1:]
def flag(n): return ("--" + n) in ARGS
def opt(n, d):
    for x in ARGS:
        if x.startswith("--" + n + "="): return x.split("=", 1)[1]
    return d

S0 = int(opt('s0', '16')); S1 = int(opt('s1', '13'))
assert S0 <= 16 and S1 <= 16 and 40 - S0 - S1 <= 16

class A:
    def __init__(self):
        self.l = []
    def __call__(self, s=""):
        for x in s.split("\n"):
            x = x.strip()
            if not x: continue
            if x.endswith(":"):
                self.l.append(x)
            else:
                self.l.append("    " + x)
    def c(self, s):
        self.l.append("    ; " + s)
    def raw(self, s):
        self.l.append(s)
    def text(self):
        return "\n".join(self.l) + "\n"

def srd(a, r, lo, hi, size, stride=0, add=0):
    if add:
        a(f"s_add_u32 s{r}, s{lo}, {add:#x}")
        a(f"s_addc_u32 s{r+1}, s{hi}, 0")
        a(f"s_and_b32 s{r+1}, s{r+1}, 0xffff")
    else:
        a(f"s_mov_b32 s{r}, s{lo}")
        a(f"s_and_b32 s{r+1}, s{hi}, 0xffff")
    if stride:
        a(f"s_or_b32 s{r+1}, s{r+1}, {stride << 16:#x}")
    a(f"s_mov_b32 s{r+2}, {size:#x}")
    a(f"s_mov_b32 s{r+3}, 0x20000")

def wave_scan(a, v):
    for sh in (1, 2, 4, 8):
        a("s_nop 1")
        a(f"v_add_u32_dpp v{v}, v{v}, v{v} row_shr:{sh} row_mask:0xf bank_mask:0xf bound_ctrl:1")
    a("s_nop 1")
    a(f"v_add_u32_dpp v{v}, v{v}, v{v} row_bcast:15 row_mask:0xa bank_mask:0xf")
    a("s_nop 1")
    a(f"v_add_u32_dpp v{v}, v{v}, v{v} row_bcast:31 row_mask:0xc bank_mask:0xf")
    a("s_nop 1")

def header(a, name):
    a.raw(f".globl {name}")
    a.raw(".p2align 8")
    a.raw(f".type {name},@function")
    a.raw(f"{name}:")

def descriptor(name, vgpr, sgpr):
    acc = (vgpr + 3) // 4 * 4
    return f""".section .rodata,"a"
.p2align 6
.amdhsa_kernel {name}
  .amdhsa_next_free_vgpr {vgpr}
  .amdhsa_next_free_sgpr {sgpr}
  .amdhsa_accum_offset {acc}
  .amdhsa_group_segment_fixed_size 0
  .amdhsa_kernarg_size 80
  .amdhsa_user_sgpr_count 2
  .amdhsa_user_sgpr_kernarg_segment_ptr 1
  .amdhsa_system_sgpr_workgroup_id_x 1
  .amdhsa_float_denorm_mode_32 3
.end_amdhsa_kernel
.text
"""

def mf(d, x, y, c):
    cs = "0" if c is None else f"v[{c}:{c+15}]"
    return f"v_mfma_f32_32x32x16_bf16 v[{d}:{d+15}], v[{x}:{x+3}], v[{y}:{y+3}], {cs}"

XGRP = 1088
XSLOT = 8 * XGRP

def xfrag_addr(a, d0, d1, row, h, t0, t1, t2):
    a(f"v_lshrrev_b32 v{t0}, 2, v{row}")
    a(f"v_mul_u32_u24 v{t0}, {XGRP}, v{t0}")
    a(f"v_and_b32 v{t1}, 3, v{row}")
    a(f"v_lshl_add_u32 v{t0}, v{t1}, 8, v{t0}")
    a(f"v_xor_b32 v{t2}, v{h}, v{t1}")
    a(f"v_lshl_add_u32 v{d0}, v{t2}, 4, v{t0}")
    a(f"v_xor_b32 v{t2}, 2, v{t2}")
    a(f"v_lshl_add_u32 v{d1}, v{t2}, 4, v{t0}")

P_BLOCK = 640
P_NG = 79
P_GRID = NCH + 2 * P_NG + 1
P_HIST, P_START, P_TOT, P_SORT = 0, 12288, 24576, 24640
G_W0, G_W1, G_X = 0, 32768, 65536
G_ST = G_X + 4 * XSLOT
P_LDS = G_ST + 8 * 4096

def prep_kernel(dbg=False):
    SF = opt("sflag", "").replace("_", " ")
    a = A()
    nst = [0]
    def stamp():
        if not dbg: return
        a("s_waitcnt lgkmcnt(0)\ns_memtime s[40:41]\ns_waitcnt lgkmcnt(0)")
        a(f"s_mov_b32 s{50+nst[0]}, s40")
        nst[0] += 1
    def dump(role):
        if not dbg: return
        while nst[0] < 8: stamp()
        a("s_memrealtime s[46:47]\ns_load_dwordx2 s[42:43], s[0:1], 72\ns_waitcnt lgkmcnt(0)")
        a("s_mov_b32 s60, s42\ns_and_b32 s61, s43, 0xffff\ns_mov_b32 s62, 0x1000000\ns_mov_b32 s63, 0x20000")
        a("v_lshrrev_b32 v158, 6, v0\ns_nop 0\nv_readfirstlane_b32 s48, v158\ns_nop 3")
        a(f"s_lshl_b32 s49, s2, 4\ns_add_u32 s49, s49, s48\ns_lshl_b32 s49, s49, 6\ns_add_u32 s49, s49, {DBG1:#x}")
        a("s_mov_b64 exec, 1")
        for i, r in enumerate([50,51,52,53,54,55,56,57,44,46]):
            a(f"v_mov_b32 v158, s{r}\nv_mov_b32 v159, 0\nbuffer_store_dword v158, v159, s[60:63], s49 offen offset:{4*i}")
        a(f"v_mov_b32 v158, {role}\nv_mov_b32 v159, 0\nbuffer_store_dword v158, v159, s[60:63], s49 offen offset:40")
        nst[0] = 0
    TL = flag("tl")
    def tl_end():
        if not TL: return
        a("s_waitcnt vmcnt(0) lgkmcnt(0)")
        a("s_memrealtime s[70:71]\ns_load_dwordx2 s[72:73], s[0:1], 72\ns_waitcnt lgkmcnt(0)")
        a("s_mov_b32 s76, s72\ns_and_b32 s77, s73, 0xffff\ns_mov_b32 s78, 0x1000000\ns_mov_b32 s79, 0x20000")
        a("v_lshrrev_b32 v158, 6, v0\ns_nop 0\nv_readfirstlane_b32 s74, v158\ns_nop 3")
        a(f"s_lshl_b32 s75, s2, 4\ns_add_u32 s75, s75, s74\ns_lshl_b32 s75, s75, 3\ns_add_u32 s75, s75, {DBG1:#x}")
        a("s_mov_b64 exec, 1\nv_mov_b32 v156, s68\nv_mov_b32 v157, s70\nv_mov_b32 v159, 0")
        a("buffer_store_dwordx2 v[156:157], v159, s[76:79], s75 offen")
    header(a, "prep_kernel")
    if TL: a("s_memrealtime s[68:69]")
    if dbg:
        a("s_memrealtime s[44:45]")
        stamp()
    a(f"s_cmp_ge_u32 s2, {P_GRID}")
    a("s_cbranch_scc1 P_end")
    a(f"s_cmp_ge_u32 s2, {NCH + 2*P_NG}")
    a("s_cbranch_scc1 P_weights")
    a(f"s_cmp_ge_u32 s2, {NCH}")
    a("s_cbranch_scc1 P_gemm")
    a("s_load_dwordx4 s[4:7], s[0:1], 16")
    a("s_load_dwordx2 s[8:9], s[0:1], 72")
    a("v_lshlrev_b32 v2, 4, v0")
    a("v_mov_b32 v4, 0\nv_mov_b32 v5, 0\nv_mov_b32 v6, 0\nv_mov_b32 v7, 0")
    a("ds_write_b128 v2, v[4:7]")
    a("ds_write_b128 v2, v[4:7] offset:10240")
    a("v_lshlrev_b32 v1, 4, v0")
    a(f"s_mul_i32 s3, s2, {CH*4}")
    a(f"s_mov_b32 s20, {MAGIC_G}")
    a("s_movk_i32 s21, 625")
    a(f"s_movk_i32 s28, {-S0}")
    a(f"s_movk_i32 s31, {-S1}")
    a("v_lshrrev_b32 v2, 6, v0")
    a("v_mov_b32 v3, 1")
    a("v_readfirstlane_b32 s22, v2")
    a("s_waitcnt lgkmcnt(0)")
    srd(a, 16, 6, 7, E * 4)
    a(f"v_cmp_gt_u32 vcc, {CH//8}, v0")
    a("s_mov_b64 exec, vcc")
    a(f"s_add_u32 s33, s3, {CH*2}")
    a("buffer_load_dwordx4 v[8:11], v1, s[16:19], s3 offen")
    a("buffer_load_dwordx4 v[12:15], v1, s[16:19], s33 offen")
    srd(a, 12, 4, 5, E * 4)
    a("buffer_load_dwordx4 v[16:19], v1, s[12:15], s3 offen")
    a("buffer_load_dwordx4 v[20:23], v1, s[12:15], s33 offen")
    srd(a, 24, 8, 9, WS_SZ)
    a("v_lshlrev_b32 v64, 2, v0")
    a("s_barrier")
    stamp()
    a("s_waitcnt vmcnt(2)")
    vD, vS, vBk, vAd, vRk, vRec, vT = 8, 16, 24, 32, 40, 48, 56
    for i in range(8): a(f"v_mul_u32_u24 v{vBk+i}, s20, v{vD+i}")
    for i in range(8): a(f"v_lshrrev_b32 v{vBk+i}, 23, v{vBk+i}")
    for i in range(8): a(f"v_mad_u32_u24 v{vRec+i}, v{vBk+i}, s21, 15")
    for i in range(8): a(f"v_lshrrev_b32 v{vRec+i}, 4, v{vRec+i}")
    for i in range(8): a(f"v_sub_u32 v{vRec+i}, v{vD+i}, v{vRec+i}")
    for i in range(8): a(f"v_add_u32 v{vT+i}, {64 - S0}, v{vRec+i}")
    for i in range(8): a(f"v_add_u32 v{vAd+i}, {64 - S0 - S1}, v{vRec+i}")
    for i in range(8): a(f"v_lshrrev_b32 v{vT+i}, 6, v{vT+i}")
    for i in range(8): a(f"v_lshrrev_b32 v{vAd+i}, 6, v{vAd+i}")
    for i in range(8): a(f"v_mad_i32_i24 v{vRec+i}, v{vT+i}, s28, v{vRec+i}")
    for i in range(8): a(f"v_mad_i32_i24 v{vRec+i}, v{vAd+i}, s31, v{vRec+i}")
    for i in range(8): a(f"v_add_u32 v{vT+i}, v{vT+i}, v{vAd+i}")
    for i in range(8): a(f"v_lshl_add_u32 v{vBk+i}, v{vT+i}, 8, v{vBk+i}")
    for i in range(8): a(f"v_lshrrev_b32 v{vT+i}, 1, v{vRec+i}")
    for i in range(8): a(f"v_xor_b32 v{vT+i}, v{vT+i}, v{vRec+i}")
    for i in range(8): a(f"v_and_b32 v{vT+i}, 4, v{vT+i}")
    for i in range(8): a(f"v_mul_u32_u24 v{vT+i}, 3, v{vT+i}")
    for i in range(8): a(f"v_xor_b32 v{vRec+i}, v{vRec+i}, v{vT+i}")
    a("s_waitcnt vmcnt(0)")
    stamp()
    a(f"s_movk_i32 s29, {6554}")
    for i in range(8): a(f"v_mul_u32_u24 v{vT+i}, s29, v{vS+i}")
    for i in range(8): a(f"v_lshrrev_b32 v{vT+i}, 24, v{vT+i}")
    for i in range(8): a(f"v_lshl_add_u32 v{vAd+i}, v{vBk+i}, 2, v{vT+i}")
    for i in range(8): a(f"v_lshlrev_b32 v{vAd+i}, 2, v{vAd+i}")
    for i in range(8): a(f"ds_add_rtn_u32 v{vRk+i}, v{vAd+i}, v3")
    for i in range(8): a(f"v_lshl_or_b32 v{vRec+i}, v{vRec+i}, 14, v{vS+i}")
    for i in range(8): a(f"v_add_u32 v{vT+i}, {(i & 3) + (CH // 2) * (i >> 2)}, v64")
    for i in range(8): a(f"v_lshl_or_b32 v{vRec+i}, v{vT+i}, 19, v{vRec+i}")
    a("s_waitcnt lgkmcnt(0)")
    stamp()
    a("s_barrier")
    c0, p0 = 68, 76
    a("s_cmp_ge_u32 s22, 6")
    a("s_cbranch_scc1 P_scan1_done")
    a("v_lshlrev_b32 v2, 5, v0")
    a(f"ds_read_b128 v[{c0}:{c0+3}], v2 offset:{P_HIST}")
    a(f"ds_read_b128 v[{c0+4}:{c0+7}], v2 offset:{P_HIST+16}")
    a("s_waitcnt lgkmcnt(0)")
    a(f"v_mov_b32 v{p0}, 0")
    a(f"v_mov_b32 v{p0+1}, v{c0}")
    for k in range(2, 8): a(f"v_add_u32 v{p0+k}, v{p0+k-1}, v{c0+k-1}")
    a(f"v_add_u32 v84, v{p0+7}, v{c0+7}")
    a("v_mov_b32 v85, v84")
    wave_scan(a, 85)
    a("v_readlane_b32 s23, v85, 63")
    a("v_sub_u32 v85, v85, v84")
    a("s_lshl_b32 s30, s22, 2")
    a("v_mov_b32 v87, s30")
    a("v_mov_b32 v86, s23")
    a(f"ds_write_b32 v87, v86 offset:{P_TOT}")
    a("s_waitcnt lgkmcnt(0)")
    a("P_scan1_done:")
    a("s_barrier")
    a("s_cmp_ge_u32 s22, 6")
    a("s_cbranch_scc1 P_noscan")
    a("v_mov_b32 v87, 0")
    a(f"ds_read_b128 v[88:91], v87 offset:{P_TOT}")
    a(f"ds_read_b64 v[92:93], v87 offset:{P_TOT+16}")
    a("s_waitcnt lgkmcnt(0)")
    a("s_mov_b32 s30, 0")
    for k in range(5):
        a(f"v_readfirstlane_b32 s23, v{88+k}")
        a(f"s_cmp_gt_u32 s22, {k}")
        a("s_nop 1")
        a("s_cselect_b32 s23, s23, 0")
        a("s_add_u32 s30, s30, s23")
    a("v_add_u32 v85, s30, v85")
    for k in range(8): a(f"v_add_u32 v{p0+k}, v{p0+k}, v85")
    a(f"ds_write_b128 v2, v[{p0}:{p0+3}] offset:{P_START}")
    a(f"ds_write_b128 v2, v[{p0+4}:{p0+7}] offset:{P_START+16}")
    for b in range(2):
        cc = c0 + 4*b; pp = p0 + 4*b; o = 88 + 2*b
        a(f"v_add3_u32 v86, v{cc}, v{cc+1}, v{cc+2}")
        a(f"v_add_u32 v86, v86, v{cc+3}")
        a(f"v_lshl_or_b32 v{o}, v86, 16, v{pp}")
        for k in range(3): a(f"v_min_u32 v{cc+k}, 0xff, v{cc+k}")
        a(f"v_lshl_or_b32 v{o+1}, v{cc+1}, 8, v{cc}")
        a(f"v_lshl_or_b32 v{o+1}, v{cc+2}, 16, v{o+1}")
    a(f"s_mul_i32 s23, s2, {NB*8}")
    a("v_lshlrev_b32 v86, 4, v0")
    a(f"buffer_store_dwordx4 v[88:91], v86, s[24:27], s23 offen offset:{WS_T} {SF}")
    a("s_waitcnt lgkmcnt(0)")
    a("P_noscan:")
    a("s_barrier")
    stamp()
    for i in range(8): a(f"ds_read_b32 v{vT+i}, v{vAd+i} offset:{P_START}")
    a("s_waitcnt lgkmcnt(0)")
    for i in range(8): a(f"v_add_lshl_u32 v{vT+i}, v{vT+i}, v{vRk+i}, 2")
    for i in range(8): a(f"ds_write_b32 v{vT+i}, v{vRec+i} offset:{P_SORT}")
    a("s_waitcnt lgkmcnt(0)")
    a("s_barrier")
    a(f"ds_read_b128 v[4:7], v1 offset:{P_SORT}")
    a(f"ds_read_b128 v[8:11], v1 offset:{P_SORT + CH*2}")
    a(f"s_add_u32 s3, s3, {WS_REC}")
    a(f"s_add_u32 s33, s3, {CH*2}")
    a("s_waitcnt lgkmcnt(1)")
    a(f"buffer_store_dwordx4 v[4:7], v1, s[24:27], s3 offen {SF}")
    a("s_waitcnt lgkmcnt(0)")
    a(f"buffer_store_dwordx4 v[8:11], v1, s[24:27], s33 offen {SF}")
    stamp()
    if dbg: a("s_waitcnt vmcnt(0)")
    dump(1)
    tl_end()
    a("s_endpgm")
    a("P_gemm:")
    nst[0] = 1
    a("s_load_dwordx2 s[4:5], s[0:1], 0")
    a("s_load_dwordx4 s[8:11], s[0:1], 32")
    a("s_load_dwordx2 s[34:35], s[0:1], 48")
    a("s_load_dwordx2 s[6:7], s[0:1], 72")
    a("v_lshrrev_b32 v2, 6, v0")
    a("v_and_b32 v1, 63, v0")
    a("v_readfirstlane_b32 s22, v2")
    a(f"s_sub_u32 s3, s2, {NCH}")
    a(f"s_cmp_ge_u32 s3, {P_NG}")
    a("s_cselect_b32 s36, 1, 0")
    a(f"s_cselect_b32 s37, {P_NG}, 0")
    a("s_sub_u32 s3, s3, s37")
    a("s_cmp_ge_u32 s22, 8")
    a("s_cbranch_scc1 P_pf" if (flag("epf") or flag("cpf")) else "s_cbranch_scc1 P_end")
    a("s_lshr_b32 s23, s22, 2")
    a("s_and_b32 s28, s22, 3")
    a("s_lshl_b32 s3, s3, 2")
    a("s_add_u32 s3, s3, s23")
    a("s_lshl_b32 s29, s3, 5")
    a("v_lshrrev_b32 v3, 4, v1")
    a("v_and_b32 v4, 15, v1")
    a("v_lshlrev_b32 v5, 2, v3")
    a("v_xor_b32 v5, v5, v4")
    a("v_lshlrev_b32 v5, 4, v5")
    a("v_lshl_add_u32 v5, v3, 8, v5")
    a("v_xor_b32 v4, v4, v3")
    a("v_lshlrev_b32 v7, 4, v4")
    a("v_mov_b32 v9, v7")
    a("s_waitcnt lgkmcnt(0)")
    a("s_cmp_eq_u32 s36, 0")
    a("s_cselect_b32 s30, 32768, 0")
    a("s_cselect_b32 s38, s10, s8\ns_cselect_b32 s39, s11, s9")
    a("s_add_u32 s16, s34, s30\ns_addc_u32 s17, s35, 0")
    a("s_cmp_eq_u32 s23, 1")
    a("s_cselect_b32 s16, s38, s16\ns_cselect_b32 s17, s39, s17")
    a("s_and_b32 s17, s17, 0xffff")
    a("s_mov_b32 s18, 32768\ns_mov_b32 s19, 0x20000")
    srd(a, 12, 4, 5, N, stride=256)
    a("s_lshl_b32 s30, s28, 3")
    a("s_add_u32 s30, s30, s29")
    a(f"s_mul_i32 s31, s23, {XSLOT}")
    a(f"s_mul_i32 s33, s28, {2*XGRP}")
    a("s_add_u32 s31, s31, s33")
    for ps in range(2):
        a("v_add_u32 v6, s30, v3")
        a("v_add_u32 v8, 4, v6")
        a(f"s_add_u32 m0, s31, {G_X + ps*2*XSLOT}")
        a("s_add_u32 s30, s30, 64")
        a("buffer_load_dwordx4 v[6:7], s[12:15], 0 idxen offen lds")
        a(f"s_add_u32 m0, s31, {G_X + ps*2*XSLOT + XGRP}")
        a("s_nop 0")
        a("buffer_load_dwordx4 v[8:9], s[12:15], 0 idxen offen lds")
    a("s_lshl_b32 s30, s28, 13")
    a("s_lshl_b32 s31, s23, 15")
    a("s_add_u32 s31, s31, s30")
    for half in range(2):
        a(f"s_add_u32 m0, s31, {half*4096}")
        a(f"s_add_u32 s33, s30, {half*4096}")
        for ii in range(4):
            a(f"buffer_load_dwordx4 v5, s[16:19], s33 offen offset:{ii*1024} lds")
    vE5, vH, vX0, vX1, vWt = 10, 11, 12, 13, 14
    a(f"v_and_b32 v{vE5}, 31, v1")
    a(f"v_lshrrev_b32 v{vH}, 5, v1")
    xfrag_addr(a, vX0, vX1, vE5, vH, 15, 16, 17)
    a(f"s_mul_i32 s30, s23, {XSLOT}")
    a(f"s_add_u32 s30, s30, {G_X}")
    a(f"v_add_u32 v{vX0}, s30, v{vX0}")
    a(f"v_add_u32 v{vX1}, s30, v{vX1}")
    a("v_lshrrev_b32 v15, 2, v1\nv_and_b32 v15, 3, v15")
    a("s_lshl_b32 s30, s28, 2")
    a("v_lshlrev_b32 v16, 2, v15")
    a("v_xor_b32 v16, s30, v16")
    a("v_lshrrev_b32 v17, 4, v1\nv_and_b32 v17, 1, v17")
    a("v_lshl_add_u32 v16, v17, 1, v16")
    a("v_lshrrev_b32 v17, 1, v1\nv_and_b32 v17, 1, v17")
    a("v_add_u32 v16, v16, v17")
    a("v_lshlrev_b32 v16, 4, v16")
    a("v_and_b32 v17, 1, v1")
    a("v_lshl_add_u32 v16, v17, 3, v16")
    a(f"v_lshl_add_u32 v15, v{vH}, 3, v15")
    a(f"v_lshl_add_u32 v{vWt}, v15, 8, v16")
    srd(a, 24, 6, 7, N * 512, add=WS_TAB)
    a("s_cmp_eq_u32 s36, 0")
    a("s_cbranch_scc1 P_g_bvsrd")
    srd(a, 24, 6, 7, N * 256, add=WS_XA)
    srd(a, 40 if not dbg else 64, 6, 7, N * 256, add=WS_XU)
    a("P_g_bvsrd:")
    sXU = 40 if not dbg else 64
    f0, f1, fX, d0, d1 = 32, 64, 96, 128, 144
    a("s_lshl_b32 s31, s22, 12")
    a(f"s_add_u32 s31, s31, {G_ST}")
    a(f"v_and_b32 v15, 7, v{vE5}")
    a(f"v_lshlrev_b32 v16, 1, v{vH}")
    a("v_xor_b32 v16, v16, v15")
    a("v_lshlrev_b32 v16, 4, v16")
    a(f"v_lshl_add_u32 v16, v{vE5}, 7, v16")
    a("v_add_u32 v16, s31, v16")
    a("v_lshrrev_b32 v20, 3, v1")
    a("v_and_b32 v21, 7, v1")
    a("v_xor_b32 v22, v21, v20")
    a("v_lshlrev_b32 v22, 4, v22")
    a("v_lshl_add_u32 v22, v20, 7, v22")
    a("v_add_u32 v22, s31, v22")
    a("v_add_u32 v20, s29, v20")
    a("v_lshlrev_b32 v20, 9, v20")
    a("v_lshl_add_u32 v20, v21, 4, v20")
    a("s_lshl_b32 s30, s28, 7")
    a("v_add_u32 v20, s30, v20")
    a(f"v_lshrrev_b32 v23, 2, v{vE5}")
    a("v_and_b32 v23, 3, v23")
    a("v_lshlrev_b32 v23, 4, v23")
    a(f"v_lshl_add_u32 v23, v{vE5}, 6, v23")
    a(f"v_lshl_add_u32 v23, v{vH}, 3, v23")
    a("v_add_u32 v23, s31, v23")
    a("v_lshrrev_b32 v24, 4, v1\nv_and_b32 v24, 3, v24")
    a("v_and_b32 v25, 3, v1")
    a("v_xor_b32 v24, v24, v25")
    a("v_lshlrev_b32 v24, 4, v24")
    a("v_lshrrev_b32 v26, 2, v1")
    a("v_lshl_add_u32 v24, v26, 6, v24")
    a("v_add_u32 v24, s31, v24")
    a("v_add_u32 v26, s29, v26")
    a("v_lshlrev_b32 v26, 8, v26")
    a("v_lshl_add_u32 v26, v25, 4, v26")
    a("s_lshl_b32 s30, s28, 6")
    a("v_add_u32 v26, s30, v26")
    stamp()
    a("s_waitcnt vmcnt(0)")
    stamp()
    a("s_barrier")
    stamp()
    def xreads(ps):
        for s_ in range(8):
            ad = vX0 if s_ % 2 == 0 else vX1
            a(f"ds_read_b128 v[{fX+4*s_}:{fX+4*s_+3}], v{ad} offset:{ps*2*XSLOT + (s_>>1)*64}")
    for s in range(8):
        for part in range(2):
            a(f"ds_read_b64_tr_b16 v[{f0+4*s+2*part}:{f0+4*s+2*part+1}], v{vWt} offset:{G_W0 + (16*s+4*part)*256}")
        if s == 5: a("s_waitcnt lgkmcnt(4)")
    a("s_waitcnt lgkmcnt(4)")
    xreads(0)
    a("s_waitcnt lgkmcnt(4)")
    a(f"s_mov_b32 s30, {NEG_LOG2E:#x}")
    for ps in range(2):
        if ps == 0:
            for s_ in range(8):
                if s_ == 4: a("s_waitcnt lgkmcnt(6)")
                for part in range(2):
                    a(f"ds_read_b64_tr_b16 v[{f1+4*s_+2*part}:{f1+4*s_+2*part+1}], v{vWt} offset:{G_W1 + (16*s_+4*part)*256}")
                if s_ < 4:
                    if s_ == 0: pass
                    a(mf(d0, f0 + 4*s_, fX + 4*s_, None if s_ == 0 else d0))
            a("s_waitcnt lgkmcnt(8)")
            for s_ in range(4, 8): a(mf(d0, f0 + 4*s_, fX + 4*s_, d0))
            a("s_waitcnt lgkmcnt(0)")
        else:
            a("s_waitcnt lgkmcnt(0)")
            for s_ in range(8): a(mf(d0, f0 + 4*s_, fX + 4*s_, None if s_ == 0 else d0))
        for s_ in range(8):
            a(mf(d1, f1 + 4*s_, fX + 4*s_, None if s_ == 0 else d1))
        a("s_nop 3")
        for r in range(16): a(f"v_mul_f32 v{d0+r}, s30, v{d0+r}")
        for r in range(8): a(f"v_cvt_pk_bf16_f32 v{d0+r}, v{d0+2*r}, v{d0+2*r+1}")
        for r in range(8): a(f"v_cvt_pk_bf16_f32 v{d0+8+r}, v{d1+2*r}, v{d1+2*r+1}")
        a("s_cmp_eq_u32 s36, 0")
        a(f"s_cbranch_scc0 P_g_au{ps}")
        a(f"ds_write_b128 v16, v[{d0}:{d0+3}]")
        a("v_xor_b32 v17, 16, v16")
        a(f"ds_write_b128 v17, v[{d0+4}:{d0+7}]")
        a("v_xor_b32 v18, 64, v16")
        a(f"ds_write_b128 v18, v[{d0+8}:{d0+11}]")
        a("v_xor_b32 v19, 64, v17")
        a(f"ds_write_b128 v19, v[{d0+12}:{d0+15}]")
        for i in range(4):
            a(f"ds_read_b128 v[{d1+4*i}:{d1+4*i+3}], v22 offset:{i*1024}")
        if ps == 0:
            a("s_waitcnt lgkmcnt(4)")
            xreads(1)
        a(f"s_mov_b32 s33, {ps*64*512}")
        for i in range(4):
            a(f"s_waitcnt lgkmcnt({3-i + (8 if ps == 0 else 0)})")
            a(f"buffer_store_dwordx4 v[{d1+4*i}:{d1+4*i+3}], v20, s[24:27], s33 offen {SF}")
            if i < 3: a("s_add_u32 s33, s33, 4096")
        a(f"s_branch P_g_done{ps}")
        a(f"P_g_au{ps}:")
        for j in range(4):
            if j: a(f"v_xor_b32 v17, {16*j}, v23")
            ad = 23 if j == 0 else 17
            a(f"ds_write_b64 v{ad}, v[{d0+2*j}:{d0+2*j+1}]")
            a(f"ds_write_b64 v{ad}, v[{d0+8+2*j}:{d0+8+2*j+1}] offset:2048")
        for i in range(4):
            a(f"ds_read_b128 v[{d1+4*i}:{d1+4*i+3}], v24 offset:{i*1024}")
        if ps == 0:
            a("s_waitcnt lgkmcnt(4)")
            xreads(1)
        a(f"s_mov_b32 s33, {ps*64*256}")
        for i in range(4):
            a(f"s_waitcnt lgkmcnt({3-i + (8 if ps == 0 else 0)})")
            sr = 24 if i < 2 else sXU
            a(f"buffer_store_dwordx4 v[{d1+4*i}:{d1+4*i+3}], v26, s[{sr}:{sr+3}], s33 offen offset:0 {SF}")
            if i == 0: a("s_add_u32 s33, s33, 4096")
            if i == 1: a("s_sub_u32 s33, s33, 4096")
            if i == 2: a("s_add_u32 s33, s33, 4096")
        a(f"P_g_done{ps}:")
    stamp()
    if dbg: a("s_waitcnt vmcnt(0)")
    dump(2)
    tl_end()
    a("s_endpgm")
    if flag("cpf"):
        a("P_pf:")
        a("s_cmp_lg_u32 s22, 8")
        a("s_cbranch_scc1 P_end")
        a("s_getpc_b64 s[12:13]")
        a("P_pc:")
        a(f"s_add_u32 s12, s12, {KNAME}-P_pc")
        a("s_addc_u32 s13, s13, 0")
        a("v_lshlrev_b32 v2, 6, v1")
        a("v_mov_b32 v3, 0")
        a("v_mov_b32 v5, s13")
        a("v_add_co_u32 v4, vcc, s12, v2")
        a("v_addc_co_u32 v5, vcc, v5, v3, vcc")
        for i in range(3):
            if i == 2:
                a(f"s_mov_b32 s14, (M_end-{KNAME}-8192+64)>>6")
                a("v_cmp_gt_u32 vcc, s14, v1")
                a("s_mov_b64 exec, vcc")
                a("s_cbranch_execz P_pf_done")
            a(f"global_load_dword v{8+i}, v[4:5], off")
            if i < 2:
                a("v_add_co_u32 v4, vcc, 0x1000, v4")
                a("v_addc_co_u32 v5, vcc, v5, v3, vcc")
        a("P_pf_done:")
        a("s_waitcnt vmcnt(0)")
        a("s_endpgm")
    if flag("epf"):
        a("P_pf:")
        a("s_load_dwordx2 s[12:13], s[0:1], 8")
        a(f"s_sub_u32 s3, s2, {NCH}")
        a("s_lshl_b32 s3, s3, 1")
        a("s_add_u32 s3, s3, s22")
        a("s_sub_u32 s3, s3, 8")
        a("s_lshl_b32 s3, s3, 15")
        a("v_lshlrev_b32 v2, 4, v1")
        a("s_waitcnt lgkmcnt(0)")
        a("s_and_b32 s13, s13, 0xffff")
        a(f"s_mov_b32 s14, {E*32}")
        a("s_mov_b32 s15, 0x20000")
        for i in range(32):
            a(f"buffer_load_dwordx4 v[{8+4*(i%8)}:{11+4*(i%8)}], v2, s[12:15], s3 offen offset:{(i%4)*1024} {opt('epfflag', '')}")
            if i % 4 == 3: a("s_add_u32 s3, s3, 4096")
        a("s_endpgm")
    a("P_weights:")
    a("s_load_dwordx2 s[8:9], s[0:1], 48")
    a("s_load_dwordx2 s[10:11], s[0:1], 72")
    a("v_lshrrev_b32 v2, 6, v0")
    a("v_and_b32 v1, 63, v0")
    a("v_readfirstlane_b32 s3, v2")
    a("s_nop 0")
    a("s_cmp_ge_u32 s3, 4")
    a("s_cbranch_scc1 P_end")
    a("s_waitcnt lgkmcnt(0)")
    srd(a, 12, 8, 9, 272 * 256)
    a("s_lshl_b32 s28, s3, 6")
    a(f"s_add_u32 s28, s28, {256*256}")
    a("v_lshrrev_b32 v2, 5, v1")
    a("v_lshlrev_b32 v2, 11, v2")
    a("v_and_b32 v3, 31, v1")
    a("v_lshl_add_u32 v2, v3, 1, v2")
    for j in range(8):
        a(f"buffer_load_ushort v{8+j}, v2, s[12:15], s28 offen offset:{j*256}")
    srd(a, 16, 10, 11, WS_SZ)
    a("s_lshl_b32 s3, s3, 10")
    a(f"s_add_u32 s3, s3, {WS_W}")
    a("v_lshlrev_b32 v1, 4, v1")
    a(f"s_mov_b32 s29, {NEG_LOG2E:#x}")
    a("s_waitcnt vmcnt(0)")
    for j in range(8): a(f"v_lshlrev_b32 v{8+j}, 16, v{8+j}")
    for j in range(8): a(f"v_mul_f32 v{8+j}, s29, v{8+j}")
    for j in range(4): a(f"v_cvt_pk_bf16_f32 v{16+j}, v{8+2*j}, v{9+2*j}")
    a("buffer_store_dwordx4 v[16:19], v1, s[16:19], s3 offen")
    a("P_end:")
    a("s_endpgm")
    return a.text() + descriptor("prep_kernel", 160, 96 if flag("tl") else 80 if dbg else 48)

CAP = 640
NPAD = 128
L_GR = 0
L_XA = L_GR + 4 * 2 * 4096
L_ER = L_XA + 4096
L_OR = L_ER + 3 * 1024
L_LS = L_OR + 3 * 1024
LSZ = (CAP + NPAD) * 4
L_LE = L_LS + LSZ
L_LQ = L_LE + LSZ
M_LDS = (L_LQ + CAP + NPAD + 63) // 64 * 64
AGG_STRIDE = 528

vLANE, vE5, vH = 1, 2, 3
vG = 4
vEA, vO0, vT0, vT1 = 8, 9, 10, 11
vLs, vLe, vLq = 12, 13, 14
pG = 16
pE = 24
vQ, vOHa, vOHd = 26, 27, 28
vK = 29
vT = 32
vC, vXA, vI, vACC, vZ, vHV = 56, 60, 64, 72, 88, 104
vFX, vFH, vAE, vAO, vSO, vMSG, vXU = 120, 128, 136, 140, 144, 152, 160
NVGPR = 164
U_REC = 8

def main_kernel(dbg=False):
    a = A()
    nst = [0]
    def stamp():
        if not dbg: return
        a("s_waitcnt lgkmcnt(0)")
        a("s_memtime s[58:59]")
        a("s_waitcnt lgkmcnt(0)")
        a(f"s_mov_b32 s{64+nst[0]}, s58")
        nst[0] += 1
    PRIO = opt("prio", "pair")
    header(a, KNAME)
    a(f"s_cmp_ge_u32 s2, {NB}")
    a("s_cbranch_scc1 M_end")
    a("s_load_dwordx2 s[6:7], s[0:1], 8")
    a("s_load_dwordx2 s[8:9], s[0:1], 56")
    a("s_load_dwordx2 s[10:11], s[0:1], 72")
    if flag("tl"): a("s_memrealtime s[68:69]\ns_load_dwordx2 s[72:73], s[0:1], 64")
    if PRIO != "none": a("s_setprio 3")
    if dbg: a("s_memrealtime s[60:61]")
    stamp()
    t0, t1, t2, t3 = vT, vT + 1, vT + 2, vT + 3
    vTv = vT + 4
    a(f"v_lshrrev_b32 v{t0}, 6, v0")
    a(f"v_and_b32 v{vLANE}, 63, v0")
    a(f"v_readfirstlane_b32 s32, v{t0}")
    a(f"v_mul_u32_u24 v{t1}, {NB*8}, v{vLANE}")
    a("s_lshl_b32 s38, s2, 3")
    a("s_and_b32 s33, s2, 255")
    a("s_lshr_b32 s39, s2, 8")
    a("s_mul_i32 s33, s33, 625")
    a("s_add_u32 s34, s33, 640")
    a("s_add_u32 s33, s33, 15")
    a("s_lshr_b32 s33, s33, 4")
    a("s_lshr_b32 s34, s34, 4")
    a("s_sub_u32 s34, s34, s33")
    a(f"s_sub_u32 s34, s34, {S0 + S1}")
    a("s_cmp_eq_u32 s39, 1")
    a(f"s_cselect_b32 s34, {S1}, s34")
    a(f"s_cselect_b32 s42, {S0}, {S0 + S1}")
    a("s_cmp_eq_u32 s39, 0")
    a(f"s_cselect_b32 s34, {S0}, s34")
    a("s_cselect_b32 s42, 0, s42")
    a("s_add_u32 s33, s33, s42")
    a(f"v_and_b32 v{vE5}, 31, v{vLANE}")
    a(f"v_lshrrev_b32 v{vH}, 5, v{vLANE}")
    a("s_waitcnt lgkmcnt(0)")
    srd(a, 20, 10, 11, WS_SZ)
    a("s_cmp_lg_u32 s32, 0")
    a("s_cbranch_scc1 M_noT")
    a(f"buffer_load_dwordx2 v[{vTv}:{vTv+1}], v{t1}, s[20:23], s38 offen")
    a("M_noT:")
    srd(a, 16, 6, 7, E, stride=32)
    srd(a, 24, 10, 11, N, stride=512, add=WS_TAB)
    srd(a, 28, 8, 9, N * 256)
    srd(a, 12, 10, 11, N, stride=256, add=WS_XA)
    srd(a, 44, 10, 11, N * 256, add=WS_XU)
    a(f"v_lshrrev_b32 v{t0}, 4, v{vLANE}")
    a(f"v_and_b32 v{t1}, 7, v{vLANE}")
    a(f"v_xor_b32 v{t1}, v{t1}, v{t0}")
    a("s_lshl_b32 s38, s32, 7")
    a(f"v_lshl_add_u32 v{pG+1}, v{t1}, 4, s38")
    a(f"v_xor_b32 v{pG+3}, 64, v{pG+1}")
    a(f"v_mov_b32 v{pG+5}, v{pG+1}")
    a(f"v_mov_b32 v{pG+7}, v{pG+3}")
    a(f"v_lshrrev_b32 v{t0}, 1, v{vE5}")
    a(f"v_and_b32 v{t0}, 7, v{t0}")
    a(f"v_xor_b32 v{t0}, v{t0}, v{vH}")
    a(f"v_lshlrev_b32 v{t0}, 4, v{t0}")
    a(f"v_lshl_add_u32 v{t0}, v{vE5}, 7, v{t0}")
    a("s_lshl_b32 s40, s32, 13")
    a(f"v_add_u32 v{vG}, s40, v{t0}")
    for k in range(1, 4):
        a(f"v_xor_b32 v{vG+k}, {32*k}, v{vG}")
    a("s_lshl_b32 s41, s32, 8")
    a(f"s_add_u32 s41, s41, {L_ER}")
    a(f"v_lshlrev_b32 v{t1}, 5, v{vE5}")
    a(f"v_bfe_u32 v{t0}, v{vE5}, 3, 1")
    a(f"v_xor_b32 v{t0}, v{t0}, v{vH}")
    a(f"v_lshl_add_u32 v{t0}, v{t0}, 4, v{t1}")
    a(f"v_add_u32 v{vEA}, {L_ER}, v{t0}")
    a(f"v_lshl_add_u32 v{t0}, v{vH}, 4, v{t1}")
    a(f"v_add_u32 v{vO0}, {L_OR}, v{t0}")
    a(f"v_bfe_u32 v{t1}, v{vLANE}, 2, 2")
    a(f"v_lshl_add_u32 v{t1}, v{vH}, 2, v{t1}")
    a(f"v_and_b32 v{t0}, 3, v{vLANE}")
    a(f"v_lshlrev_b32 v{t0}, 3, v{t0}")
    a(f"v_lshl_add_u32 v{t0}, v{t1}, 5, v{t0}")
    a(f"v_add_u32 v{vT0}, {L_OR}, v{t0}")
    a("s_and_b32 s38, s32, 1")
    a(f"v_and_b32 v{t0}, 1, v{vLANE}")
    a(f"v_xor_b32 v{t0}, s38, v{t0}")
    a(f"v_lshlrev_b32 v{pE+1}, 4, v{t0}")
    a(f"v_and_b32 v{t0}, 7, v{vLANE}")
    a("s_lshl_b32 s38, s32, 3")
    a(f"v_add_u32 v{t0}, s38, v{t0}")
    a(f"v_lshlrev_b32 v{t1}, 5, v{t0}")
    a(f"v_bfe_u32 v{t2}, v{vLANE}, 3, 1")
    for k in range(3):
        s_set, s_clr = (k + 2) % 3, k
        a(f"v_mul_i32_i24 v{t3}, {(s_clr - s_set) * 1024}, v{t2}")
        a(f"v_add_u32 v{t3}, {s_set*1024 + L_OR}, v{t3}")
        a(f"v_add_u32 v{vK+k}, v{t3}, v{t1}")
    a(f"v_sub_u32 v{t3}, 1, v{t2}")
    a(f"v_mul_u32_u24 v{vOHd}, 0x3f80, v{t3}")
    vLq0 = vT + 22
    a(f"v_lshlrev_b32 v{t2}, 6, v{t2}")
    a(f"v_sub_u32 v{t0}, v{t0}, v{t2}")
    a(f"v_add_u32 v{vLq0}, {L_LQ + 64}, v{t0}")
    a(f"v_and_b32 v{t0}, 1, v{vE5}")
    a(f"v_lshlrev_b32 v{t0}, 4, v{t0}")
    a(f"v_mov_b32 v{t1}, 0x3f80")
    a(f"v_lshlrev_b32 v{t0}, v{t0}, v{t1}")
    a(f"v_bfe_u32 v{t1}, v{vE5}, 1, 1")
    a(f"v_lshrrev_b32 v{t2}, 2, v{vE5}")
    a(f"v_and_b32 v{t3}, 2, v{t2}")
    a(f"v_or_b32 v{t1}, v{t1}, v{t3}")
    a(f"v_and_b32 v{t2}, 1, v{t2}")
    a(f"v_lshl_add_u32 v{t1}, v{t2}, 2, v{t1}")
    a(f"v_lshrrev_b32 v{t2}, 4, v{vE5}")
    a(f"v_xor_b32 v{t2}, v{t2}, v{vH}")
    a(f"v_lshl_add_u32 v{t1}, v{t2}, 3, v{t1}")
    for g in range(2):
        pairs = ["vcc", "s[48:49]", "s[50:51]", "s[54:55]"]
        for k in range(4): a(f"v_cmp_eq_u32 {pairs[k]}, {4*g+k}, v{t1}")
        for k in range(4): a(f"v_cndmask_b32 v{vI+4*g+k}, 0, v{t0}, {pairs[k]}")
    for r in range(8):
        a(f"v_mov_b32 v{vACC+r}, 0")
    vRecI, vPos0, vCnt, vEb = vT + 4, vT + 5, vT + 6, vT + 7
    vc = vHV
    vp = vHV + 4
    tb = vZ
    L_TB = L_GR
    a("s_cmp_lg_u32 s32, 0")
    a("s_cbranch_scc1 M_scan_done")
    a(f"v_mul_u32_u24 v{t3}, {CH}, v{vLANE}")
    a("s_waitcnt vmcnt(0)")
    stamp()
    a(f"v_lshrrev_b32 v{t1}, 16, v{vTv}")
    a(f"v_and_b32 v{vc}, 0xff, v{vTv+1}")
    a(f"v_bfe_u32 v{vc+1}, v{vTv+1}, 8, 8")
    a(f"v_bfe_u32 v{vc+2}, v{vTv+1}, 16, 8")
    a(f"v_add3_u32 v{t0}, v{vc}, v{vc+1}, v{vc+2}")
    a(f"v_sub_u32 v{vc+3}, v{t1}, v{t0}")
    for k in range(4): a(f"v_mov_b32 v{vp+k}, v{vc+k}")
    a(f"v_and_b32 v{t2}, 0xffff, v{vTv}")
    for sh in (1, 2, 4, 8):
        for k in range(4):
            a(f"v_add_u32_dpp v{vp+k}, v{vp+k}, v{vp+k} row_shr:{sh} row_mask:0xf bank_mask:0xf bound_ctrl:1")
    for k in range(4): a(f"v_add_u32_dpp v{vp+k}, v{vp+k}, v{vp+k} row_bcast:15 row_mask:0xa bank_mask:0xf")
    for k in range(4): a(f"v_add_u32_dpp v{vp+k}, v{vp+k}, v{vp+k} row_bcast:31 row_mask:0xc bank_mask:0xf")
    a(f"v_add_u32 v{tb}, v{t3}, v{t2}")
    for k in range(4): a(f"v_readlane_b32 s{48+k}, v{vp+k}, 63")
    for k in range(1, 4): a(f"v_add_u32 v{tb+4*k}, v{tb+4*k-4}, v{vc+k-1}")
    a("s_add_u32 s49, s49, s48")
    a("s_add_u32 s50, s50, s49")
    a("s_add_u32 s35, s51, s50")
    for k in range(4): a(f"v_sub_u32 v{tb+4*k+1}, v{vp+k}, v{vc+k}")
    for k in range(1, 4): a(f"v_add_u32 v{tb+4*k+1}, s{47+k}, v{tb+4*k+1}")
    for k in range(4): a(f"v_mov_b32 v{tb+4*k+2}, v{vc+k}")
    for k in range(4): a(f"v_mov_b32 v{tb+4*k+3}, v{t3}")
    wa = vHV + 8
    a(f"v_and_b32 v{wa+1}, 3, v{tb}")
    a(f"v_and_b32 v{wa}, 0xfffffffc, v{tb}")
    a(f"v_lshlrev_b32 v{wa}, 2, v{wa}")
    a(f"v_lshrrev_b32 v{t1}, 16, v{vTv}")
    a(f"v_add_u32 v{wa+1}, v{wa+1}, v{t1}")
    a(f"v_cmp_lt_u32 vcc, 32, v{wa+1}")
    a(f"s_cmp_le_u32 s35, {CAP}")
    a("s_cselect_b32 s54, 1, 0")
    a("s_cmp_eq_u64 vcc, 0")
    a("s_cselect_b32 s54, s54, 0")
    a(f"v_lshlrev_b32 v{t0}, 6, v{vLANE}")
    a(f"v_lshlrev_b32 v{t3}, 3, v{vLANE}")
    a(f"v_mov_b32 v{wa+2}, s35")
    a(f"v_mov_b32 v{wa+3}, s54")
    a(f"v_mov_b32 v{t2}, {L_TB + 4096}")
    for k in range(4): a(f"ds_write_b128 v{t0}, v[{tb+4*k}:{tb+4*k+3}] offset:{L_TB+16*k}")
    a(f"ds_write_b64 v{t3}, v[{wa}:{wa+1}] offset:{L_TB + 4160}")
    a(f"ds_write_b64 v{t2}, v[{wa+2}:{wa+3}]")
    a("s_waitcnt lgkmcnt(0)")
    a("M_scan_done:")
    if dbg: nst[0] = 2
    a(f"v_lshlrev_b32 v{t0}, 4, v0")
    a(f"v_mov_b32 v{t2}, {L_TB + 4096}")
    a("s_barrier")
    wb = vHV
    a(f"ds_read_b128 v[{vRecI}:{vRecI+3}], v{t0} offset:{L_TB}")
    a(f"ds_read_b64 v[{wb+4}:{wb+5}], v{t2}")
    a(f"v_lshrrev_b32 v{t1}, 3, v{vLANE}")
    a("s_lshl_b32 s38, s32, 7")
    a(f"v_lshl_add_u32 v{t1}, v{t1}, 3, s38")
    a(f"ds_read_b64 v[{wb}:{wb+1}], v{t1} offset:{L_TB + 4160}")
    a(f"ds_read_b64 v[{wb+2}:{wb+3}], v{t1} offset:{L_TB + 4160 + 64}")
    a(f"v_and_b32 v{t3}, 7, v{vLANE}")
    a(f"v_lshlrev_b32 v{t3}, 2, v{t3}")
    a("s_waitcnt lgkmcnt(0)")
    a(f"v_readfirstlane_b32 s35, v{wb+4}")
    a(f"v_readfirstlane_b32 s54, v{wb+5}")
    stamp()
    def side_loads():
        b0 = vMSG
        a(f"v_lshlrev_b32 v{b0+2}, 4, v{vLANE}")
        a("s_lshl_b32 s42, s32, 10")
        a(f"s_add_u32 m0, s42, {L_XA}")
        a(f"s_add_u32 s42, s42, {WS_W}")
        a(f"buffer_load_dwordx4 v[{vC}:{vC+3}], v{b0+2}, s[20:23], s42 offen")
        a(f"v_lshrrev_b32 v{b0}, 4, v0")
        a(f"v_add_u32 v{b0}, s33, v{b0}")
        a(f"v_and_b32 v{b0+1}, 15, v0")
        a(f"v_lshlrev_b32 v{b0+1}, 4, v{b0+1}")
        a(f"buffer_load_dwordx4 v[{b0}:{b0+1}], s[12:15], 0 idxen offen lds")
    def xu_load():
        a(f"v_lshrrev_b32 v{vOHa}, 4, v0")
        a(f"v_add_u32 v{vOHa}, s33, v{vOHa}")
        a(f"v_lshlrev_b32 v{vOHa}, 8, v{vOHa}")
        a(f"v_and_b32 v{vXU}, 15, v0")
        a(f"v_lshl_add_u32 v{vOHa}, v{vXU}, 4, v{vOHa}")
        a(f"buffer_load_dwordx4 v[{vXU}:{vXU+3}], v{vOHa}, s[44:47], 0 offen")
    a("s_mov_b32 s36, 0")
    a("s_mov_b32 s43, 1")
    a("s_mov_b32 s53, 1")
    a("s_cmp_eq_u32 s35, 0")
    a("s_cbranch_scc1 M_empty")

    a("s_cmp_eq_u32 s54, 0")
    a("s_cbranch_scc1 M_batch")
    L_RW = L_GR + 8192
    a(f"s_mov_b32 s52, {WS_REC}")
    a("s_lshl_b32 s38, s32, 11")
    for i in range(2):
        a(f"v_cmp_lt_u32 vcc, v{t3}, v{wb+2*i+1}")
        a(f"v_lshl_add_u32 v{wb+2*i}, v{t3}, 2, v{wb+2*i}")
        a(f"s_add_u32 m0, s38, {L_RW + 1024*i}")
        a("s_mov_b64 exec, vcc")
        a(f"buffer_load_dwordx4 v{wb+2*i}, s[20:23], s52 offen lds")
        a("s_mov_b64 exec, -1")
    side_loads()
    a("s_mov_b32 s43, 0")
    z = vT + 10
    for k in range(4): a(f"v_mov_b32 v{z+k}, 0")
    a(f"v_lshlrev_b32 v{t0}, 4, v0")
    a(f"v_cmp_gt_u32 vcc, 192, v0")
    a("s_mov_b64 exec, vcc")
    a(f"ds_write_b128 v{t0}, v[{z}:{z+3}] offset:{L_OR}")
    a("s_mov_b64 exec, -1")
    a("s_mov_b32 s37, s35")
    vP4, vP1, vA = vT + 12, vT + 13, vT + 3
    vR = vT + 14
    a(f"v_lshrrev_b32 v{t0}, 2, v0")
    a(f"v_lshlrev_b32 v{t0}, 7, v{t0}")
    a(f"v_mov_b32_dpp v{t2}, v{vRecI} quad_perm:[0,0,0,0] row_mask:0xf bank_mask:0xf")
    a(f"v_and_b32 v{t2}, 0xfffffffc, v{t2}")
    a(f"v_sub_u32 v{t2}, v{vRecI}, v{t2}")
    a(f"v_lshl_add_u32 v{vA}, v{t2}, 2, v{t0}")
    a(f"v_mov_b32 v{vP1}, v{vPos0}")
    a(f"v_lshlrev_b32 v{vP4}, 2, v{vPos0}")
    a("s_waitcnt vmcnt(2)")
    if dbg:
        a("s_memtime s[58:59]\ns_waitcnt lgkmcnt(0)\ns_mov_b32 s67, s58")
    a("M_fast_round:")
    for u in range(8): a(f"ds_read_b32 v{vR+u}, v{vA} offset:{L_RW + 4*u}")
    for u in range(8):
        a(f"v_cmp_lt_i32 vcc, {u}, v{vCnt}")
        a("s_mov_b64 exec, vcc")
        a("s_cbranch_execz M_fast_done")
        if u == 0: a("s_waitcnt lgkmcnt(0)")
        a(f"v_and_b32 v{t0}, 0x3fff, v{vR+u}")
        a(f"v_bfe_u32 v{t1}, v{vR+u}, 14, 5")
        a(f"v_lshrrev_b32 v{t2}, 19, v{vR+u}")
        a(f"v_add_u32 v{t2}, v{t2}, v{vEb}")
        if flag("exp_e"): a(f"v_and_b32 v{t2}, 0x3fff, v{t2}")
        if flag("exp_t"): a(f"v_and_b32 v{t0}, 0x7ff, v{t0}")
        a(f"ds_write_b32 v{vP4}, v{t0} offset:{L_LS + 4*u}")
        a(f"ds_write_b8 v{vP1}, v{t1} offset:{L_LQ + u}")
        a(f"ds_write_b32 v{vP4}, v{t2} offset:{L_LE + 4*u}")
    a("s_mov_b64 exec, -1")
    a(f"v_subrev_u32 v{vCnt}, 8, v{vCnt}")
    a(f"v_add_u32 v{vA}, 32, v{vA}")
    a(f"v_add_u32 v{vP4}, 32, v{vP4}")
    a(f"v_add_u32 v{vP1}, 8, v{vP1}")
    a(f"v_cmp_lt_i32 vcc, 0, v{vCnt}")
    a("s_cbranch_vccnz M_fast_round")
    a("M_fast_done:")
    a("s_mov_b64 exec, -1")
    a("s_branch M_pads")
    a("M_batch:")
    z = vT + 10
    for k in range(4): a(f"v_mov_b32 v{z+k}, 0")
    a(f"v_lshlrev_b32 v{t0}, 4, v0")
    a(f"v_cmp_gt_u32 vcc, 192, v0")
    a("s_mov_b64 exec, vcc")
    a(f"ds_write_b128 v{t0}, v[{z}:{z+3}] offset:{L_OR}")
    a("s_mov_b64 exec, -1")
    a("s_sub_u32 s37, s35, s36")
    a(f"s_min_u32 s37, s37, {CAP}")
    vJ, vRem, vRa, vP4, vP1 = vT + 10, vT + 11, vT + 3, vT + 12, vT + 13
    a(f"v_sub_u32 v{vJ}, s36, v{vPos0}")
    a(f"v_add_u32 v{vRem}, {CAP}, v{vJ}")
    a(f"v_max_i32 v{vJ}, 0, v{vJ}")
    a(f"v_min_i32 v{vRem}, v{vRem}, v{vCnt}")
    a(f"v_sub_u32 v{vRem}, v{vRem}, v{vJ}")
    a(f"v_add_lshl_u32 v{vRa}, v{vJ}, v{vRecI}, 2")
    a(f"v_add_u32 v{vP1}, v{vPos0}, v{vJ}")
    a(f"v_subrev_u32 v{vP1}, s36, v{vP1}")
    a(f"v_lshlrev_b32 v{vP4}, 2, v{vP1}")
    a(f"s_mov_b32 s52, {WS_REC}")
    vR = vT + 14
    a("M_round:")
    for half in range(2):
        a(f"v_cmp_lt_i32 vcc, {4*half}, v{vRem}")
        a("s_mov_b64 exec, vcc")
        a("s_cbranch_execz M_round_issued")
        a(f"buffer_load_dwordx4 v[{vR+4*half}:{vR+4*half+3}], v{vRa}, s[20:23], s52 offen offset:{16*half}")
    a("M_round_issued:")
    a("s_mov_b64 exec, -1")
    a("s_cmp_eq_u32 s43, 0")
    a("s_cbranch_scc1 M_round_w0")
    side_loads()
    a("s_mov_b32 s43, 0")
    a("s_waitcnt vmcnt(2)")
    a("s_branch M_round_proc")
    a("M_round_w0:")
    a("s_waitcnt vmcnt(0)")
    a("M_round_proc:")
    if dbg:
        a("s_memtime s[58:59]\ns_waitcnt lgkmcnt(0)\ns_mov_b32 s67, s58"); nst[0] = 4
    for u in range(8):
        a(f"v_cmp_lt_i32 vcc, {u}, v{vRem}")
        a("s_mov_b64 exec, vcc")
        a("s_cbranch_execz M_round_done")
        a(f"v_and_b32 v{t0}, 0x3fff, v{vR+u}")
        a(f"v_bfe_u32 v{t1}, v{vR+u}, 14, 5")
        a(f"v_lshrrev_b32 v{t2}, 19, v{vR+u}")
        a(f"v_add_u32 v{t2}, v{t2}, v{vEb}")
        if flag("exp_e"): a(f"v_and_b32 v{t2}, 0x3fff, v{t2}")
        if flag("exp_t"): a(f"v_and_b32 v{t0}, 0x7ff, v{t0}")
        a(f"ds_write_b32 v{vP4}, v{t0} offset:{L_LS + 4*u}")
        a(f"ds_write_b8 v{vP1}, v{t1} offset:{L_LQ + u}")
        a(f"ds_write_b32 v{vP4}, v{t2} offset:{L_LE + 4*u}")
    a("M_round_done:")
    a("s_mov_b64 exec, -1")
    a(f"v_subrev_u32 v{vRem}, 8, v{vRem}")
    a(f"v_add_u32 v{vRa}, 32, v{vRa}")
    a(f"v_add_u32 v{vP4}, 32, v{vP4}")
    a(f"v_add_u32 v{vP1}, 8, v{vP1}")
    a(f"v_cmp_lt_i32 vcc, 0, v{vRem}")
    a("s_cbranch_vccnz M_round")
    a("M_pads:")
    a("s_cmp_ge_u32 s32, 2")
    a("s_cbranch_scc1 M_pad_done")
    a(f"v_add_u32 v{t0}, s37, v0")
    a(f"v_add_u32 v{t1}, {L_LQ}, v{t0}")
    a(f"v_lshlrev_b32 v{t0}, 2, v{t0}")
    a(f"v_add_u32 v{t0}, {L_LS}, v{t0}")
    a(f"v_mov_b32 v{t2}, 0xffffff")
    a(f"v_mov_b32 v{t3}, 15")
    a(f"ds_write_b32 v{t0}, v{t2}")
    a(f"ds_write_b32 v{t0}, v{t2} offset:{L_LE - L_LS}")
    a(f"ds_write_b8 v{t1}, v{t3}")
    a("M_pad_done:")
    a(f"v_lshrrev_b32 v{t0}, 3, v{vLANE}")
    a(f"v_lshlrev_b32 v{t0}, 2, v{t0}")
    a(f"v_add_u32 v{vLs}, {L_LS}, v{t0}")
    a("s_lshl_b32 s38, s32, 5")
    a(f"s_add_u32 s38, s38, {L_LE}")
    a(f"v_and_b32 v{t0}, 15, v{vLANE}")
    a(f"v_lshrrev_b32 v{t0}, 1, v{t0}")
    a(f"v_lshl_add_u32 v{vLe}, v{t0}, 2, s38")
    a(f"v_mov_b32 v{vLq}, v{vLq0}")
    a("s_waitcnt lgkmcnt(0)")
    a("s_barrier")
    stamp()
    def idx_reads(T):
        for q in range(4):
            a(f"ds_read_b32 v{pG+2*q}, v{vLs} offset:{128*T + 32*q}")
        a(f"ds_read_b32 v{pE}, v{vLe} offset:{128*T}")
    def dma_tile(gslot, eslot):
        for q in range(4):
            a(f"s_add_u32 m0, s40, {L_GR + gslot*4096 + q*1024}")
            a("s_nop 0")
            a(f"buffer_load_dwordx4 v[{pG+2*q}:{pG+2*q+1}], s[24:27], 0 idxen offen {opt('gflag', '')} lds")
        a(f"s_add_u32 m0, s41, {eslot*1024}")
        a("s_mov_b64 exec, 0xffff")
        a(f"buffer_load_dwordx4 v[{pE}:{pE+1}], s[16:19], 0 idxen offen {opt('eflag', '')} lds")
        a("s_mov_b64 exec, -1")
    def frag_reads(gs, es):
        a(f"ds_read_b128 v[{vFX}:{vFX+3}], v{vG} offset:{L_GR + gs*4096}")
        a(f"ds_read_b128 v[{vFX+4}:{vFX+7}], v{vG+1} offset:{L_GR + gs*4096}")
        a(f"ds_read_b128 v[{vAE}:{vAE+3}], v{vEA} offset:{es*1024}")
        a(f"ds_read_b128 v[{vAO}:{vAO+3}], v{vO0} offset:{es*1024}")
        a(f"ds_read_b128 v[{vFH}:{vFH+3}], v{vG+2} offset:{L_GR + gs*4096}")
        a(f"ds_read_b128 v[{vFH+4}:{vFH+7}], v{vG+3} offset:{L_GR + gs*4096}")
    idx_reads(0)
    a(f"v_subrev_u32 v{t0}, 64, v{vLq}")
    a(f"ds_read_u8 v{vQ}, v{t0}")
    a(f"ds_read_u8 v{vOHa}, v{t0} offset:32")
    a("s_waitcnt lgkmcnt(2)")
    dma_tile(0, 0)
    idx_reads(1)
    a("s_waitcnt lgkmcnt(5)")
    a(f"v_lshl_add_u32 v{vQ}, v{vQ}, 1, v{vK+1}")
    a(f"v_lshl_add_u32 v{vOHa}, v{vOHa}, 1, v{vK+2}")
    a("s_mov_b64 exec, 0xff")
    a(f"ds_write_b16 v{vQ}, v{vOHd}")
    a(f"ds_write_b16 v{vOHa}, v{vOHd}")
    a("s_mov_b64 exec, -1")
    a("s_waitcnt vmcnt(0) lgkmcnt(0)")
    a("s_barrier")
    dma_tile(1, 1)
    idx_reads(2)
    frag_reads(0, 0)
    a("s_cmp_lg_u32 s36, 0")
    a("s_cbranch_scc1 M_noxa")
    a(f"v_lshrrev_b32 v{t0}, 2, v{vLANE}\nv_and_b32 v{t0}, 3, v{t0}")
    a(f"v_lshl_add_u32 v{t0}, v{vH}, 2, v{t0}")
    a(f"v_lshlrev_b32 v{t0}, 8, v{t0}")
    a(f"v_lshrrev_b32 v{t1}, 4, v{vLANE}\nv_and_b32 v{t1}, 1, v{t1}")
    a(f"v_lshl_add_u32 v{t0}, v{t1}, 5, v{t0}")
    a(f"v_and_b32 v{t1}, 3, v{vLANE}")
    a(f"v_lshl_add_u32 v{t0}, v{t1}, 3, v{t0}")
    a("s_lshl_b32 s38, s32, 6")
    a(f"v_add_u32 v{t0}, s38, v{t0}")
    a(f"ds_read_b64_tr_b16 v[{vXA}:{vXA+1}], v{t0} offset:{L_XA}")
    a(f"ds_read_b64_tr_b16 v[{vXA+2}:{vXA+3}], v{t0} offset:{L_XA + 2048}")
    a("M_noxa:")
    a("s_waitcnt lgkmcnt(0)")
    SPREAD = opt("spread", "1") != "0"
    LATE = {"0": [0, 1, 2, 3, 4], "1": [0, 1], "2": [], "3": [0]}[opt("spread", "1")]
    EARLY = [p for p in range(5) if p not in LATE]
    def dma_part(p, gslot, eslot, filler=None):
        if p < 4:
            a(f"s_add_u32 m0, s40, {L_GR + gslot*4096 + p*1024}")
            a(filler if filler else "s_nop 0")
            a(f"buffer_load_dwordx4 v[{pG+2*p}:{pG+2*p+1}], s[24:27], 0 idxen offen {opt('gflag', '')} lds")
        else:
            a(f"s_add_u32 m0, s41, {eslot*1024}")
            a("s_mov_b64 exec, 0xffff")
            a(f"buffer_load_dwordx4 v[{pE}:{pE+1}], s[16:19], 0 idxen offen {opt('eflag', '')} lds")
            a("s_mov_b64 exec, -1")
            if filler: a(filler)
    for p in LATE: dma_part(p, 0, 2)
    stamp()
    if dbg: a("s_memrealtime s[72:73]\ns_waitcnt lgkmcnt(0)")
    a("s_add_u32 s37, s37, 31")
    a("s_lshr_b32 s37, s37, 5")
    def chain(z, h):
        return [mf(z, vFX, vI, None), mf(z, vFX + 4, vI + 4, z), mf(z, vAE, vC, z), mf(z, vAO, vXA, z),
                mf(h, vFH, vI, None), mf(h, vFH + 4, vI + 4, h)]
    nlab = [0]
    def prio(p):
        if PRIO == "pair": a(f"s_setprio {p}")
        if PRIO == "pairbal":
            nlab[0] += 1
            a(f"s_setprio {p}")
            a(f"s_cbranch_vccz M_pr{nlab[0]}")
            a(f"s_setprio {p + 2}")
            a(f"M_pr{nlab[0]}:")
    a("M_loop:")
    loop_start = len(a.l)
    for k in range(6):
        es = k % 3; es1 = (k + 1) % 3; gs1 = (k + 1) % 2
        gs2 = k % 2; es2 = (k + 2) % 3
        z, h = vZ, vHV
        a.c(f"---- position {k}: e/one-hot slot {es} ----")
        if PRIO == "bal" and k % 2 == 0:
            a(f"s_cmp_ge_u32 s37, 9\ns_cbranch_scc1 M_prio_done{k}\ns_setprio 2\ns_cmp_ge_u32 s37, 5\ns_cbranch_scc1 M_prio_done{k}\ns_setprio 1\ns_cmp_ge_u32 s37, 2\ns_cbranch_scc1 M_prio_done{k}\ns_setprio 0\nM_prio_done{k}:")
        if PRIO == "pairbal":
            a(f"s_cmp_gt_u32 s37, {opt('X', '4')}")
            a("s_cselect_b64 vcc, -1, 0")
        early = list(EARLY)
        ch = chain(z, h)
        if len(early) <= 3:
            if early: dma_part(early.pop(0), gs2, es2)
            a("s_waitcnt lgkmcnt(0)")
            for s_ in range(2):
                a(f"ds_read_b64_tr_b16 v[{vSO+4*s_}:{vSO+4*s_+1}], v{vT0} offset:{es*1024 + s_*512}")
                a(f"ds_read_b64_tr_b16 v[{vSO+4*s_+2}:{vSO+4*s_+3}], v{vT0} offset:{es*1024 + s_*512 + 256}")
            for x in ch[0:4]: a(x)
            if early: dma_part(early.pop(0), gs2, es2)
            for x in ch[4:6]: a(x)
            while early: dma_part(early.pop(0), gs2, es2)
        else:
            a("s_waitcnt lgkmcnt(0)")
            for s_ in range(2):
                a(f"ds_read_b64_tr_b16 v[{vSO+4*s_}:{vSO+4*s_+1}], v{vT0} offset:{es*1024 + s_*512}")
                a(f"ds_read_b64_tr_b16 v[{vSO+4*s_+2}:{vSO+4*s_+3}], v{vT0} offset:{es*1024 + s_*512 + 256}")
            for j, x in enumerate(ch):
                a(x)
                if early and j < 5: dma_part(early.pop(0), gs2, es2)
            while early: dma_part(early.pop(0), gs2, es2)
        a("s_waitcnt vmcnt(5) lgkmcnt(0)")
        a("s_barrier")
        frag_reads(gs1, es1)
        T3 = k + 3
        for q in range(4):
            a(f"ds_read_b32 v{pG+2*q}, v{vLs} offset:{128*T3 + 32*q}")
        a(f"ds_read_b32 v{pE}, v{vLe} offset:{128*T3}")
        a(f"ds_read_u8 v{vQ}, v{vLq} offset:{32*k}")
        if k == 1:
            a("s_cmp_eq_u32 s53, 0")
            a("s_cbranch_scc1 M_xu_done")
            xu_load()
            a("s_mov_b32 s53, 0")
            a("M_xu_done:")
        ex = [f"v_exp_f32 v{z+r}, v{z+r}" for r in range(16)]
        ad = [f"v_add_f32 v{z+r}, 1.0, v{z+r}" for r in range(16)]
        rc = [f"v_rcp_f32 v{z+r}, v{z+r}" for r in range(16)]
        mu = [f"v_mul_f32 v{z+r}, v{z+r}, v{h+r}" for r in range(16)]
        cv = [f"v_cvt_pk_bf16_f32 v{vMSG+r}, v{z+2*r}, v{z+2*r+1}" for r in range(8)]
        for x in ex: a(x)
        prio(0)
        for x in ad: a(x)
        prio(1)
        a("s_waitcnt lgkmcnt(0)")
        late = list(LATE)
        pos = {5: [0, 3, 6, 9, 12], 2: [1, 9], 1: [4], 0: []}[len(late)]
        r0 = 0
        for p, at in zip(late, pos):
            for x in rc[r0:at]: a(x)
            dma_part(p, gs1, es, rc[at])
            r0 = at + 1
        for x in rc[r0:16]: a(x)
        a(f"v_lshl_add_u32 v{vOHa}, v{vQ}, 1, v{vK+es}")
        a("s_mov_b64 exec, 0xffff")
        a(f"ds_write_b16 v{vOHa}, v{vOHd}")
        a("s_mov_b64 exec, -1")
        prio(0)
        for x in mu: a(x)
        prio(1)
        for x in cv: a(x)
        a("s_sub_u32 s37, s37, 1")
        a(mf(vACC, vSO, vMSG, vACC))
        a(mf(vACC, vSO + 4, vMSG + 4, vACC))
        a("s_cmp_eq_u32 s37, 0")
        a("s_cbranch_scc1 M_loop_done")
    a(f"v_add_u32 v{vLs}, {128*6}, v{vLs}")
    a(f"v_add_u32 v{vLe}, {128*6}, v{vLe}")
    a(f"v_add_u32 v{vLq}, {32*6}, v{vLq}")
    a("s_branch M_loop")
    abl = [x[6:] for x in ARGS if x.startswith("--abl_")]
    if abl:
        body = a.l[loop_start:]
        def drop(l):
            t = l.strip()
            if "dma" in abl and t.startswith("buffer_load") and " lds" in t: return True
            if "valu" in abl and t.startswith(("v_exp", "v_add_f32", "v_rcp", "v_mul_f32", "v_cvt_pk")): return True
            if "mfma" in abl and t.startswith("v_mfma"): return True
            if "bar" in abl and t.startswith("s_barrier"): return True
            if "frag" in abl and t.startswith("ds_read_b128"): return True
            if "tr" in abl and t.startswith("ds_read_b64_tr"): return True
            if "idx" in abl and t.startswith(("ds_read_b32", "ds_read_u8")): return True
            if "oh" in abl and t.startswith("ds_write_b16"): return True
            if "dmae" in abl and t.startswith("buffer_load") and "s[16:19]" in t: return True
            if "dmag" in abl and t.startswith("buffer_load") and "s[24:27]" in t: return True
            return False
        body = [l for l in body if not drop(l)]
        if "vmw" in abl: body = [l.replace("vmcnt(5) ", "") for l in body]
        a.l[loop_start:] = body
    a("M_loop_done:")
    stamp()
    if dbg: a("s_memrealtime s[74:75]\ns_waitcnt lgkmcnt(0)")
    a("s_cmp_eq_u32 s53, 0")
    a("s_cbranch_scc1 M_xu_done2")
    xu_load()
    a("s_mov_b32 s53, 0")
    a("M_xu_done2:")
    a("s_waitcnt vmcnt(0) lgkmcnt(0)")
    a("s_barrier")
    a(f"s_add_u32 s36, s36, {CAP}")
    a("s_cmp_lt_u32 s36, s35")
    a("s_cbranch_scc1 M_batch")
    a("s_branch M_epilogue")
    a("M_empty:")
    xu_load()
    a("s_waitcnt vmcnt(0)")
    a("M_epilogue:")
    a(f"v_mul_u32_u24 v{t0}, {8*AGG_STRIDE}, v{vH}")
    a(f"v_lshl_add_u32 v{t0}, v{vE5}, 2, v{t0}")
    a("s_lshl_b32 s39, s32, 7")
    a(f"v_add_u32 v{t0}, s39, v{t0}")
    a("s_nop 7")
    for r in range(8):
        a(f"ds_write_b32 v{t0}, v{vACC+r} offset:{L_GR + r*AGG_STRIDE}")
    a(f"v_lshrrev_b32 v{t0}, 4, v0")
    a(f"v_and_b32 v{t1}, 15, v0")
    a(f"v_mul_u32_u24 v{t2}, {AGG_STRIDE}, v{t0}")
    a(f"v_lshl_add_u32 v{t2}, v{t1}, 5, v{t2}")
    a(f"v_add_u32 v{t3}, s33, v{t0}")
    a(f"v_lshlrev_b32 v{t3}, 8, v{t3}")
    a(f"v_lshl_add_u32 v{t3}, v{t1}, 4, v{t3}")
    a(f"s_mov_b32 s38, {NEG_LOG2E:#x}")
    a("s_waitcnt lgkmcnt(0)")
    a("s_barrier")
    y = vZ; w_ = vHV
    a(f"ds_read_b128 v[{y}:{y+3}], v{t2} offset:{L_GR}")
    a(f"ds_read_b128 v[{y+4}:{y+7}], v{t2} offset:{L_GR + 16}")
    for i in range(4):
        a(f"v_lshlrev_b32 v{w_+2*i}, 16, v{vXU+i}")
        a(f"v_and_b32 v{w_+2*i+1}, 0xffff0000, v{vXU+i}")
    a("s_waitcnt lgkmcnt(0)")
    for r in range(8): a(f"v_add_f32 v{y+r}, v{y+r}, v{w_+r}")
    for r in range(8): a(f"v_mul_f32 v{w_+r}, s38, v{y+r}")
    for r in range(8): a(f"v_exp_f32 v{w_+r}, v{w_+r}")
    for r in range(8): a(f"v_add_f32 v{w_+r}, 1.0, v{w_+r}")
    for r in range(8): a(f"v_rcp_f32 v{w_+r}, v{w_+r}")
    a("s_nop 0")
    for r in range(8): a(f"v_mul_f32 v{y+r}, v{y+r}, v{w_+r}")
    for r in range(4): a(f"v_cvt_pk_bf16_f32 v{vMSG+r}, v{y+2*r}, v{y+2*r+1}")
    if dbg:
        stamp()
        a("s_memrealtime s[62:63]\ns_waitcnt lgkmcnt(0)")
        a("s_mov_b32 s52, s10\ns_and_b32 s53, s11, 0xffff\ns_mov_b32 s54, 0x1000000\ns_mov_b32 s55, 0x20000")
        a(f"s_lshl_b32 s56, s2, 2\ns_add_u32 s56, s56, s32\ns_lshl_b32 s56, s56, 6\ns_add_u32 s56, s56, {DBG2:#x}")
        vals = [64, 65, 66, 67, 68, 69, 70, 71, 60, 62, 35, 72, 74]
        a("s_mov_b64 s[50:51], exec\ns_mov_b64 exec, 1")
        for i, r in enumerate(vals):
            a(f"v_mov_b32 v{vT+20}, s{r}")
            a(f"v_mov_b32 v{vT+21}, 0")
            a(f"buffer_store_dword v{vT+20}, v{vT+21}, s[52:55], s56 offen offset:{4*i}")
        a("s_mov_b64 exec, s[50:51]")
    if flag("tl"):
        a("s_memrealtime s[70:71]\ns_waitcnt lgkmcnt(0)")
        a("s_mov_b32 s76, s72\ns_and_b32 s77, s73, 0xffff\ns_mov_b32 s78, 256\ns_mov_b32 s79, 0x20000")
        a("s_mov_b64 s[74:75], exec\ns_mov_b64 exec, 1")
        a(f"v_mov_b32 v{vT+20}, s68\nv_not_b32 v{vT+20}, v{vT+20}\nv_mov_b32 v{vT+21}, 0")
        a(f"buffer_atomic_umax v{vT+20}, v{vT+21}, s[76:79], 0 offen")
        a(f"v_mov_b32 v{vT+20}, s70")
        a(f"buffer_atomic_umax v{vT+20}, v{vT+21}, s[76:79], 0 offen offset:4")
        a("s_mov_b64 exec, s[74:75]")
        a("s_cmp_lg_u32 s2, 0\ns_cbranch_scc1 M_tl_done")
        a("s_mov_b32 s80, s10\ns_and_b32 s81, s11, 0xffff\ns_mov_b32 s82, 0x1000000\ns_mov_b32 s83, 0x20000")
        a(f"v_lshlrev_b32 v{vT+22}, 7, v0")
        a(f"v_add_u32 v{vT+22}, {DBG1}, v{vT+22}")
        a(f"v_cmp_gt_u32 vcc, {NCH + 2*P_NG}, v0\ns_mov_b64 exec, vcc")
        a(f"buffer_load_dwordx2 v[{vT+18}:{vT+19}], v{vT+22}, s[80:83], 0 offen")
        a("s_waitcnt vmcnt(0)")
        a(f"v_not_b32 v{vT+18}, v{vT+18}\nv_mov_b32 v{vT+21}, 0")
        a(f"buffer_atomic_umax v{vT+18}, v{vT+21}, s[76:79], 0 offen offset:8")
        a(f"buffer_atomic_umax v{vT+19}, v{vT+21}, s[76:79], 0 offen offset:12")
        a("s_mov_b64 exec, -1")
        a("M_tl_done:")
    a(f"v_cmp_gt_u32 vcc, s34, v{t0}")
    a("s_mov_b64 exec, vcc")
    a("s_cbranch_execz M_end")
    a(f"buffer_store_dwordx4 v[{vMSG}:{vMSG+3}], v{t3}, s[28:31], 0 offen {opt('oflag', '').replace('_', ' ')}")
    a("M_end:")
    a("s_endpgm")
    return a.text() + descriptor(KNAME, NVGPR, 96 if (dbg or flag("tl")) else 56)

HEAD = f"""; Edge-gated message passing (gated graph conv) for gfx950.
;                 [-log2e * x@B | x@V], -log2e * x@A, x@U; C fragments in MFMA layout
;   main kernel : per bucket of 13/14 destination nodes: gather node-table rows and e_attr rows into LDS,
;                 gate pre-activation on the matrix cores, sigmoid gate, one-hot segment sum, silu
; @launch kernel=prep_kernel grid=({P_GRID},1,1) block=({P_BLOCK},1,1) lds={P_LDS}
; @launch kernel={KNAME} grid=({NB},1,1) block=(256,1,1) lds={M_LDS}
.amdgcn_target "amdgcn-amd-amdhsa--gfx950"
.text
"""

def build(dbg=False):
    return HEAD + prep_kernel(dbg) + main_kernel(dbg)

if __name__ == "__main__":
    args = [x for x in ARGS if not x.startswith("--")]
    out = args[0] if args else "gather_scatter__edge_featured_mpnn_egc__graph.s"
    open(out, "w").write(build(dbg=flag("dbg")))
    print("wrote", out, "M_LDS", M_LDS, "P_LDS", P_LDS)
```

```python
import sys

N = 10000; E = 320000
NB = 768
NCH = 64; CH = 5000
MAGIC_G = 214749
WS_T = 0
WS_W = 0x60000
WS_REC = 0x80000
MAGIC_R = 6554
WS_SZ = 0x200000
WS_TAB = 0x200000
WS_XA = 0x700000
WS_XU = 0x980000
DBG2, DBG1 = 0xC00000, 0xE00000
NEG_LOG2E = 0xBFB8AA3B
KNAME = "gather_scatter__edge_featured_mpnn_egc__graph_kernel"
ARGS = sys.argv[1:]
def flag(n): return ("--" + n) in ARGS
def opt(n, d):
    for x in ARGS:
        if x.startswith("--" + n + "="): return x.split("=", 1)[1]
    return d

S0 = int(opt('s0', '16')); S1 = int(opt('s1', '13'))
assert S0 <= 16 and S1 <= 16 and 40 - S0 - S1 <= 16

class A:
    def __init__(self):
        self.l = []
    def __call__(self, s=""):
        for x in s.split("\n"):
            x = x.strip()
            if not x: continue
            if x.endswith(":"):
                self.l.append(x)
            else:
                self.l.append("    " + x)
    def c(self, s):
        self.l.append("    ; " + s)
    def raw(self, s):
        self.l.append(s)
    def text(self):
        return "\n".join(self.l) + "\n"

def srd(a, r, lo, hi, size, stride=0, add=0):
    if add:
        a(f"s_add_u32 s{r}, s{lo}, {add:#x}")
        a(f"s_addc_u32 s{r+1}, s{hi}, 0")
        a(f"s_and_b32 s{r+1}, s{r+1}, 0xffff")
    else:
        a(f"s_mov_b32 s{r}, s{lo}")
        a(f"s_and_b32 s{r+1}, s{hi}, 0xffff")
    if stride:
        a(f"s_or_b32 s{r+1}, s{r+1}, {stride << 16:#x}")
    a(f"s_mov_b32 s{r+2}, {size:#x}")
    a(f"s_mov_b32 s{r+3}, 0x20000")

def wave_scan(a, v):
    for sh in (1, 2, 4, 8):
        a("s_nop 1")
        a(f"v_add_u32_dpp v{v}, v{v}, v{v} row_shr:{sh} row_mask:0xf bank_mask:0xf bound_ctrl:1")
    a("s_nop 1")
    a(f"v_add_u32_dpp v{v}, v{v}, v{v} row_bcast:15 row_mask:0xa bank_mask:0xf")
    a("s_nop 1")
    a(f"v_add_u32_dpp v{v}, v{v}, v{v} row_bcast:31 row_mask:0xc bank_mask:0xf")
    a("s_nop 1")

def header(a, name):
    a.raw(f".globl {name}")
    a.raw(".p2align 8")
    a.raw(f".type {name},@function")
    a.raw(f"{name}:")

def descriptor(name, vgpr, sgpr):
    acc = (vgpr + 3) // 4 * 4
    return f""".section .rodata,"a"
.p2align 6
.amdhsa_kernel {name}
  .amdhsa_next_free_vgpr {vgpr}
  .amdhsa_next_free_sgpr {sgpr}
  .amdhsa_accum_offset {acc}
  .amdhsa_group_segment_fixed_size 0
  .amdhsa_kernarg_size 80
  .amdhsa_user_sgpr_count 2
  .amdhsa_user_sgpr_kernarg_segment_ptr 1
  .amdhsa_system_sgpr_workgroup_id_x 1
  .amdhsa_float_denorm_mode_32 3
.end_amdhsa_kernel
.text
"""

def mf(d, x, y, c):
    cs = "0" if c is None else f"v[{c}:{c+15}]"
    return f"v_mfma_f32_32x32x16_bf16 v[{d}:{d+15}], v[{x}:{x+3}], v[{y}:{y+3}], {cs}"

XGRP = 1088
XSLOT = 8 * XGRP

def xfrag_addr(a, d0, d1, row, h, t0, t1, t2):
    a(f"v_lshrrev_b32 v{t0}, 2, v{row}")
    a(f"v_mul_u32_u24 v{t0}, {XGRP}, v{t0}")
    a(f"v_and_b32 v{t1}, 3, v{row}")
    a(f"v_lshl_add_u32 v{t0}, v{t1}, 8, v{t0}")
    a(f"v_xor_b32 v{t2}, v{h}, v{t1}")
    a(f"v_lshl_add_u32 v{d0}, v{t2}, 4, v{t0}")
    a(f"v_xor_b32 v{t2}, 2, v{t2}")
    a(f"v_lshl_add_u32 v{d1}, v{t2}, 4, v{t0}")

P_BLOCK = 640
P_NG = 79
P_GRID = NCH + 2 * P_NG + 1
P_HIST, P_START, P_TOT, P_SORT = 0, 12288, 24576, 24640
G_W0, G_W1, G_X = 0, 32768, 65536
G_ST = G_X + 4 * XSLOT
P_LDS = G_ST + 8 * 4096

def prep_kernel(dbg=False):
    SF = opt("sflag", "").replace("_", " ")
    a = A()
    nst = [0]
    def stamp():
        if not dbg: return
        a("s_waitcnt lgkmcnt(0)\ns_memtime s[40:41]\ns_waitcnt lgkmcnt(0)")
        a(f"s_mov_b32 s{50+nst[0]}, s40")
        nst[0] += 1
    def dump(role):
        if not dbg: return
        while nst[0] < 8: stamp()
        a("s_memrealtime s[46:47]\ns_load_dwordx2 s[42:43], s[0:1], 72\ns_waitcnt lgkmcnt(0)")
        a("s_mov_b32 s60, s42\ns_and_b32 s61, s43, 0xffff\ns_mov_b32 s62, 0x1000000\ns_mov_b32 s63, 0x20000")
        a("v_lshrrev_b32 v158, 6, v0\ns_nop 0\nv_readfirstlane_b32 s48, v158\ns_nop 3")
        a(f"s_lshl_b32 s49, s2, 4\ns_add_u32 s49, s49, s48\ns_lshl_b32 s49, s49, 6\ns_add_u32 s49, s49, {DBG1:#x}")
        a("s_mov_b64 exec, 1")
        for i, r in enumerate([50,51,52,53,54,55,56,57,44,46]):
            a(f"v_mov_b32 v158, s{r}\nv_mov_b32 v159, 0\nbuffer_store_dword v158, v159, s[60:63], s49 offen offset:{4*i}")
        a(f"v_mov_b32 v158, {role}\nv_mov_b32 v159, 0\nbuffer_store_dword v158, v159, s[60:63], s49 offen offset:40")
        nst[0] = 0
    TL = flag("tl")
    def tl_end():
        if not TL: return
        a("s_waitcnt vmcnt(0) lgkmcnt(0)")
        a("s_memrealtime s[70:71]\ns_load_dwordx2 s[72:73], s[0:1], 72\ns_waitcnt lgkmcnt(0)")
        a("s_mov_b32 s76, s72\ns_and_b32 s77, s73, 0xffff\ns_mov_b32 s78, 0x1000000\ns_mov_b32 s79, 0x20000")
        a("v_lshrrev_b32 v158, 6, v0\ns_nop 0\nv_readfirstlane_b32 s74, v158\ns_nop 3")
        a(f"s_lshl_b32 s75, s2, 4\ns_add_u32 s75, s75, s74\ns_lshl_b32 s75, s75, 3\ns_add_u32 s75, s75, {DBG1:#x}")
        a("s_mov_b64 exec, 1\nv_mov_b32 v156, s68\nv_mov_b32 v157, s70\nv_mov_b32 v159, 0")
        a("buffer_store_dwordx2 v[156:157], v159, s[76:79], s75 offen")
    header(a, "prep_kernel")
    if TL: a("s_memrealtime s[68:69]")
    if dbg:
        a("s_memrealtime s[44:45]")
        stamp()
    a(f"s_cmp_ge_u32 s2, {P_GRID}")
    a("s_cbranch_scc1 P_end")
    a(f"s_cmp_ge_u32 s2, {NCH + 2*P_NG}")
    a("s_cbranch_scc1 P_weights")
    a(f"s_cmp_ge_u32 s2, {NCH}")
    a("s_cbranch_scc1 P_gemm")
    a("s_load_dwordx4 s[4:7], s[0:1], 16")
    a("s_load_dwordx2 s[8:9], s[0:1], 72")
    a("v_lshlrev_b32 v2, 4, v0")
    a("v_mov_b32 v4, 0\nv_mov_b32 v5, 0\nv_mov_b32 v6, 0\nv_mov_b32 v7, 0")
    a("ds_write_b128 v2, v[4:7]")
    a("ds_write_b128 v2, v[4:7] offset:10240")
    a("v_lshlrev_b32 v1, 4, v0")
    a(f"s_mul_i32 s3, s2, {CH*4}")
    a(f"s_mov_b32 s20, {MAGIC_G}")
    a("s_movk_i32 s21, 625")
    a(f"s_movk_i32 s28, {-S0}")
    a(f"s_movk_i32 s31, {-S1}")
    a("v_lshrrev_b32 v2, 6, v0")
    a("v_mov_b32 v3, 1")
    a("v_readfirstlane_b32 s22, v2")
    a("s_waitcnt lgkmcnt(0)")
    srd(a, 16, 6, 7, E * 4)
    a(f"v_cmp_gt_u32 vcc, {CH//8}, v0")
    a("s_mov_b64 exec, vcc")
    a(f"s_add_u32 s33, s3, {CH*2}")
    a("buffer_load_dwordx4 v[8:11], v1, s[16:19], s3 offen")
    a("buffer_load_dwordx4 v[12:15], v1, s[16:19], s33 offen")
    srd(a, 12, 4, 5, E * 4)
    a("buffer_load_dwordx4 v[16:19], v1, s[12:15], s3 offen")
    a("buffer_load_dwordx4 v[20:23], v1, s[12:15], s33 offen")
    srd(a, 24, 8, 9, WS_SZ)
    a("v_lshlrev_b32 v64, 2, v0")
    a("s_barrier")
    stamp()
    a("s_waitcnt vmcnt(2)")
    vD, vS, vBk, vAd, vRk, vRec, vT = 8, 16, 24, 32, 40, 48, 56
    for i in range(8): a(f"v_mul_u32_u24 v{vBk+i}, s20, v{vD+i}")
    for i in range(8): a(f"v_lshrrev_b32 v{vBk+i}, 23, v{vBk+i}")
    for i in range(8): a(f"v_mad_u32_u24 v{vRec+i}, v{vBk+i}, s21, 15")
    for i in range(8): a(f"v_lshrrev_b32 v{vRec+i}, 4, v{vRec+i}")
    for i in range(8): a(f"v_sub_u32 v{vRec+i}, v{vD+i}, v{vRec+i}")
    for i in range(8): a(f"v_add_u32 v{vT+i}, {64 - S0}, v{vRec+i}")
    for i in range(8): a(f"v_add_u32 v{vAd+i}, {64 - S0 - S1}, v{vRec+i}")
    for i in range(8): a(f"v_lshrrev_b32 v{vT+i}, 6, v{vT+i}")
    for i in range(8): a(f"v_lshrrev_b32 v{vAd+i}, 6, v{vAd+i}")
    for i in range(8): a(f"v_mad_i32_i24 v{vRec+i}, v{vT+i}, s28, v{vRec+i}")
    for i in range(8): a(f"v_mad_i32_i24 v{vRec+i}, v{vAd+i}, s31, v{vRec+i}")
    for i in range(8): a(f"v_add_u32 v{vT+i}, v{vT+i}, v{vAd+i}")
    for i in range(8): a(f"v_lshl_add_u32 v{vBk+i}, v{vT+i}, 8, v{vBk+i}")
    for i in range(8): a(f"v_lshrrev_b32 v{vT+i}, 1, v{vRec+i}")
    for i in range(8): a(f"v_xor_b32 v{vT+i}, v{vT+i}, v{vRec+i}")
    for i in range(8): a(f"v_and_b32 v{vT+i}, 4, v{vT+i}")
    for i in range(8): a(f"v_mul_u32_u24 v{vT+i}, 3, v{vT+i}")
    for i in range(8): a(f"v_xor_b32 v{vRec+i}, v{vRec+i}, v{vT+i}")
    a("s_waitcnt vmcnt(0)")
    stamp()
    a(f"s_movk_i32 s29, {6554}")
    for i in range(8): a(f"v_mul_u32_u24 v{vT+i}, s29, v{vS+i}")
    for i in range(8): a(f"v_lshrrev_b32 v{vT+i}, 24, v{vT+i}")
    for i in range(8): a(f"v_lshl_add_u32 v{vAd+i}, v{vBk+i}, 2, v{vT+i}")
    for i in range(8): a(f"v_lshlrev_b32 v{vAd+i}, 2, v{vAd+i}")
    for i in range(8): a(f"ds_add_rtn_u32 v{vRk+i}, v{vAd+i}, v3")
    for i in range(8): a(f"v_lshl_or_b32 v{vRec+i}, v{vRec+i}, 14, v{vS+i}")
    for i in range(8): a(f"v_add_u32 v{vT+i}, {(i & 3) + (CH // 2) * (i >> 2)}, v64")
    for i in range(8): a(f"v_lshl_or_b32 v{vRec+i}, v{vT+i}, 19, v{vRec+i}")
    a("s_waitcnt lgkmcnt(0)")
    stamp()
    a("s_barrier")
    c0, p0 = 68, 76
    a("s_cmp_ge_u32 s22, 6")
    a("s_cbranch_scc1 P_scan1_done")
    a("v_lshlrev_b32 v2, 5, v0")
    a(f"ds_read_b128 v[{c0}:{c0+3}], v2 offset:{P_HIST}")
    a(f"ds_read_b128 v[{c0+4}:{c0+7}], v2 offset:{P_HIST+16}")
    a("s_waitcnt lgkmcnt(0)")
    a(f"v_mov_b32 v{p0}, 0")
    a(f"v_mov_b32 v{p0+1}, v{c0}")
    for k in range(2, 8): a(f"v_add_u32 v{p0+k}, v{p0+k-1}, v{c0+k-1}")
    a(f"v_add_u32 v84, v{p0+7}, v{c0+7}")
    a("v_mov_b32 v85, v84")
    wave_scan(a, 85)
    a("v_readlane_b32 s23, v85, 63")
    a("v_sub_u32 v85, v85, v84")
    a("s_lshl_b32 s30, s22, 2")
    a("v_mov_b32 v87, s30")
    a("v_mov_b32 v86, s23")
    a(f"ds_write_b32 v87, v86 offset:{P_TOT}")
    a("s_waitcnt lgkmcnt(0)")
    a("P_scan1_done:")
    a("s_barrier")
    a("s_cmp_ge_u32 s22, 6")
    a("s_cbranch_scc1 P_noscan")
    a("v_mov_b32 v87, 0")
    a(f"ds_read_b128 v[88:91], v87 offset:{P_TOT}")
    a(f"ds_read_b64 v[92:93], v87 offset:{P_TOT+16}")
    a("s_waitcnt lgkmcnt(0)")
    a("s_mov_b32 s30, 0")
    for k in range(5):
        a(f"v_readfirstlane_b32 s23, v{88+k}")
        a(f"s_cmp_gt_u32 s22, {k}")
        a("s_nop 1")
        a("s_cselect_b32 s23, s23, 0")
        a("s_add_u32 s30, s30, s23")
    a("v_add_u32 v85, s30, v85")
    for k in range(8): a(f"v_add_u32 v{p0+k}, v{p0+k}, v85")
    a(f"ds_write_b128 v2, v[{p0}:{p0+3}] offset:{P_START}")
    a(f"ds_write_b128 v2, v[{p0+4}:{p0+7}] offset:{P_START+16}")
    for b in range(2):
        cc = c0 + 4*b; pp = p0 + 4*b; o = 88 + 2*b
        a(f"v_add3_u32 v86, v{cc}, v{cc+1}, v{cc+2}")
        a(f"v_add_u32 v86, v86, v{cc+3}")
        a(f"v_lshl_or_b32 v{o}, v86, 16, v{pp}")
        for k in range(3): a(f"v_min_u32 v{cc+k}, 0xff, v{cc+k}")
        a(f"v_lshl_or_b32 v{o+1}, v{cc+1}, 8, v{cc}")
        a(f"v_lshl_or_b32 v{o+1}, v{cc+2}, 16, v{o+1}")
    a(f"s_mul_i32 s23, s2, {NB*8}")
    a("v_lshlrev_b32 v86, 4, v0")
    a(f"buffer_store_dwordx4 v[88:91], v86, s[24:27], s23 offen offset:{WS_T} {SF}")
    a("s_waitcnt lgkmcnt(0)")
    a("P_noscan:")
    a("s_barrier")
    stamp()
    for i in range(8): a(f"ds_read_b32 v{vT+i}, v{vAd+i} offset:{P_START}")
    a("s_waitcnt lgkmcnt(0)")
    for i in range(8): a(f"v_add_lshl_u32 v{vT+i}, v{vT+i}, v{vRk+i}, 2")
    for i in range(8): a(f"ds_write_b32 v{vT+i}, v{vRec+i} offset:{P_SORT}")
    a("s_waitcnt lgkmcnt(0)")
    a("s_barrier")
    a(f"ds_read_b128 v[4:7], v1 offset:{P_SORT}")
    a(f"ds_read_b128 v[8:11], v1 offset:{P_SORT + CH*2}")
    a(f"s_add_u32 s3, s3, {WS_REC}")
    a(f"s_add_u32 s33, s3, {CH*2}")
    a("s_waitcnt lgkmcnt(1)")
    a(f"buffer_store_dwordx4 v[4:7], v1, s[24:27], s3 offen {SF}")
    a("s_waitcnt lgkmcnt(0)")
    a(f"buffer_store_dwordx4 v[8:11], v1, s[24:27], s33 offen {SF}")
    stamp()
    if dbg: a("s_waitcnt vmcnt(0)")
    dump(1)
    tl_end()
    a("s_endpgm")
    a("P_gemm:")
    nst[0] = 1
    a("s_load_dwordx2 s[4:5], s[0:1], 0")
    a("s_load_dwordx4 s[8:11], s[0:1], 32")
    a("s_load_dwordx2 s[34:35], s[0:1], 48")
    a("s_load_dwordx2 s[6:7], s[0:1], 72")
    a("v_lshrrev_b32 v2, 6, v0")
    a("v_and_b32 v1, 63, v0")
    a("v_readfirstlane_b32 s22, v2")
    a(f"s_sub_u32 s3, s2, {NCH}")
    a(f"s_cmp_ge_u32 s3, {P_NG}")
    a("s_cselect_b32 s36, 1, 0")
    a(f"s_cselect_b32 s37, {P_NG}, 0")
    a("s_sub_u32 s3, s3, s37")
    a("s_cmp_ge_u32 s22, 8")
    a("s_cbranch_scc1 P_pf" if (flag("epf") or flag("cpf")) else "s_cbranch_scc1 P_end")
    a("s_lshr_b32 s23, s22, 2")
    a("s_and_b32 s28, s22, 3")
    a("s_lshl_b32 s3, s3, 2")
    a("s_add_u32 s3, s3, s23")
    a("s_lshl_b32 s29, s3, 5")
    a("v_lshrrev_b32 v3, 4, v1")
    a("v_and_b32 v4, 15, v1")
    a("v_lshlrev_b32 v5, 2, v3")
    a("v_xor_b32 v5, v5, v4")
    a("v_lshlrev_b32 v5, 4, v5")
    a("v_lshl_add_u32 v5, v3, 8, v5")
    a("v_xor_b32 v4, v4, v3")
    a("v_lshlrev_b32 v7, 4, v4")
    a("v_mov_b32 v9, v7")
    a("s_waitcnt lgkmcnt(0)")
    a("s_cmp_eq_u32 s36, 0")
    a("s_cselect_b32 s30, 32768, 0")
    a("s_cselect_b32 s38, s10, s8\ns_cselect_b32 s39, s11, s9")
    a("s_add_u32 s16, s34, s30\ns_addc_u32 s17, s35, 0")
    a("s_cmp_eq_u32 s23, 1")
    a("s_cselect_b32 s16, s38, s16\ns_cselect_b32 s17, s39, s17")
    a("s_and_b32 s17, s17, 0xffff")
    a("s_mov_b32 s18, 32768\ns_mov_b32 s19, 0x20000")
    srd(a, 12, 4, 5, N, stride=256)
    a("s_lshl_b32 s30, s28, 3")
    a("s_add_u32 s30, s30, s29")
    a(f"s_mul_i32 s31, s23, {XSLOT}")
    a(f"s_mul_i32 s33, s28, {2*XGRP}")
    a("s_add_u32 s31, s31, s33")
    for ps in range(2):
        a("v_add_u32 v6, s30, v3")
        a("v_add_u32 v8, 4, v6")
        a(f"s_add_u32 m0, s31, {G_X + ps*2*XSLOT}")
        a("s_add_u32 s30, s30, 64")
        a("buffer_load_dwordx4 v[6:7], s[12:15], 0 idxen offen lds")
        a(f"s_add_u32 m0, s31, {G_X + ps*2*XSLOT + XGRP}")
        a("s_nop 0")
        a("buffer_load_dwordx4 v[8:9], s[12:15], 0 idxen offen lds")
    a("s_lshl_b32 s30, s28, 13")
    a("s_lshl_b32 s31, s23, 15")
    a("s_add_u32 s31, s31, s30")
    for half in range(2):
        a(f"s_add_u32 m0, s31, {half*4096}")
        a(f"s_add_u32 s33, s30, {half*4096}")
        for ii in range(4):
            a(f"buffer_load_dwordx4 v5, s[16:19], s33 offen offset:{ii*1024} lds")
    vE5, vH, vX0, vX1, vWt = 10, 11, 12, 13, 14
    a(f"v_and_b32 v{vE5}, 31, v1")
    a(f"v_lshrrev_b32 v{vH}, 5, v1")
    xfrag_addr(a, vX0, vX1, vE5, vH, 15, 16, 17)
    a(f"s_mul_i32 s30, s23, {XSLOT}")
    a(f"s_add_u32 s30, s30, {G_X}")
    a(f"v_add_u32 v{vX0}, s30, v{vX0}")
    a(f"v_add_u32 v{vX1}, s30, v{vX1}")
    a("v_lshrrev_b32 v15, 2, v1\nv_and_b32 v15, 3, v15")
    a("s_lshl_b32 s30, s28, 2")
    a("v_lshlrev_b32 v16, 2, v15")
    a("v_xor_b32 v16, s30, v16")
    a("v_lshrrev_b32 v17, 4, v1\nv_and_b32 v17, 1, v17")
    a("v_lshl_add_u32 v16, v17, 1, v16")
    a("v_lshrrev_b32 v17, 1, v1\nv_and_b32 v17, 1, v17")
    a("v_add_u32 v16, v16, v17")
    a("v_lshlrev_b32 v16, 4, v16")
    a("v_and_b32 v17, 1, v1")
    a("v_lshl_add_u32 v16, v17, 3, v16")
    a(f"v_lshl_add_u32 v15, v{vH}, 3, v15")
    a(f"v_lshl_add_u32 v{vWt}, v15, 8, v16")
    srd(a, 24, 6, 7, N * 512, add=WS_TAB)
    a("s_cmp_eq_u32 s36, 0")
    a("s_cbranch_scc1 P_g_bvsrd")
    srd(a, 24, 6, 7, N * 256, add=WS_XA)
    srd(a, 40 if not dbg else 64, 6, 7, N * 256, add=WS_XU)
    a("P_g_bvsrd:")
    sXU = 40 if not dbg else 64
    f0, f1, fX, d0, d1 = 32, 64, 96, 128, 144
    a("s_lshl_b32 s31, s22, 12")
    a(f"s_add_u32 s31, s31, {G_ST}")
    a(f"v_and_b32 v15, 7, v{vE5}")
    a(f"v_lshlrev_b32 v16, 1, v{vH}")
    a("v_xor_b32 v16, v16, v15")
    a("v_lshlrev_b32 v16, 4, v16")
    a(f"v_lshl_add_u32 v16, v{vE5}, 7, v16")
    a("v_add_u32 v16, s31, v16")
    a("v_lshrrev_b32 v20, 3, v1")
    a("v_and_b32 v21, 7, v1")
    a("v_xor_b32 v22, v21, v20")
    a("v_lshlrev_b32 v22, 4, v22")
    a("v_lshl_add_u32 v22, v20, 7, v22")
    a("v_add_u32 v22, s31, v22")
    a("v_add_u32 v20, s29, v20")
    a("v_lshlrev_b32 v20, 9, v20")
    a("v_lshl_add_u32 v20, v21, 4, v20")
    a("s_lshl_b32 s30, s28, 7")
    a("v_add_u32 v20, s30, v20")
    a(f"v_lshrrev_b32 v23, 2, v{vE5}")
    a("v_and_b32 v23, 3, v23")
    a("v_lshlrev_b32 v23, 4, v23")
    a(f"v_lshl_add_u32 v23, v{vE5}, 6, v23")
    a(f"v_lshl_add_u32 v23, v{vH}, 3, v23")
    a("v_add_u32 v23, s31, v23")
    a("v_lshrrev_b32 v24, 4, v1\nv_and_b32 v24, 3, v24")
    a("v_and_b32 v25, 3, v1")
    a("v_xor_b32 v24, v24, v25")
    a("v_lshlrev_b32 v24, 4, v24")
    a("v_lshrrev_b32 v26, 2, v1")
    a("v_lshl_add_u32 v24, v26, 6, v24")
    a("v_add_u32 v24, s31, v24")
    a("v_add_u32 v26, s29, v26")
    a("v_lshlrev_b32 v26, 8, v26")
    a("v_lshl_add_u32 v26, v25, 4, v26")
    a("s_lshl_b32 s30, s28, 6")
    a("v_add_u32 v26, s30, v26")
    stamp()
    a("s_waitcnt vmcnt(0)")
    stamp()
    a("s_barrier")
    stamp()
    def xreads(ps):
        for s_ in range(8):
            ad = vX0 if s_ % 2 == 0 else vX1
            a(f"ds_read_b128 v[{fX+4*s_}:{fX+4*s_+3}], v{ad} offset:{ps*2*XSLOT + (s_>>1)*64}")
    for s in range(8):
        for part in range(2):
            a(f"ds_read_b64_tr_b16 v[{f0+4*s+2*part}:{f0+4*s+2*part+1}], v{vWt} offset:{G_W0 + (16*s+4*part)*256}")
        if s == 5: a("s_waitcnt lgkmcnt(4)")
    a("s_waitcnt lgkmcnt(4)")
    xreads(0)
    a("s_waitcnt lgkmcnt(4)")
    a(f"s_mov_b32 s30, {NEG_LOG2E:#x}")
    for ps in range(2):
        if ps == 0:
            for s_ in range(8):
                if s_ == 4: a("s_waitcnt lgkmcnt(6)")
                for part in range(2):
                    a(f"ds_read_b64_tr_b16 v[{f1+4*s_+2*part}:{f1+4*s_+2*part+1}], v{vWt} offset:{G_W1 + (16*s_+4*part)*256}")
                if s_ < 4:
                    if s_ == 0: pass
                    a(mf(d0, f0 + 4*s_, fX + 4*s_, None if s_ == 0 else d0))
            a("s_waitcnt lgkmcnt(8)")
            for s_ in range(4, 8): a(mf(d0, f0 + 4*s_, fX + 4*s_, d0))
            a("s_waitcnt lgkmcnt(0)")
        else:
            a("s_waitcnt lgkmcnt(0)")
            for s_ in range(8): a(mf(d0, f0 + 4*s_, fX + 4*s_, None if s_ == 0 else d0))
        for s_ in range(8):
            a(mf(d1, f1 + 4*s_, fX + 4*s_, None if s_ == 0 else d1))
        a("s_nop 3")
        for r in range(16): a(f"v_mul_f32 v{d0+r}, s30, v{d0+r}")
        for r in range(8): a(f"v_cvt_pk_bf16_f32 v{d0+r}, v{d0+2*r}, v{d0+2*r+1}")
        for r in range(8): a(f"v_cvt_pk_bf16_f32 v{d0+8+r}, v{d1+2*r}, v{d1+2*r+1}")
        a("s_cmp_eq_u32 s36, 0")
        a(f"s_cbranch_scc0 P_g_au{ps}")
        a(f"ds_write_b128 v16, v[{d0}:{d0+3}]")
        a("v_xor_b32 v17, 16, v16")
        a(f"ds_write_b128 v17, v[{d0+4}:{d0+7}]")
        a("v_xor_b32 v18, 64, v16")
        a(f"ds_write_b128 v18, v[{d0+8}:{d0+11}]")
        a("v_xor_b32 v19, 64, v17")
        a(f"ds_write_b128 v19, v[{d0+12}:{d0+15}]")
        for i in range(4):
            a(f"ds_read_b128 v[{d1+4*i}:{d1+4*i+3}], v22 offset:{i*1024}")
        if ps == 0:
            a("s_waitcnt lgkmcnt(4)")
            xreads(1)
        a(f"s_mov_b32 s33, {ps*64*512}")
        for i in range(4):
            a(f"s_waitcnt lgkmcnt({3-i + (8 if ps == 0 else 0)})")
            a(f"buffer_store_dwordx4 v[{d1+4*i}:{d1+4*i+3}], v20, s[24:27], s33 offen {SF}")
            if i < 3: a("s_add_u32 s33, s33, 4096")
        a(f"s_branch P_g_done{ps}")
        a(f"P_g_au{ps}:")
        for j in range(4):
            if j: a(f"v_xor_b32 v17, {16*j}, v23")
            ad = 23 if j == 0 else 17
            a(f"ds_write_b64 v{ad}, v[{d0+2*j}:{d0+2*j+1}]")
            a(f"ds_write_b64 v{ad}, v[{d0+8+2*j}:{d0+8+2*j+1}] offset:2048")
        for i in range(4):
            a(f"ds_read_b128 v[{d1+4*i}:{d1+4*i+3}], v24 offset:{i*1024}")
        if ps == 0:
            a("s_waitcnt lgkmcnt(4)")
            xreads(1)
        a(f"s_mov_b32 s33, {ps*64*256}")
        for i in range(4):
            a(f"s_waitcnt lgkmcnt({3-i + (8 if ps == 0 else 0)})")
            sr = 24 if i < 2 else sXU
            a(f"buffer_store_dwordx4 v[{d1+4*i}:{d1+4*i+3}], v26, s[{sr}:{sr+3}], s33 offen offset:0 {SF}")
            if i == 0: a("s_add_u32 s33, s33, 4096")
            if i == 1: a("s_sub_u32 s33, s33, 4096")
            if i == 2: a("s_add_u32 s33, s33, 4096")
        a(f"P_g_done{ps}:")
    stamp()
    if dbg: a("s_waitcnt vmcnt(0)")
    dump(2)
    tl_end()
    a("s_endpgm")
    if flag("cpf"):
        a("P_pf:")
        a("s_cmp_lg_u32 s22, 8")
        a("s_cbranch_scc1 P_end")
        a("s_getpc_b64 s[12:13]")
        a("P_pc:")
        a(f"s_add_u32 s12, s12, {KNAME}-P_pc")
        a("s_addc_u32 s13, s13, 0")
        a("v_lshlrev_b32 v2, 6, v1")
        a("v_mov_b32 v3, 0")
        a("v_mov_b32 v5, s13")
        a("v_add_co_u32 v4, vcc, s12, v2")
        a("v_addc_co_u32 v5, vcc, v5, v3, vcc")
        for i in range(3):
            if i == 2:
                a(f"s_mov_b32 s14, (M_end-{KNAME}-8192+64)>>6")
                a("v_cmp_gt_u32 vcc, s14, v1")
                a("s_mov_b64 exec, vcc")
                a("s_cbranch_execz P_pf_done")
            a(f"global_load_dword v{8+i}, v[4:5], off")
            if i < 2:
                a("v_add_co_u32 v4, vcc, 0x1000, v4")
                a("v_addc_co_u32 v5, vcc, v5, v3, vcc")
        a("P_pf_done:")
        a("s_waitcnt vmcnt(0)")
        a("s_endpgm")
    if flag("epf"):
        a("P_pf:")
        a("s_load_dwordx2 s[12:13], s[0:1], 8")
        a(f"s_sub_u32 s3, s2, {NCH}")
        a("s_lshl_b32 s3, s3, 1")
        a("s_add_u32 s3, s3, s22")
        a("s_sub_u32 s3, s3, 8")
        a("s_lshl_b32 s3, s3, 15")
        a("v_lshlrev_b32 v2, 4, v1")
        a("s_waitcnt lgkmcnt(0)")
        a("s_and_b32 s13, s13, 0xffff")
        a(f"s_mov_b32 s14, {E*32}")
        a("s_mov_b32 s15, 0x20000")
        for i in range(32):
            a(f"buffer_load_dwordx4 v[{8+4*(i%8)}:{11+4*(i%8)}], v2, s[12:15], s3 offen offset:{(i%4)*1024} {opt('epfflag', '')}")
            if i % 4 == 3: a("s_add_u32 s3, s3, 4096")
        a("s_endpgm")
    a("P_weights:")
    a("s_load_dwordx2 s[8:9], s[0:1], 48")
    a("s_load_dwordx2 s[10:11], s[0:1], 72")
    a("v_lshrrev_b32 v2, 6, v0")
    a("v_and_b32 v1, 63, v0")
    a("v_readfirstlane_b32 s3, v2")
    a("s_nop 0")
    a("s_cmp_ge_u32 s3, 4")
    a("s_cbranch_scc1 P_end")
    a("s_waitcnt lgkmcnt(0)")
    srd(a, 12, 8, 9, 272 * 256)
    a("s_lshl_b32 s28, s3, 6")
    a(f"s_add_u32 s28, s28, {256*256}")
    a("v_lshrrev_b32 v2, 5, v1")
    a("v_lshlrev_b32 v2, 11, v2")
    a("v_and_b32 v3, 31, v1")
    a("v_lshl_add_u32 v2, v3, 1, v2")
    for j in range(8):
        a(f"buffer_load_ushort v{8+j}, v2, s[12:15], s28 offen offset:{j*256}")
    srd(a, 16, 10, 11, WS_SZ)
    a("s_lshl_b32 s3, s3, 10")
    a(f"s_add_u32 s3, s3, {WS_W}")
    a("v_lshlrev_b32 v1, 4, v1")
    a(f"s_mov_b32 s29, {NEG_LOG2E:#x}")
    a("s_waitcnt vmcnt(0)")
    for j in range(8): a(f"v_lshlrev_b32 v{8+j}, 16, v{8+j}")
    for j in range(8): a(f"v_mul_f32 v{8+j}, s29, v{8+j}")
    for j in range(4): a(f"v_cvt_pk_bf16_f32 v{16+j}, v{8+2*j}, v{9+2*j}")
    a("buffer_store_dwordx4 v[16:19], v1, s[16:19], s3 offen")
    a("P_end:")
    a("s_endpgm")
    return a.text() + descriptor("prep_kernel", 160, 96 if flag("tl") else 80 if dbg else 48)

CAP = 640
NPAD = 128
L_GR = 0
L_XA = L_GR + 4 * 2 * 4096
L_ER = L_XA + 4096
L_OR = L_ER + 3 * 1024
L_LS = L_OR + 3 * 1024
LSZ = (CAP + NPAD) * 4
L_LE = L_LS + LSZ
L_LQ = L_LE + LSZ
M_LDS = (L_LQ + CAP + NPAD + 63) // 64 * 64
AGG_STRIDE = 528

vLANE, vE5, vH = 1, 2, 3
vG = 4
vEA, vO0, vT0, vT1 = 8, 9, 10, 11
vLs, vLe, vLq = 12, 13, 14
pG = 16
pE = 24
vQ, vOHa, vOHd = 26, 27, 28
vK = 29
vT = 32
vC, vXA, vI, vACC, vZ, vHV = 56, 60, 64, 72, 88, 104
vFX, vFH, vAE, vAO, vSO, vMSG, vXU = 120, 128, 136, 140, 144, 152, 160
NVGPR = 164
U_REC = 8

def main_kernel(dbg=False):
    a = A()
    nst = [0]
    def stamp():
        if not dbg: return
        a("s_waitcnt lgkmcnt(0)")
        a("s_memtime s[58:59]")
        a("s_waitcnt lgkmcnt(0)")
        a(f"s_mov_b32 s{64+nst[0]}, s58")
        nst[0] += 1
    PRIO = opt("prio", "pair")
    header(a, KNAME)
    a(f"s_cmp_ge_u32 s2, {NB}")
    a("s_cbranch_scc1 M_end")
    a("s_load_dwordx2 s[6:7], s[0:1], 8")
    a("s_load_dwordx2 s[8:9], s[0:1], 56")
    a("s_load_dwordx2 s[10:11], s[0:1], 72")
    if flag("tl"): a("s_memrealtime s[68:69]\ns_load_dwordx2 s[72:73], s[0:1], 64")
    if PRIO != "none": a("s_setprio 3")
    if dbg: a("s_memrealtime s[60:61]")
    stamp()
    t0, t1, t2, t3 = vT, vT + 1, vT + 2, vT + 3
    vTv = vT + 4
    a(f"v_lshrrev_b32 v{t0}, 6, v0")
    a(f"v_and_b32 v{vLANE}, 63, v0")
    a(f"v_readfirstlane_b32 s32, v{t0}")
    a(f"v_mul_u32_u24 v{t1}, {NB*8}, v{vLANE}")
    a("s_lshl_b32 s38, s2, 3")
    a("s_and_b32 s33, s2, 255")
    a("s_lshr_b32 s39, s2, 8")
    a("s_mul_i32 s33, s33, 625")
    a("s_add_u32 s34, s33, 640")
    a("s_add_u32 s33, s33, 15")
    a("s_lshr_b32 s33, s33, 4")
    a("s_lshr_b32 s34, s34, 4")
    a("s_sub_u32 s34, s34, s33")
    a(f"s_sub_u32 s34, s34, {S0 + S1}")
    a("s_cmp_eq_u32 s39, 1")
    a(f"s_cselect_b32 s34, {S1}, s34")
    a(f"s_cselect_b32 s42, {S0}, {S0 + S1}")
    a("s_cmp_eq_u32 s39, 0")
    a(f"s_cselect_b32 s34, {S0}, s34")
    a("s_cselect_b32 s42, 0, s42")
    a("s_add_u32 s33, s33, s42")
    a(f"v_and_b32 v{vE5}, 31, v{vLANE}")
    a(f"v_lshrrev_b32 v{vH}, 5, v{vLANE}")
    a("s_waitcnt lgkmcnt(0)")
    srd(a, 20, 10, 11, WS_SZ)
    a("s_cmp_lg_u32 s32, 0")
    a("s_cbranch_scc1 M_noT")
    a(f"buffer_load_dwordx2 v[{vTv}:{vTv+1}], v{t1}, s[20:23], s38 offen")
    a("M_noT:")
    srd(a, 16, 6, 7, E, stride=32)
    srd(a, 24, 10, 11, N, stride=512, add=WS_TAB)
    srd(a, 28, 8, 9, N * 256)
    srd(a, 12, 10, 11, N, stride=256, add=WS_XA)
    srd(a, 44, 10, 11, N * 256, add=WS_XU)
    a(f"v_lshrrev_b32 v{t0}, 4, v{vLANE}")
    a(f"v_and_b32 v{t1}, 7, v{vLANE}")
    a(f"v_xor_b32 v{t1}, v{t1}, v{t0}")
    a("s_lshl_b32 s38, s32, 7")
    a(f"v_lshl_add_u32 v{pG+1}, v{t1}, 4, s38")
    a(f"v_xor_b32 v{pG+3}, 64, v{pG+1}")
    a(f"v_mov_b32 v{pG+5}, v{pG+1}")
    a(f"v_mov_b32 v{pG+7}, v{pG+3}")
    a(f"v_lshrrev_b32 v{t0}, 1, v{vE5}")
    a(f"v_and_b32 v{t0}, 7, v{t0}")
    a(f"v_xor_b32 v{t0}, v{t0}, v{vH}")
    a(f"v_lshlrev_b32 v{t0}, 4, v{t0}")
    a(f"v_lshl_add_u32 v{t0}, v{vE5}, 7, v{t0}")
    a("s_lshl_b32 s40, s32, 13")
    a(f"v_add_u32 v{vG}, s40, v{t0}")
    for k in range(1, 4):
        a(f"v_xor_b32 v{vG+k}, {32*k}, v{vG}")
    a("s_lshl_b32 s41, s32, 8")
    a(f"s_add_u32 s41, s41, {L_ER}")
    a(f"v_lshlrev_b32 v{t1}, 5, v{vE5}")
    a(f"v_bfe_u32 v{t0}, v{vE5}, 3, 1")
    a(f"v_xor_b32 v{t0}, v{t0}, v{vH}")
    a(f"v_lshl_add_u32 v{t0}, v{t0}, 4, v{t1}")
    a(f"v_add_u32 v{vEA}, {L_ER}, v{t0}")
    a(f"v_lshl_add_u32 v{t0}, v{vH}, 4, v{t1}")
    a(f"v_add_u32 v{vO0}, {L_OR}, v{t0}")
    a(f"v_bfe_u32 v{t1}, v{vLANE}, 2, 2")
    a(f"v_lshl_add_u32 v{t1}, v{vH}, 2, v{t1}")
    a(f"v_and_b32 v{t0}, 3, v{vLANE}")
    a(f"v_lshlrev_b32 v{t0}, 3, v{t0}")
    a(f"v_lshl_add_u32 v{t0}, v{t1}, 5, v{t0}")
    a(f"v_add_u32 v{vT0}, {L_OR}, v{t0}")
    a("s_and_b32 s38, s32, 1")
    a(f"v_and_b32 v{t0}, 1, v{vLANE}")
    a(f"v_xor_b32 v{t0}, s38, v{t0}")
    a(f"v_lshlrev_b32 v{pE+1}, 4, v{t0}")
    a(f"v_and_b32 v{t0}, 7, v{vLANE}")
    a("s_lshl_b32 s38, s32, 3")
    a(f"v_add_u32 v{t0}, s38, v{t0}")
    a(f"v_lshlrev_b32 v{t1}, 5, v{t0}")
    a(f"v_bfe_u32 v{t2}, v{vLANE}, 3, 1")
    for k in range(3):
        s_set, s_clr = (k + 2) % 3, k
        a(f"v_mul_i32_i24 v{t3}, {(s_clr - s_set) * 1024}, v{t2}")
        a(f"v_add_u32 v{t3}, {s_set*1024 + L_OR}, v{t3}")
        a(f"v_add_u32 v{vK+k}, v{t3}, v{t1}")
    a(f"v_sub_u32 v{t3}, 1, v{t2}")
    a(f"v_mul_u32_u24 v{vOHd}, 0x3f80, v{t3}")
    vLq0 = vT + 22
    a(f"v_lshlrev_b32 v{t2}, 6, v{t2}")
    a(f"v_sub_u32 v{t0}, v{t0}, v{t2}")
    a(f"v_add_u32 v{vLq0}, {L_LQ + 64}, v{t0}")
    a(f"v_and_b32 v{t0}, 1, v{vE5}")
    a(f"v_lshlrev_b32 v{t0}, 4, v{t0}")
    a(f"v_mov_b32 v{t1}, 0x3f80")
    a(f"v_lshlrev_b32 v{t0}, v{t0}, v{t1}")
    a(f"v_bfe_u32 v{t1}, v{vE5}, 1, 1")
    a(f"v_lshrrev_b32 v{t2}, 2, v{vE5}")
    a(f"v_and_b32 v{t3}, 2, v{t2}")
    a(f"v_or_b32 v{t1}, v{t1}, v{t3}")
    a(f"v_and_b32 v{t2}, 1, v{t2}")
    a(f"v_lshl_add_u32 v{t1}, v{t2}, 2, v{t1}")
    a(f"v_lshrrev_b32 v{t2}, 4, v{vE5}")
    a(f"v_xor_b32 v{t2}, v{t2}, v{vH}")
    a(f"v_lshl_add_u32 v{t1}, v{t2}, 3, v{t1}")
    for g in range(2):
        pairs = ["vcc", "s[48:49]", "s[50:51]", "s[54:55]"]
        for k in range(4): a(f"v_cmp_eq_u32 {pairs[k]}, {4*g+k}, v{t1}")
        for k in range(4): a(f"v_cndmask_b32 v{vI+4*g+k}, 0, v{t0}, {pairs[k]}")
    for r in range(8):
        a(f"v_mov_b32 v{vACC+r}, 0")
    vRecI, vPos0, vCnt, vEb = vT + 4, vT + 5, vT + 6, vT + 7
    vc = vHV
    vp = vHV + 4
    tb = vZ
    L_TB = L_GR
    a("s_cmp_lg_u32 s32, 0")
    a("s_cbranch_scc1 M_scan_done")
    a(f"v_mul_u32_u24 v{t3}, {CH}, v{vLANE}")
    a("s_waitcnt vmcnt(0)")
    stamp()
    a(f"v_lshrrev_b32 v{t1}, 16, v{vTv}")
    a(f"v_and_b32 v{vc}, 0xff, v{vTv+1}")
    a(f"v_bfe_u32 v{vc+1}, v{vTv+1}, 8, 8")
    a(f"v_bfe_u32 v{vc+2}, v{vTv+1}, 16, 8")
    a(f"v_add3_u32 v{t0}, v{vc}, v{vc+1}, v{vc+2}")
    a(f"v_sub_u32 v{vc+3}, v{t1}, v{t0}")
    for k in range(4): a(f"v_mov_b32 v{vp+k}, v{vc+k}")
    a(f"v_and_b32 v{t2}, 0xffff, v{vTv}")
    for sh in (1, 2, 4, 8):
        for k in range(4):
            a(f"v_add_u32_dpp v{vp+k}, v{vp+k}, v{vp+k} row_shr:{sh} row_mask:0xf bank_mask:0xf bound_ctrl:1")
    for k in range(4): a(f"v_add_u32_dpp v{vp+k}, v{vp+k}, v{vp+k} row_bcast:15 row_mask:0xa bank_mask:0xf")
    for k in range(4): a(f"v_add_u32_dpp v{vp+k}, v{vp+k}, v{vp+k} row_bcast:31 row_mask:0xc bank_mask:0xf")
    a(f"v_add_u32 v{tb}, v{t3}, v{t2}")
    for k in range(4): a(f"v_readlane_b32 s{48+k}, v{vp+k}, 63")
    for k in range(1, 4): a(f"v_add_u32 v{tb+4*k}, v{tb+4*k-4}, v{vc+k-1}")
    a("s_add_u32 s49, s49, s48")
    a("s_add_u32 s50, s50, s49")
    a("s_add_u32 s35, s51, s50")
    for k in range(4): a(f"v_sub_u32 v{tb+4*k+1}, v{vp+k}, v{vc+k}")
    for k in range(1, 4): a(f"v_add_u32 v{tb+4*k+1}, s{47+k}, v{tb+4*k+1}")
    for k in range(4): a(f"v_mov_b32 v{tb+4*k+2}, v{vc+k}")
    for k in range(4): a(f"v_mov_b32 v{tb+4*k+3}, v{t3}")
    wa = vHV + 8
    a(f"v_and_b32 v{wa+1}, 3, v{tb}")
    a(f"v_and_b32 v{wa}, 0xfffffffc, v{tb}")
    a(f"v_lshlrev_b32 v{wa}, 2, v{wa}")
    a(f"v_lshrrev_b32 v{t1}, 16, v{vTv}")
    a(f"v_add_u32 v{wa+1}, v{wa+1}, v{t1}")
    a(f"v_cmp_lt_u32 vcc, 32, v{wa+1}")
    a(f"s_cmp_le_u32 s35, {CAP}")
    a("s_cselect_b32 s54, 1, 0")
    a("s_cmp_eq_u64 vcc, 0")
    a("s_cselect_b32 s54, s54, 0")
    a(f"v_lshlrev_b32 v{t0}, 6, v{vLANE}")
    a(f"v_lshlrev_b32 v{t3}, 3, v{vLANE}")
    a(f"v_mov_b32 v{wa+2}, s35")
    a(f"v_mov_b32 v{wa+3}, s54")
    a(f"v_mov_b32 v{t2}, {L_TB + 4096}")
    for k in range(4): a(f"ds_write_b128 v{t0}, v[{tb+4*k}:{tb+4*k+3}] offset:{L_TB+16*k}")
    a(f"ds_write_b64 v{t3}, v[{wa}:{wa+1}] offset:{L_TB + 4160}")
    a(f"ds_write_b64 v{t2}, v[{wa+2}:{wa+3}]")
    a("s_waitcnt lgkmcnt(0)")
    a("M_scan_done:")
    if dbg: nst[0] = 2
    a(f"v_lshlrev_b32 v{t0}, 4, v0")
    a(f"v_mov_b32 v{t2}, {L_TB + 4096}")
    a("s_barrier")
    wb = vHV
    a(f"ds_read_b128 v[{vRecI}:{vRecI+3}], v{t0} offset:{L_TB}")
    a(f"ds_read_b64 v[{wb+4}:{wb+5}], v{t2}")
    a(f"v_lshrrev_b32 v{t1}, 3, v{vLANE}")
    a("s_lshl_b32 s38, s32, 7")
    a(f"v_lshl_add_u32 v{t1}, v{t1}, 3, s38")
    a(f"ds_read_b64 v[{wb}:{wb+1}], v{t1} offset:{L_TB + 4160}")
    a(f"ds_read_b64 v[{wb+2}:{wb+3}], v{t1} offset:{L_TB + 4160 + 64}")
    a(f"v_and_b32 v{t3}, 7, v{vLANE}")
    a(f"v_lshlrev_b32 v{t3}, 2, v{t3}")
    a("s_waitcnt lgkmcnt(0)")
    a(f"v_readfirstlane_b32 s35, v{wb+4}")
    a(f"v_readfirstlane_b32 s54, v{wb+5}")
    stamp()
    def side_loads():
        b0 = vMSG
        a(f"v_lshlrev_b32 v{b0+2}, 4, v{vLANE}")
        a("s_lshl_b32 s42, s32, 10")
        a(f"s_add_u32 m0, s42, {L_XA}")
        a(f"s_add_u32 s42, s42, {WS_W}")
        a(f"buffer_load_dwordx4 v[{vC}:{vC+3}], v{b0+2}, s[20:23], s42 offen")
        a(f"v_lshrrev_b32 v{b0}, 4, v0")
        a(f"v_add_u32 v{b0}, s33, v{b0}")
        a(f"v_and_b32 v{b0+1}, 15, v0")
        a(f"v_lshlrev_b32 v{b0+1}, 4, v{b0+1}")
        a(f"buffer_load_dwordx4 v[{b0}:{b0+1}], s[12:15], 0 idxen offen lds")
    def xu_load():
        a(f"v_lshrrev_b32 v{vOHa}, 4, v0")
        a(f"v_add_u32 v{vOHa}, s33, v{vOHa}")
        a(f"v_lshlrev_b32 v{vOHa}, 8, v{vOHa}")
        a(f"v_and_b32 v{vXU}, 15, v0")
        a(f"v_lshl_add_u32 v{vOHa}, v{vXU}, 4, v{vOHa}")
        a(f"buffer_load_dwordx4 v[{vXU}:{vXU+3}], v{vOHa}, s[44:47], 0 offen")
    a("s_mov_b32 s36, 0")
    a("s_mov_b32 s43, 1")
    a("s_mov_b32 s53, 1")
    a("s_cmp_eq_u32 s35, 0")
    a("s_cbranch_scc1 M_empty")

    a("s_cmp_eq_u32 s54, 0")
    a("s_cbranch_scc1 M_batch")
    L_RW = L_GR + 8192
    a(f"s_mov_b32 s52, {WS_REC}")
    a("s_lshl_b32 s38, s32, 11")
    for i in range(2):
        a(f"v_cmp_lt_u32 vcc, v{t3}, v{wb+2*i+1}")
        a(f"v_lshl_add_u32 v{wb+2*i}, v{t3}, 2, v{wb+2*i}")
        a(f"s_add_u32 m0, s38, {L_RW + 1024*i}")
        a("s_mov_b64 exec, vcc")
        a(f"buffer_load_dwordx4 v{wb+2*i}, s[20:23], s52 offen lds")
        a("s_mov_b64 exec, -1")
    side_loads()
    a("s_mov_b32 s43, 0")
    z = vT + 10
    for k in range(4): a(f"v_mov_b32 v{z+k}, 0")
    a(f"v_lshlrev_b32 v{t0}, 4, v0")
    a(f"v_cmp_gt_u32 vcc, 192, v0")
    a("s_mov_b64 exec, vcc")
    a(f"ds_write_b128 v{t0}, v[{z}:{z+3}] offset:{L_OR}")
    a("s_mov_b64 exec, -1")
    a("s_mov_b32 s37, s35")
    vP4, vP1, vA = vT + 12, vT + 13, vT + 3
    vR = vT + 14
    a(f"v_lshrrev_b32 v{t0}, 2, v0")
    a(f"v_lshlrev_b32 v{t0}, 7, v{t0}")
    a(f"v_mov_b32_dpp v{t2}, v{vRecI} quad_perm:[0,0,0,0] row_mask:0xf bank_mask:0xf")
    a(f"v_and_b32 v{t2}, 0xfffffffc, v{t2}")
    a(f"v_sub_u32 v{t2}, v{vRecI}, v{t2}")
    a(f"v_lshl_add_u32 v{vA}, v{t2}, 2, v{t0}")
    a(f"v_mov_b32 v{vP1}, v{vPos0}")
    a(f"v_lshlrev_b32 v{vP4}, 2, v{vPos0}")
    a("s_waitcnt vmcnt(2)")
    if dbg:
        a("s_memtime s[58:59]\ns_waitcnt lgkmcnt(0)\ns_mov_b32 s67, s58")
    a("M_fast_round:")
    for u in range(8): a(f"ds_read_b32 v{vR+u}, v{vA} offset:{L_RW + 4*u}")
    for u in range(8):
        a(f"v_cmp_lt_i32 vcc, {u}, v{vCnt}")
        a("s_mov_b64 exec, vcc")
        a("s_cbranch_execz M_fast_done")
        if u == 0: a("s_waitcnt lgkmcnt(0)")
        a(f"v_and_b32 v{t0}, 0x3fff, v{vR+u}")
        a(f"v_bfe_u32 v{t1}, v{vR+u}, 14, 5")
        a(f"v_lshrrev_b32 v{t2}, 19, v{vR+u}")
        a(f"v_add_u32 v{t2}, v{t2}, v{vEb}")
        if flag("exp_e"): a(f"v_and_b32 v{t2}, 0x3fff, v{t2}")
        if flag("exp_t"): a(f"v_and_b32 v{t0}, 0x7ff, v{t0}")
        a(f"ds_write_b32 v{vP4}, v{t0} offset:{L_LS + 4*u}")
        a(f"ds_write_b8 v{vP1}, v{t1} offset:{L_LQ + u}")
        a(f"ds_write_b32 v{vP4}, v{t2} offset:{L_LE + 4*u}")
    a("s_mov_b64 exec, -1")
    a(f"v_subrev_u32 v{vCnt}, 8, v{vCnt}")
    a(f"v_add_u32 v{vA}, 32, v{vA}")
    a(f"v_add_u32 v{vP4}, 32, v{vP4}")
    a(f"v_add_u32 v{vP1}, 8, v{vP1}")
    a(f"v_cmp_lt_i32 vcc, 0, v{vCnt}")
    a("s_cbranch_vccnz M_fast_round")
    a("M_fast_done:")
    a("s_mov_b64 exec, -1")
    a("s_branch M_pads")
    a("M_batch:")
    z = vT + 10
    for k in range(4): a(f"v_mov_b32 v{z+k}, 0")
    a(f"v_lshlrev_b32 v{t0}, 4, v0")
    a(f"v_cmp_gt_u32 vcc, 192, v0")
    a("s_mov_b64 exec, vcc")
    a(f"ds_write_b128 v{t0}, v[{z}:{z+3}] offset:{L_OR}")
    a("s_mov_b64 exec, -1")
    a("s_sub_u32 s37, s35, s36")
    a(f"s_min_u32 s37, s37, {CAP}")
    vJ, vRem, vRa, vP4, vP1 = vT + 10, vT + 11, vT + 3, vT + 12, vT + 13
    a(f"v_sub_u32 v{vJ}, s36, v{vPos0}")
    a(f"v_add_u32 v{vRem}, {CAP}, v{vJ}")
    a(f"v_max_i32 v{vJ}, 0, v{vJ}")
    a(f"v_min_i32 v{vRem}, v{vRem}, v{vCnt}")
    a(f"v_sub_u32 v{vRem}, v{vRem}, v{vJ}")
    a(f"v_add_lshl_u32 v{vRa}, v{vJ}, v{vRecI}, 2")
    a(f"v_add_u32 v{vP1}, v{vPos0}, v{vJ}")
    a(f"v_subrev_u32 v{vP1}, s36, v{vP1}")
    a(f"v_lshlrev_b32 v{vP4}, 2, v{vP1}")
    a(f"s_mov_b32 s52, {WS_REC}")
    vR = vT + 14
    a("M_round:")
    for half in range(2):
        a(f"v_cmp_lt_i32 vcc, {4*half}, v{vRem}")
        a("s_mov_b64 exec, vcc")
        a("s_cbranch_execz M_round_issued")
        a(f"buffer_load_dwordx4 v[{vR+4*half}:{vR+4*half+3}], v{vRa}, s[20:23], s52 offen offset:{16*half}")
    a("M_round_issued:")
    a("s_mov_b64 exec, -1")
    a("s_cmp_eq_u32 s43, 0")
    a("s_cbranch_scc1 M_round_w0")
    side_loads()
    a("s_mov_b32 s43, 0")
    a("s_waitcnt vmcnt(2)")
    a("s_branch M_round_proc")
    a("M_round_w0:")
    a("s_waitcnt vmcnt(0)")
    a("M_round_proc:")
    if dbg:
        a("s_memtime s[58:59]\ns_waitcnt lgkmcnt(0)\ns_mov_b32 s67, s58"); nst[0] = 4
    for u in range(8):
        a(f"v_cmp_lt_i32 vcc, {u}, v{vRem}")
        a("s_mov_b64 exec, vcc")
        a("s_cbranch_execz M_round_done")
        a(f"v_and_b32 v{t0}, 0x3fff, v{vR+u}")
        a(f"v_bfe_u32 v{t1}, v{vR+u}, 14, 5")
        a(f"v_lshrrev_b32 v{t2}, 19, v{vR+u}")
        a(f"v_add_u32 v{t2}, v{t2}, v{vEb}")
        if flag("exp_e"): a(f"v_and_b32 v{t2}, 0x3fff, v{t2}")
        if flag("exp_t"): a(f"v_and_b32 v{t0}, 0x7ff, v{t0}")
        a(f"ds_write_b32 v{vP4}, v{t0} offset:{L_LS + 4*u}")
        a(f"ds_write_b8 v{vP1}, v{t1} offset:{L_LQ + u}")
        a(f"ds_write_b32 v{vP4}, v{t2} offset:{L_LE + 4*u}")
    a("M_round_done:")
    a("s_mov_b64 exec, -1")
    a(f"v_subrev_u32 v{vRem}, 8, v{vRem}")
    a(f"v_add_u32 v{vRa}, 32, v{vRa}")
    a(f"v_add_u32 v{vP4}, 32, v{vP4}")
    a(f"v_add_u32 v{vP1}, 8, v{vP1}")
    a(f"v_cmp_lt_i32 vcc, 0, v{vRem}")
    a("s_cbranch_vccnz M_round")
    a("M_pads:")
    a("s_cmp_ge_u32 s32, 2")
    a("s_cbranch_scc1 M_pad_done")
    a(f"v_add_u32 v{t0}, s37, v0")
    a(f"v_add_u32 v{t1}, {L_LQ}, v{t0}")
    a(f"v_lshlrev_b32 v{t0}, 2, v{t0}")
    a(f"v_add_u32 v{t0}, {L_LS}, v{t0}")
    a(f"v_mov_b32 v{t2}, 0xffffff")
    a(f"v_mov_b32 v{t3}, 15")
    a(f"ds_write_b32 v{t0}, v{t2}")
    a(f"ds_write_b32 v{t0}, v{t2} offset:{L_LE - L_LS}")
    a(f"ds_write_b8 v{t1}, v{t3}")
    a("M_pad_done:")
    a(f"v_lshrrev_b32 v{t0}, 3, v{vLANE}")
    a(f"v_lshlrev_b32 v{t0}, 2, v{t0}")
    a(f"v_add_u32 v{vLs}, {L_LS}, v{t0}")
    a("s_lshl_b32 s38, s32, 5")
    a(f"s_add_u32 s38, s38, {L_LE}")
    a(f"v_and_b32 v{t0}, 15, v{vLANE}")
    a(f"v_lshrrev_b32 v{t0}, 1, v{t0}")
    a(f"v_lshl_add_u32 v{vLe}, v{t0}, 2, s38")
    a(f"v_mov_b32 v{vLq}, v{vLq0}")
    a("s_waitcnt lgkmcnt(0)")
    a("s_barrier")
    stamp()
    def idx_reads(T):
        for q in range(4):
            a(f"ds_read_b32 v{pG+2*q}, v{vLs} offset:{128*T + 32*q}")
        a(f"ds_read_b32 v{pE}, v{vLe} offset:{128*T}")
    def dma_tile(gslot, eslot):
        for q in range(4):
            a(f"s_add_u32 m0, s40, {L_GR + gslot*4096 + q*1024}")
            a("s_nop 0")
            a(f"buffer_load_dwordx4 v[{pG+2*q}:{pG+2*q+1}], s[24:27], 0 idxen offen {opt('gflag', '')} lds")
        a(f"s_add_u32 m0, s41, {eslot*1024}")
        a("s_mov_b64 exec, 0xffff")
        a(f"buffer_load_dwordx4 v[{pE}:{pE+1}], s[16:19], 0 idxen offen {opt('eflag', '')} lds")
        a("s_mov_b64 exec, -1")
    def frag_reads(gs, es):
        a(f"ds_read_b128 v[{vFX}:{vFX+3}], v{vG} offset:{L_GR + gs*4096}")
        a(f"ds_read_b128 v[{vFX+4}:{vFX+7}], v{vG+1} offset:{L_GR + gs*4096}")
        a(f"ds_read_b128 v[{vAE}:{vAE+3}], v{vEA} offset:{es*1024}")
        a(f"ds_read_b128 v[{vAO}:{vAO+3}], v{vO0} offset:{es*1024}")
        a(f"ds_read_b128 v[{vFH}:{vFH+3}], v{vG+2} offset:{L_GR + gs*4096}")
        a(f"ds_read_b128 v[{vFH+4}:{vFH+7}], v{vG+3} offset:{L_GR + gs*4096}")
    idx_reads(0)
    a(f"v_subrev_u32 v{t0}, 64, v{vLq}")
    a(f"ds_read_u8 v{vQ}, v{t0}")
    a(f"ds_read_u8 v{vOHa}, v{t0} offset:32")
    a("s_waitcnt lgkmcnt(2)")
    dma_tile(0, 0)
    idx_reads(1)
    a("s_waitcnt lgkmcnt(5)")
    a(f"v_lshl_add_u32 v{vQ}, v{vQ}, 1, v{vK+1}")
    a(f"v_lshl_add_u32 v{vOHa}, v{vOHa}, 1, v{vK+2}")
    a("s_mov_b64 exec, 0xff")
    a(f"ds_write_b16 v{vQ}, v{vOHd}")
    a(f"ds_write_b16 v{vOHa}, v{vOHd}")
    a("s_mov_b64 exec, -1")
    a("s_waitcnt vmcnt(0) lgkmcnt(0)")
    a("s_barrier")
    dma_tile(1, 1)
    idx_reads(2)
    frag_reads(0, 0)
    a("s_cmp_lg_u32 s36, 0")
    a("s_cbranch_scc1 M_noxa")
    a(f"v_lshrrev_b32 v{t0}, 2, v{vLANE}\nv_and_b32 v{t0}, 3, v{t0}")
    a(f"v_lshl_add_u32 v{t0}, v{vH}, 2, v{t0}")
    a(f"v_lshlrev_b32 v{t0}, 8, v{t0}")
    a(f"v_lshrrev_b32 v{t1}, 4, v{vLANE}\nv_and_b32 v{t1}, 1, v{t1}")
    a(f"v_lshl_add_u32 v{t0}, v{t1}, 5, v{t0}")
    a(f"v_and_b32 v{t1}, 3, v{vLANE}")
    a(f"v_lshl_add_u32 v{t0}, v{t1}, 3, v{t0}")
    a("s_lshl_b32 s38, s32, 6")
    a(f"v_add_u32 v{t0}, s38, v{t0}")
    a(f"ds_read_b64_tr_b16 v[{vXA}:{vXA+1}], v{t0} offset:{L_XA}")
    a(f"ds_read_b64_tr_b16 v[{vXA+2}:{vXA+3}], v{t0} offset:{L_XA + 2048}")
    a("M_noxa:")
    a("s_waitcnt lgkmcnt(0)")
    SPREAD = opt("spread", "1") != "0"
    LATE = {"0": [0, 1, 2, 3, 4], "1": [0, 1], "2": [], "3": [0]}[opt("spread", "1")]
    EARLY = [p for p in range(5) if p not in LATE]
    def dma_part(p, gslot, eslot, filler=None):
        if p < 4:
            a(f"s_add_u32 m0, s40, {L_GR + gslot*4096 + p*1024}")
            a(filler if filler else "s_nop 0")
            a(f"buffer_load_dwordx4 v[{pG+2*p}:{pG+2*p+1}], s[24:27], 0 idxen offen {opt('gflag', '')} lds")
        else:
            a(f"s_add_u32 m0, s41, {eslot*1024}")
            a("s_mov_b64 exec, 0xffff")
            a(f"buffer_load_dwordx4 v[{pE}:{pE+1}], s[16:19], 0 idxen offen {opt('eflag', '')} lds")
            a("s_mov_b64 exec, -1")
            if filler: a(filler)
    for p in LATE: dma_part(p, 0, 2)
    stamp()
    if dbg: a("s_memrealtime s[72:73]\ns_waitcnt lgkmcnt(0)")
    a("s_add_u32 s37, s37, 31")
    a("s_lshr_b32 s37, s37, 5")
    def chain(z, h):
        return [mf(z, vFX, vI, None), mf(z, vFX + 4, vI + 4, z), mf(z, vAE, vC, z), mf(z, vAO, vXA, z),
                mf(h, vFH, vI, None), mf(h, vFH + 4, vI + 4, h)]
    nlab = [0]
    def prio(p):
        if PRIO == "pair": a(f"s_setprio {p}")
        if PRIO == "pairbal":
            nlab[0] += 1
            a(f"s_setprio {p}")
            a(f"s_cbranch_vccz M_pr{nlab[0]}")
            a(f"s_setprio {p + 2}")
            a(f"M_pr{nlab[0]}:")
    if flag("tl"): a("s_memrealtime s[84:85]\ns_waitcnt lgkmcnt(0)")
    a("M_loop:")
    loop_start = len(a.l)
    for k in range(6):
        es = k % 3; es1 = (k + 1) % 3; gs1 = (k + 1) % 2
        gs2 = k % 2; es2 = (k + 2) % 3
        z, h = vZ, vHV
        a.c(f"---- position {k}: e/one-hot slot {es} ----")
        if PRIO == "bal" and k % 2 == 0:
            a(f"s_cmp_ge_u32 s37, 9\ns_cbranch_scc1 M_prio_done{k}\ns_setprio 2\ns_cmp_ge_u32 s37, 5\ns_cbranch_scc1 M_prio_done{k}\ns_setprio 1\ns_cmp_ge_u32 s37, 2\ns_cbranch_scc1 M_prio_done{k}\ns_setprio 0\nM_prio_done{k}:")
        if PRIO == "pairbal":
            a(f"s_cmp_gt_u32 s37, {opt('X', '4')}")
            a("s_cselect_b64 vcc, -1, 0")
        early = list(EARLY)
        ch = chain(z, h)
        if len(early) <= 3:
            if early: dma_part(early.pop(0), gs2, es2)
            a("s_waitcnt lgkmcnt(0)")
            for s_ in range(2):
                a(f"ds_read_b64_tr_b16 v[{vSO+4*s_}:{vSO+4*s_+1}], v{vT0} offset:{es*1024 + s_*512}")
                a(f"ds_read_b64_tr_b16 v[{vSO+4*s_+2}:{vSO+4*s_+3}], v{vT0} offset:{es*1024 + s_*512 + 256}")
            for x in ch[0:4]: a(x)
            if early: dma_part(early.pop(0), gs2, es2)
            for x in ch[4:6]: a(x)
            while early: dma_part(early.pop(0), gs2, es2)
        else:
            a("s_waitcnt lgkmcnt(0)")
            for s_ in range(2):
                a(f"ds_read_b64_tr_b16 v[{vSO+4*s_}:{vSO+4*s_+1}], v{vT0} offset:{es*1024 + s_*512}")
                a(f"ds_read_b64_tr_b16 v[{vSO+4*s_+2}:{vSO+4*s_+3}], v{vT0} offset:{es*1024 + s_*512 + 256}")
            for j, x in enumerate(ch):
                a(x)
                if early and j < 5: dma_part(early.pop(0), gs2, es2)
            while early: dma_part(early.pop(0), gs2, es2)
        a("s_waitcnt vmcnt(5) lgkmcnt(0)")
        a("s_barrier")
        frag_reads(gs1, es1)
        T3 = k + 3
        for q in range(4):
            a(f"ds_read_b32 v{pG+2*q}, v{vLs} offset:{128*T3 + 32*q}")
        a(f"ds_read_b32 v{pE}, v{vLe} offset:{128*T3}")
        a(f"ds_read_u8 v{vQ}, v{vLq} offset:{32*k}")
        if k == 1:
            a("s_cmp_eq_u32 s53, 0")
            a("s_cbranch_scc1 M_xu_done")
            xu_load()
            a("s_mov_b32 s53, 0")
            a("M_xu_done:")
        ex = [f"v_exp_f32 v{z+r}, v{z+r}" for r in range(16)]
        ad = [f"v_add_f32 v{z+r}, 1.0, v{z+r}" for r in range(16)]
        rc = [f"v_rcp_f32 v{z+r}, v{z+r}" for r in range(16)]
        mu = [f"v_mul_f32 v{z+r}, v{z+r}, v{h+r}" for r in range(16)]
        cv = [f"v_cvt_pk_bf16_f32 v{vMSG+r}, v{z+2*r}, v{z+2*r+1}" for r in range(8)]
        for x in ex: a(x)
        prio(0)
        for x in ad: a(x)
        prio(1)
        a("s_waitcnt lgkmcnt(0)")
        late = list(LATE)
        pos = {5: [0, 3, 6, 9, 12], 2: [1, 9], 1: [4], 0: []}[len(late)]
        r0 = 0
        for p, at in zip(late, pos):
            for x in rc[r0:at]: a(x)
            dma_part(p, gs1, es, rc[at])
            r0 = at + 1
        for x in rc[r0:16]: a(x)
        a(f"v_lshl_add_u32 v{vOHa}, v{vQ}, 1, v{vK+es}")
        a("s_mov_b64 exec, 0xffff")
        a(f"ds_write_b16 v{vOHa}, v{vOHd}")
        a("s_mov_b64 exec, -1")
        prio(0)
        for x in mu: a(x)
        prio(1)
        for x in cv: a(x)
        a("s_sub_u32 s37, s37, 1")
        a(mf(vACC, vSO, vMSG, vACC))
        a(mf(vACC, vSO + 4, vMSG + 4, vACC))
        a("s_cmp_eq_u32 s37, 0")
        a("s_cbranch_scc1 M_loop_done")
    a(f"v_add_u32 v{vLs}, {128*6}, v{vLs}")
    a(f"v_add_u32 v{vLe}, {128*6}, v{vLe}")
    a(f"v_add_u32 v{vLq}, {32*6}, v{vLq}")
    a("s_branch M_loop")
    abl = [x[6:] for x in ARGS if x.startswith("--abl_")]
    if abl:
        body = a.l[loop_start:]
        def drop(l):
            t = l.strip()
            if "dma" in abl and t.startswith("buffer_load") and " lds" in t: return True
            if "valu" in abl and t.startswith(("v_exp", "v_add_f32", "v_rcp", "v_mul_f32", "v_cvt_pk")): return True
            if "mfma" in abl and t.startswith("v_mfma"): return True
            if "bar" in abl and t.startswith("s_barrier"): return True
            if "frag" in abl and t.startswith("ds_read_b128"): return True
            if "tr" in abl and t.startswith("ds_read_b64_tr"): return True
            if "idx" in abl and t.startswith(("ds_read_b32", "ds_read_u8")): return True
            if "oh" in abl and t.startswith("ds_write_b16"): return True
            if "dmae" in abl and t.startswith("buffer_load") and "s[16:19]" in t: return True
            if "dmag" in abl and t.startswith("buffer_load") and "s[24:27]" in t: return True
            return False
        body = [l for l in body if not drop(l)]
        if "vmw" in abl: body = [l.replace("vmcnt(5) ", "") for l in body]
        a.l[loop_start:] = body
    a("M_loop_done:")
    if flag("tl"): a("s_memrealtime s[86:87]\ns_waitcnt lgkmcnt(0)")
    stamp()
    if dbg: a("s_memrealtime s[74:75]\ns_waitcnt lgkmcnt(0)")
    a("s_cmp_eq_u32 s53, 0")
    a("s_cbranch_scc1 M_xu_done2")
    xu_load()
    a("s_mov_b32 s53, 0")
    a("M_xu_done2:")
    a("s_waitcnt vmcnt(0) lgkmcnt(0)")
    a("s_barrier")
    a(f"s_add_u32 s36, s36, {CAP}")
    a("s_cmp_lt_u32 s36, s35")
    a("s_cbranch_scc1 M_batch")
    a("s_branch M_epilogue")
    a("M_empty:")
    xu_load()
    a("s_waitcnt vmcnt(0)")
    a("M_epilogue:")
    a(f"v_mul_u32_u24 v{t0}, {8*AGG_STRIDE}, v{vH}")
    a(f"v_lshl_add_u32 v{t0}, v{vE5}, 2, v{t0}")
    a("s_lshl_b32 s39, s32, 7")
    a(f"v_add_u32 v{t0}, s39, v{t0}")
    a("s_nop 7")
    for r in range(8):
        a(f"ds_write_b32 v{t0}, v{vACC+r} offset:{L_GR + r*AGG_STRIDE}")
    a(f"v_lshrrev_b32 v{t0}, 4, v0")
    a(f"v_and_b32 v{t1}, 15, v0")
    a(f"v_mul_u32_u24 v{t2}, {AGG_STRIDE}, v{t0}")
    a(f"v_lshl_add_u32 v{t2}, v{t1}, 5, v{t2}")
    a(f"v_add_u32 v{t3}, s33, v{t0}")
    a(f"v_lshlrev_b32 v{t3}, 8, v{t3}")
    a(f"v_lshl_add_u32 v{t3}, v{t1}, 4, v{t3}")
    a(f"s_mov_b32 s38, {NEG_LOG2E:#x}")
    a("s_waitcnt lgkmcnt(0)")
    a("s_barrier")
    y = vZ; w_ = vHV
    a(f"ds_read_b128 v[{y}:{y+3}], v{t2} offset:{L_GR}")
    a(f"ds_read_b128 v[{y+4}:{y+7}], v{t2} offset:{L_GR + 16}")
    for i in range(4):
        a(f"v_lshlrev_b32 v{w_+2*i}, 16, v{vXU+i}")
        a(f"v_and_b32 v{w_+2*i+1}, 0xffff0000, v{vXU+i}")
    a("s_waitcnt lgkmcnt(0)")
    for r in range(8): a(f"v_add_f32 v{y+r}, v{y+r}, v{w_+r}")
    for r in range(8): a(f"v_mul_f32 v{w_+r}, s38, v{y+r}")
    for r in range(8): a(f"v_exp_f32 v{w_+r}, v{w_+r}")
    for r in range(8): a(f"v_add_f32 v{w_+r}, 1.0, v{w_+r}")
    for r in range(8): a(f"v_rcp_f32 v{w_+r}, v{w_+r}")
    a("s_nop 0")
    for r in range(8): a(f"v_mul_f32 v{y+r}, v{y+r}, v{w_+r}")
    for r in range(4): a(f"v_cvt_pk_bf16_f32 v{vMSG+r}, v{y+2*r}, v{y+2*r+1}")
    if dbg:
        stamp()
        a("s_memrealtime s[62:63]\ns_waitcnt lgkmcnt(0)")
        a("s_mov_b32 s52, s10\ns_and_b32 s53, s11, 0xffff\ns_mov_b32 s54, 0x1000000\ns_mov_b32 s55, 0x20000")
        a(f"s_lshl_b32 s56, s2, 2\ns_add_u32 s56, s56, s32\ns_lshl_b32 s56, s56, 6\ns_add_u32 s56, s56, {DBG2:#x}")
        vals = [64, 65, 66, 67, 68, 69, 70, 71, 60, 62, 35, 72, 74]
        a("s_mov_b64 s[50:51], exec\ns_mov_b64 exec, 1")
        for i, r in enumerate(vals):
            a(f"v_mov_b32 v{vT+20}, s{r}")
            a(f"v_mov_b32 v{vT+21}, 0")
            a(f"buffer_store_dword v{vT+20}, v{vT+21}, s[52:55], s56 offen offset:{4*i}")
        a("s_mov_b64 exec, s[50:51]")
    if flag("tl"):
        a("s_memrealtime s[70:71]\ns_waitcnt lgkmcnt(0)")
        a("s_mov_b32 s76, s10\ns_and_b32 s77, s11, 0xffff\ns_mov_b32 s78, 0x1000000\ns_mov_b32 s79, 0x20000")
        a(f"s_lshl_b32 s75, s2, 2\ns_add_u32 s75, s75, s32\ns_lshl_b32 s75, s75, 4\ns_add_u32 s75, s75, {DBG2:#x}")
        a("s_mov_b64 s[80:81], exec\ns_mov_b64 exec, 1")
        a(f"v_mov_b32 v{vT+18}, s68\nv_mov_b32 v{vT+19}, s70\nv_mov_b32 v{vT+20}, s84\nv_mov_b32 v{vT+21}, s86\nv_mov_b32 v{vT+22}, 0")
        a(f"buffer_store_dwordx4 v[{vT+18}:{vT+21}], v{vT+22}, s[76:79], s75 offen")
        a("s_mov_b64 exec, s[80:81]")
    a(f"v_cmp_gt_u32 vcc, s34, v{t0}")
    a("s_mov_b64 exec, vcc")
    a("s_cbranch_execz M_end")
    a(f"buffer_store_dwordx4 v[{vMSG}:{vMSG+3}], v{t3}, s[28:31], 0 offen {opt('oflag', '').replace('_', ' ')}")
    a("M_end:")
    a("s_endpgm")
    return a.text() + descriptor(KNAME, NVGPR, 96 if (dbg or flag("tl")) else 56)

HEAD = f"""; Edge-gated message passing (gated graph conv) for gfx950.
;                 [-log2e * x@B | x@V], -log2e * x@A, x@U; C fragments in MFMA layout
;   main kernel : per bucket of 13/14 destination nodes: gather node-table rows and e_attr rows into LDS,
;                 gate pre-activation on the matrix cores, sigmoid gate, one-hot segment sum, silu
; @launch kernel=prep_kernel grid=({P_GRID},1,1) block=({P_BLOCK},1,1) lds={P_LDS}
; @launch kernel={KNAME} grid=({NB},1,1) block=(256,1,1) lds={M_LDS}
.amdgcn_target "amdgcn-amd-amdhsa--gfx950"
.text
"""

def tl_kernel():
    a = A()
    header(a, "tl_kernel")
    a("s_cmp_ge_u32 s2, 1\ns_cbranch_scc1 T_end")
    a("s_load_dwordx4 s[4:7], s[0:1], 64\ns_waitcnt lgkmcnt(0)")
    a("s_mov_b32 s8, s4\ns_and_b32 s9, s5, 0xffff\ns_mov_b32 s10, 256\ns_mov_b32 s11, 0x20000")
    a("s_mov_b32 s12, s6\ns_and_b32 s13, s7, 0xffff\ns_mov_b32 s14, 0x1000000\ns_mov_b32 s15, 0x20000")
    a("v_mov_b32 v10, 0")
    a(f"v_lshlrev_b32 v1, 6, v0\nv_add_u32 v1, {DBG2}, v1")
    a("v_cmp_gt_u32 vcc, 768, v0\ns_mov_b64 exec, vcc")
    a("buffer_load_dwordx4 v[4:7], v1, s[12:15], 0 offen\ns_waitcnt vmcnt(0)")
    a("v_not_b32 v8, v4\nbuffer_atomic_umax v8, v10, s[8:11], 0 offen offset:0")
    a("buffer_atomic_umax v4, v10, s[8:11], 0 offen offset:4")
    a("buffer_atomic_umax v5, v10, s[8:11], 0 offen offset:8")
    a("v_not_b32 v8, v6\nbuffer_atomic_umax v8, v10, s[8:11], 0 offen offset:12")
    a("buffer_atomic_umax v6, v10, s[8:11], 0 offen offset:16")
    a("v_not_b32 v8, v7\nbuffer_atomic_umax v8, v10, s[8:11], 0 offen offset:20")
    a("buffer_atomic_umax v7, v10, s[8:11], 0 offen offset:24")
    a("s_mov_b64 exec, -1")
    a(f"v_lshlrev_b32 v1, 7, v0\nv_add_u32 v1, {DBG1}, v1")
    a(f"v_cmp_gt_u32 vcc, {NCH + 2*P_NG}, v0\ns_mov_b64 exec, vcc")
    a("s_cbranch_execz T_end")
    a("buffer_load_dwordx2 v[4:5], v1, s[12:15], 0 offen\ns_waitcnt vmcnt(0)")
    a("v_not_b32 v8, v4\nbuffer_atomic_umax v8, v10, s[8:11], 0 offen offset:28")
    a("buffer_atomic_umax v5, v10, s[8:11], 0 offen offset:32")
    a(f"v_cmp_gt_u32 vcc, {NCH}, v0\ns_mov_b64 exec, vcc")
    a("s_cbranch_execz T_end")
    a("buffer_atomic_umax v5, v10, s[8:11], 0 offen offset:36")
    a("T_end:\ns_endpgm")
    return a.text() + descriptor("tl_kernel", 16, 32)

def build(dbg=False):
    h = HEAD
    if flag("tl"):
        h = h.replace(".amdgcn_target", "; @launch kernel=tl_kernel grid=(1,1,1) block=(1024,1,1) lds=0\n.amdgcn_target")
    return h + prep_kernel(dbg) + main_kernel(dbg) + (tl_kernel() if flag("tl") else "")

if __name__ == "__main__":
    args = [x for x in ARGS if not x.startswith("--")]
    out = args[0] if args else "gather_scatter__edge_featured_mpnn_egc__graph.s"
    open(out, "w").write(build(dbg=flag("dbg")))
    print("wrote", out, "M_LDS", M_LDS, "P_LDS", P_LDS)
```

```python
import sys

N = 10000; E = 320000
NB = 768
NCH = 64; CH = 5000
MAGIC_G = 214749
WS_T = 0
WS_W = 0x60000
WS_REC = 0x80000
MAGIC_R = 6554
WS_SZ = 0x200000
WS_TAB = 0x200000
WS_XA = 0x700000
WS_XU = 0x980000
DBG2, DBG1 = 0xC00000, 0xE00000
NEG_LOG2E = 0xBFB8AA3B
KNAME = "gather_scatter__edge_featured_mpnn_egc__graph_kernel"
ARGS = sys.argv[1:]
def flag(n): return ("--" + n) in ARGS
def opt(n, d):
    for x in ARGS:
        if x.startswith("--" + n + "="): return x.split("=", 1)[1]
    return d

S0 = int(opt('s0', '16')); S1 = int(opt('s1', '13'))
assert S0 <= 16 and S1 <= 16 and 40 - S0 - S1 <= 16

class A:
    def __init__(self):
        self.l = []
    def __call__(self, s=""):
        for x in s.split("\n"):
            x = x.strip()
            if not x: continue
            if x.endswith(":"):
                self.l.append(x)
            else:
                self.l.append("    " + x)
    def c(self, s):
        self.l.append("    ; " + s)
    def raw(self, s):
        self.l.append(s)
    def text(self):
        return "\n".join(self.l) + "\n"

def srd(a, r, lo, hi, size, stride=0, add=0):
    if add:
        a(f"s_add_u32 s{r}, s{lo}, {add:#x}")
        a(f"s_addc_u32 s{r+1}, s{hi}, 0")
        a(f"s_and_b32 s{r+1}, s{r+1}, 0xffff")
    else:
        a(f"s_mov_b32 s{r}, s{lo}")
        a(f"s_and_b32 s{r+1}, s{hi}, 0xffff")
    if stride:
        a(f"s_or_b32 s{r+1}, s{r+1}, {stride << 16:#x}")
    a(f"s_mov_b32 s{r+2}, {size:#x}")
    a(f"s_mov_b32 s{r+3}, 0x20000")

def wave_scan(a, v):
    for sh in (1, 2, 4, 8):
        a("s_nop 1")
        a(f"v_add_u32_dpp v{v}, v{v}, v{v} row_shr:{sh} row_mask:0xf bank_mask:0xf bound_ctrl:1")
    a("s_nop 1")
    a(f"v_add_u32_dpp v{v}, v{v}, v{v} row_bcast:15 row_mask:0xa bank_mask:0xf")
    a("s_nop 1")
    a(f"v_add_u32_dpp v{v}, v{v}, v{v} row_bcast:31 row_mask:0xc bank_mask:0xf")
    a("s_nop 1")

def header(a, name):
    a.raw(f".globl {name}")
    a.raw(".p2align 8")
    a.raw(f".type {name},@function")
    a.raw(f"{name}:")

def descriptor(name, vgpr, sgpr):
    acc = (vgpr + 3) // 4 * 4
    return f""".section .rodata,"a"
.p2align 6
.amdhsa_kernel {name}
  .amdhsa_next_free_vgpr {vgpr}
  .amdhsa_next_free_sgpr {sgpr}
  .amdhsa_accum_offset {acc}
  .amdhsa_group_segment_fixed_size 0
  .amdhsa_kernarg_size 80
  .amdhsa_user_sgpr_count 2
  .amdhsa_user_sgpr_kernarg_segment_ptr 1
  .amdhsa_system_sgpr_workgroup_id_x 1
  .amdhsa_float_denorm_mode_32 3
.end_amdhsa_kernel
.text
"""

def mf(d, x, y, c):
    cs = "0" if c is None else f"v[{c}:{c+15}]"
    return f"v_mfma_f32_32x32x16_bf16 v[{d}:{d+15}], v[{x}:{x+3}], v[{y}:{y+3}], {cs}"

XGRP = 1088
XSLOT = 8 * XGRP

def xfrag_addr(a, d0, d1, row, h, t0, t1, t2):
    a(f"v_lshrrev_b32 v{t0}, 2, v{row}")
    a(f"v_mul_u32_u24 v{t0}, {XGRP}, v{t0}")
    a(f"v_and_b32 v{t1}, 3, v{row}")
    a(f"v_lshl_add_u32 v{t0}, v{t1}, 8, v{t0}")
    a(f"v_xor_b32 v{t2}, v{h}, v{t1}")
    a(f"v_lshl_add_u32 v{d0}, v{t2}, 4, v{t0}")
    a(f"v_xor_b32 v{t2}, 2, v{t2}")
    a(f"v_lshl_add_u32 v{d1}, v{t2}, 4, v{t0}")

P_BLOCK = 640
P_NG = 79
P_GRID = NCH + 2 * P_NG + 1
P_HIST, P_START, P_TOT, P_SORT = 0, 12288, 24576, 24640
G_W0, G_W1, G_X = 0, 32768, 65536
G_ST = G_X + 4 * XSLOT
P_LDS = G_ST + 8 * 4096

def prep_kernel(dbg=False):
    SF = opt("sflag", "").replace("_", " ")
    a = A()
    nst = [0]
    def stamp():
        if not dbg: return
        a("s_waitcnt lgkmcnt(0)\ns_memtime s[40:41]\ns_waitcnt lgkmcnt(0)")
        a(f"s_mov_b32 s{50+nst[0]}, s40")
        nst[0] += 1
    def dump(role):
        if not dbg: return
        while nst[0] < 8: stamp()
        a("s_memrealtime s[46:47]\ns_load_dwordx2 s[42:43], s[0:1], 72\ns_waitcnt lgkmcnt(0)")
        a("s_mov_b32 s60, s42\ns_and_b32 s61, s43, 0xffff\ns_mov_b32 s62, 0x1000000\ns_mov_b32 s63, 0x20000")
        a("v_lshrrev_b32 v158, 6, v0\ns_nop 0\nv_readfirstlane_b32 s48, v158\ns_nop 3")
        a(f"s_lshl_b32 s49, s2, 4\ns_add_u32 s49, s49, s48\ns_lshl_b32 s49, s49, 6\ns_add_u32 s49, s49, {DBG1:#x}")
        a("s_mov_b64 exec, 1")
        for i, r in enumerate([50,51,52,53,54,55,56,57,44,46]):
            a(f"v_mov_b32 v158, s{r}\nv_mov_b32 v159, 0\nbuffer_store_dword v158, v159, s[60:63], s49 offen offset:{4*i}")
        a(f"v_mov_b32 v158, {role}\nv_mov_b32 v159, 0\nbuffer_store_dword v158, v159, s[60:63], s49 offen offset:40")
        nst[0] = 0
    TL = flag("tl")
    def tl_end():
        if not TL: return
        a("s_waitcnt vmcnt(0) lgkmcnt(0)")
        a("s_memrealtime s[70:71]\ns_load_dwordx2 s[72:73], s[0:1], 72\ns_waitcnt lgkmcnt(0)")
        a("s_mov_b32 s76, s72\ns_and_b32 s77, s73, 0xffff\ns_mov_b32 s78, 0x1000000\ns_mov_b32 s79, 0x20000")
        a("v_lshrrev_b32 v158, 6, v0\ns_nop 0\nv_readfirstlane_b32 s74, v158\ns_nop 3")
        a(f"s_lshl_b32 s75, s2, 4\ns_add_u32 s75, s75, s74\ns_lshl_b32 s75, s75, 3\ns_add_u32 s75, s75, {DBG1:#x}")
        a("s_mov_b64 exec, 1\nv_mov_b32 v156, s68\nv_mov_b32 v157, s70\nv_mov_b32 v159, 0")
        a("buffer_store_dwordx2 v[156:157], v159, s[76:79], s75 offen")
    header(a, "prep_kernel")
    if TL: a("s_memrealtime s[68:69]")
    if dbg:
        a("s_memrealtime s[44:45]")
        stamp()
    a(f"s_cmp_ge_u32 s2, {P_GRID}")
    a("s_cbranch_scc1 P_end")
    a(f"s_cmp_ge_u32 s2, {NCH + 2*P_NG}")
    a("s_cbranch_scc1 P_weights")
    a(f"s_cmp_ge_u32 s2, {NCH}")
    a("s_cbranch_scc1 P_gemm")
    a("s_load_dwordx4 s[4:7], s[0:1], 16")
    a("s_load_dwordx2 s[8:9], s[0:1], 72")
    a("v_lshlrev_b32 v2, 4, v0")
    a("v_mov_b32 v4, 0\nv_mov_b32 v5, 0\nv_mov_b32 v6, 0\nv_mov_b32 v7, 0")
    a("ds_write_b128 v2, v[4:7]")
    a("ds_write_b128 v2, v[4:7] offset:10240")
    a("v_lshlrev_b32 v1, 4, v0")
    a(f"s_mul_i32 s3, s2, {CH*4}")
    a(f"s_mov_b32 s20, {MAGIC_G}")
    a("s_movk_i32 s21, 625")
    a(f"s_movk_i32 s28, {-S0}")
    a(f"s_movk_i32 s31, {-S1}")
    a("v_lshrrev_b32 v2, 6, v0")
    a("v_mov_b32 v3, 1")
    a("v_readfirstlane_b32 s22, v2")
    a("s_waitcnt lgkmcnt(0)")
    srd(a, 16, 6, 7, E * 4)
    a(f"v_cmp_gt_u32 vcc, {CH//8}, v0")
    a("s_mov_b64 exec, vcc")
    a(f"s_add_u32 s33, s3, {CH*2}")
    a("buffer_load_dwordx4 v[8:11], v1, s[16:19], s3 offen")
    a("buffer_load_dwordx4 v[12:15], v1, s[16:19], s33 offen")
    srd(a, 12, 4, 5, E * 4)
    a("buffer_load_dwordx4 v[16:19], v1, s[12:15], s3 offen")
    a("buffer_load_dwordx4 v[20:23], v1, s[12:15], s33 offen")
    srd(a, 24, 8, 9, WS_SZ)
    a("v_lshlrev_b32 v64, 21, v0")
    a("s_barrier")
    stamp()
    a("s_waitcnt vmcnt(2)")
    vD, vS, vBk, vAd, vRk, vRec, vT = 8, 16, 24, 32, 40, 48, 56
    for i in range(8): a(f"v_mul_u32_u24 v{vBk+i}, s20, v{vD+i}")
    for i in range(8): a(f"v_lshrrev_b32 v{vBk+i}, 23, v{vBk+i}")
    for i in range(8): a(f"v_mad_u32_u24 v{vRec+i}, v{vBk+i}, s21, 15")
    for i in range(8): a(f"v_lshrrev_b32 v{vRec+i}, 4, v{vRec+i}")
    for i in range(8): a(f"v_sub_u32 v{vRec+i}, v{vD+i}, v{vRec+i}")
    if S0 == 16 and S1 == 16:
        for i in range(8): a(f"v_lshrrev_b32 v{vT+i}, 4, v{vRec+i}")
        for i in range(8): a(f"v_and_b32 v{vRec+i}, 15, v{vRec+i}")
    else:
        for i in range(8): a(f"v_add_u32 v{vT+i}, {64 - S0}, v{vRec+i}")
        for i in range(8): a(f"v_add_u32 v{vAd+i}, {64 - S0 - S1}, v{vRec+i}")
        for i in range(8): a(f"v_lshrrev_b32 v{vT+i}, 6, v{vT+i}")
        for i in range(8): a(f"v_lshrrev_b32 v{vAd+i}, 6, v{vAd+i}")
        for i in range(8): a(f"v_mad_i32_i24 v{vRec+i}, v{vT+i}, s28, v{vRec+i}")
        for i in range(8): a(f"v_mad_i32_i24 v{vRec+i}, v{vAd+i}, s31, v{vRec+i}")
        for i in range(8): a(f"v_add_u32 v{vT+i}, v{vT+i}, v{vAd+i}")
    for i in range(8): a(f"v_lshl_add_u32 v{vBk+i}, v{vT+i}, 8, v{vBk+i}")
    a("s_waitcnt vmcnt(0)")
    stamp()
    a(f"s_movk_i32 s29, {6554}")
    for i in range(8): a(f"v_mul_u32_u24 v{vT+i}, s29, v{vS+i}")
    for i in range(8): a(f"v_lshrrev_b32 v{vT+i}, 24, v{vT+i}")
    for i in range(8): a(f"v_lshl_add_u32 v{vAd+i}, v{vBk+i}, 2, v{vT+i}")
    for i in range(8): a(f"v_lshlrev_b32 v{vAd+i}, 2, v{vAd+i}")
    for i in range(8): a(f"ds_add_rtn_u32 v{vRk+i}, v{vAd+i}, v3")
    for i in range(8): a(f"v_lshl_or_b32 v{vRec+i}, v{vRec+i}, 14, v{vS+i}")
    for i in range(8):
        a(f"s_mov_b32 s30, {((i & 3) + (CH // 2) * (i >> 2)) << 19:#x}")
        a(f"v_add3_u32 v{vRec+i}, v{vRec+i}, v64, s30")
    a("s_waitcnt lgkmcnt(0)")
    stamp()
    a("s_barrier")
    c0, p0 = 68, 76
    a("s_cmp_ge_u32 s22, 6")
    a("s_cbranch_scc1 P_scan1_done")
    a("v_lshlrev_b32 v2, 5, v0")
    a(f"ds_read_b128 v[{c0}:{c0+3}], v2 offset:{P_HIST}")
    a(f"ds_read_b128 v[{c0+4}:{c0+7}], v2 offset:{P_HIST+16}")
    a("s_waitcnt lgkmcnt(0)")
    a(f"v_mov_b32 v{p0}, 0")
    a(f"v_mov_b32 v{p0+1}, v{c0}")
    for k in range(2, 8): a(f"v_add_u32 v{p0+k}, v{p0+k-1}, v{c0+k-1}")
    a(f"v_add_u32 v84, v{p0+7}, v{c0+7}")
    a("v_mov_b32 v85, v84")
    wave_scan(a, 85)
    a("v_readlane_b32 s23, v85, 63")
    a("v_sub_u32 v85, v85, v84")
    a("s_lshl_b32 s30, s22, 2")
    a("v_mov_b32 v87, s30")
    a("v_mov_b32 v86, s23")
    a(f"ds_write_b32 v87, v86 offset:{P_TOT}")
    a("s_waitcnt lgkmcnt(0)")
    a("P_scan1_done:")
    a("s_barrier")
    a("s_cmp_ge_u32 s22, 6")
    a("s_cbranch_scc1 P_noscan")
    a("v_mov_b32 v87, 0")
    a(f"ds_read_b128 v[88:91], v87 offset:{P_TOT}")
    a(f"ds_read_b64 v[92:93], v87 offset:{P_TOT+16}")
    a("s_waitcnt lgkmcnt(0)")
    a("s_mov_b32 s30, 0")
    for k in range(5):
        a(f"v_readfirstlane_b32 s23, v{88+k}")
        a(f"s_cmp_gt_u32 s22, {k}")
        a("s_nop 1")
        a("s_cselect_b32 s23, s23, 0")
        a("s_add_u32 s30, s30, s23")
    a("v_add_u32 v85, s30, v85")
    for k in range(8): a(f"v_add_u32 v{p0+k}, v{p0+k}, v85")
    a(f"ds_write_b128 v2, v[{p0}:{p0+3}] offset:{P_START}")
    a(f"ds_write_b128 v2, v[{p0+4}:{p0+7}] offset:{P_START+16}")
    for b in range(2):
        cc = c0 + 4*b; pp = p0 + 4*b; o = 88 + 2*b
        a(f"v_add3_u32 v86, v{cc}, v{cc+1}, v{cc+2}")
        a(f"v_add_u32 v86, v86, v{cc+3}")
        a(f"v_lshl_or_b32 v{o}, v86, 16, v{pp}")
        for k in range(3): a(f"v_min_u32 v{cc+k}, 0xff, v{cc+k}")
        a(f"v_lshl_or_b32 v{o+1}, v{cc+1}, 8, v{cc}")
        a(f"v_lshl_or_b32 v{o+1}, v{cc+2}, 16, v{o+1}")
    a(f"s_mul_i32 s23, s2, {NB*8}")
    a("v_lshlrev_b32 v86, 4, v0")
    a(f"buffer_store_dwordx4 v[88:91], v86, s[24:27], s23 offen offset:{WS_T} {SF}")
    a("s_waitcnt lgkmcnt(0)")
    a("P_noscan:")
    a("s_barrier")
    stamp()
    for i in range(8): a(f"ds_read_b32 v{vT+i}, v{vAd+i} offset:{P_START}")
    a("s_waitcnt lgkmcnt(0)")
    for i in range(8): a(f"v_add_lshl_u32 v{vT+i}, v{vT+i}, v{vRk+i}, 2")
    for i in range(8): a(f"ds_write_b32 v{vT+i}, v{vRec+i} offset:{P_SORT}")
    a("s_waitcnt lgkmcnt(0)")
    a("s_barrier")
    a(f"ds_read_b128 v[4:7], v1 offset:{P_SORT}")
    a(f"ds_read_b128 v[8:11], v1 offset:{P_SORT + CH*2}")
    a(f"s_add_u32 s3, s3, {WS_REC}")
    a(f"s_add_u32 s33, s3, {CH*2}")
    a("s_waitcnt lgkmcnt(1)")
    a(f"buffer_store_dwordx4 v[4:7], v1, s[24:27], s3 offen {SF}")
    a("s_waitcnt lgkmcnt(0)")
    a(f"buffer_store_dwordx4 v[8:11], v1, s[24:27], s33 offen {SF}")
    stamp()
    if dbg: a("s_waitcnt vmcnt(0)")
    dump(1)
    tl_end()
    a("s_endpgm")
    a("P_gemm:")
    nst[0] = 1
    a("s_load_dwordx2 s[4:5], s[0:1], 0")
    a("s_load_dwordx4 s[8:11], s[0:1], 32")
    a("s_load_dwordx2 s[34:35], s[0:1], 48")
    a("s_load_dwordx2 s[6:7], s[0:1], 72")
    a("v_lshrrev_b32 v2, 6, v0")
    a("v_and_b32 v1, 63, v0")
    a("v_readfirstlane_b32 s22, v2")
    a(f"s_sub_u32 s3, s2, {NCH}")
    a(f"s_cmp_ge_u32 s3, {P_NG}")
    a("s_cselect_b32 s36, 1, 0")
    a(f"s_cselect_b32 s37, {P_NG}, 0")
    a("s_sub_u32 s3, s3, s37")
    a("s_cmp_ge_u32 s22, 8")
    a("s_cbranch_scc1 P_pf" if (flag("epf") or flag("cpf")) else "s_cbranch_scc1 P_end")
    a("s_lshr_b32 s23, s22, 2")
    a("s_and_b32 s28, s22, 3")
    a("s_lshl_b32 s3, s3, 2")
    a("s_add_u32 s3, s3, s23")
    a("s_lshl_b32 s29, s3, 5")
    a("v_lshrrev_b32 v3, 4, v1")
    a("v_and_b32 v4, 15, v1")
    a("v_lshlrev_b32 v5, 2, v3")
    a("v_xor_b32 v5, v5, v4")
    a("v_lshlrev_b32 v5, 4, v5")
    a("v_lshl_add_u32 v5, v3, 8, v5")
    a("v_xor_b32 v4, v4, v3")
    a("v_lshlrev_b32 v7, 4, v4")
    a("v_mov_b32 v9, v7")
    a("s_waitcnt lgkmcnt(0)")
    sW1 = 44 if not dbg else 72
    a("s_cmp_eq_u32 s36, 0")
    a("s_cselect_b32 s30, 32768, 0")
    a(f"s_cselect_b32 s{sW1}, s10, s8\ns_cselect_b32 s{sW1+1}, s11, s9")
    a("s_add_u32 s16, s34, s30\ns_addc_u32 s17, s35, 0")
    a("s_and_b32 s17, s17, 0xffff")
    a("s_mov_b32 s18, 32768\ns_mov_b32 s19, 0x20000")
    a(f"s_and_b32 s{sW1+1}, s{sW1+1}, 0xffff")
    a(f"s_mov_b32 s{sW1+2}, 32768\ns_mov_b32 s{sW1+3}, 0x20000")
    srd(a, 12, 4, 5, N, stride=256)
    a("s_lshl_b32 s33, s22, 12")
    a("s_lshl_b32 s30, s28, 3")
    a("s_add_u32 s30, s30, s29")
    a(f"s_mul_i32 s31, s23, {XSLOT}")
    a(f"s_mul_i32 s37, s28, {2*XGRP}")
    a("s_add_u32 s31, s31, s37")
    def wdma(sr, lds):
        a(f"s_add_u32 m0, s33, {lds}")
        a("s_nop 0")
        for ii in range(4):
            a(f"buffer_load_dwordx4 v5, s[{sr}:{sr+3}], s33 offen offset:{ii*1024} lds")
    def xdma(ps):
        a("v_add_u32 v6, s30, v3")
        a("v_add_u32 v8, 4, v6")
        a(f"s_add_u32 m0, s31, {G_X + ps*2*XSLOT}")
        a("s_add_u32 s30, s30, 64")
        a("buffer_load_dwordx4 v[6:7], s[12:15], 0 idxen offen lds")
        a(f"s_add_u32 m0, s31, {G_X + ps*2*XSLOT + XGRP}")
        a("s_nop 0")
        a("buffer_load_dwordx4 v[8:9], s[12:15], 0 idxen offen lds")
    wdma(16, G_W0)
    xdma(0)
    wdma(sW1, G_W1)
    xdma(1)
    vE5, vH, vX0, vX1, vWt = 10, 11, 12, 13, 14
    a(f"v_and_b32 v{vE5}, 31, v1")
    a(f"v_lshrrev_b32 v{vH}, 5, v1")
    xfrag_addr(a, vX0, vX1, vE5, vH, 15, 16, 17)
    a(f"s_mul_i32 s30, s23, {XSLOT}")
    a(f"s_add_u32 s30, s30, {G_X}")
    a(f"v_add_u32 v{vX0}, s30, v{vX0}")
    a(f"v_add_u32 v{vX1}, s30, v{vX1}")
    a("v_lshrrev_b32 v15, 2, v1\nv_and_b32 v15, 3, v15")
    a("s_lshl_b32 s30, s28, 2")
    a("v_lshlrev_b32 v16, 2, v15")
    a("v_xor_b32 v16, s30, v16")
    a("v_lshrrev_b32 v17, 4, v1\nv_and_b32 v17, 1, v17")
    a("v_lshl_add_u32 v16, v17, 1, v16")
    a("v_lshrrev_b32 v17, 1, v1\nv_and_b32 v17, 1, v17")
    a("v_add_u32 v16, v16, v17")
    a("v_lshlrev_b32 v16, 4, v16")
    a("v_and_b32 v17, 1, v1")
    a("v_lshl_add_u32 v16, v17, 3, v16")
    a(f"v_lshl_add_u32 v15, v{vH}, 3, v15")
    a(f"v_lshl_add_u32 v{vWt}, v15, 8, v16")
    srd(a, 24, 6, 7, N * 512, add=WS_TAB)
    a("s_cmp_eq_u32 s36, 0")
    a("s_cbranch_scc1 P_g_bvsrd")
    srd(a, 24, 6, 7, N * 256, add=WS_XA)
    srd(a, 40 if not dbg else 64, 6, 7, N * 256, add=WS_XU)
    a("P_g_bvsrd:")
    sXU = 40 if not dbg else 64
    f0, f1, fX, d0, d1 = 32, 64, 96, 128, 144
    a("s_lshl_b32 s31, s22, 12")
    a(f"s_add_u32 s31, s31, {G_ST}")
    a(f"v_and_b32 v15, 7, v{vE5}")
    a(f"v_lshlrev_b32 v16, 1, v{vH}")
    a("v_xor_b32 v16, v16, v15")
    a("v_lshlrev_b32 v16, 4, v16")
    a(f"v_lshl_add_u32 v16, v{vE5}, 7, v16")
    a("v_add_u32 v16, s31, v16")
    a("v_lshrrev_b32 v20, 3, v1")
    a("v_and_b32 v21, 7, v1")
    a("v_xor_b32 v22, v21, v20")
    a("v_lshlrev_b32 v22, 4, v22")
    a("v_lshl_add_u32 v22, v20, 7, v22")
    a("v_add_u32 v22, s31, v22")
    a("v_add_u32 v20, s29, v20")
    a("v_lshlrev_b32 v20, 9, v20")
    a("v_lshl_add_u32 v20, v21, 4, v20")
    a("s_lshl_b32 s30, s28, 7")
    a("v_add_u32 v20, s30, v20")
    a(f"v_lshrrev_b32 v23, 2, v{vE5}")
    a("v_and_b32 v23, 3, v23")
    a("v_lshlrev_b32 v23, 4, v23")
    a(f"v_lshl_add_u32 v23, v{vE5}, 6, v23")
    a(f"v_lshl_add_u32 v23, v{vH}, 3, v23")
    a("v_add_u32 v23, s31, v23")
    a("v_lshrrev_b32 v24, 4, v1\nv_and_b32 v24, 3, v24")
    a("v_and_b32 v25, 3, v1")
    a("v_xor_b32 v24, v24, v25")
    a("v_lshlrev_b32 v24, 4, v24")
    a("v_lshrrev_b32 v26, 2, v1")
    a("v_lshl_add_u32 v24, v26, 6, v24")
    a("v_add_u32 v24, s31, v24")
    a("v_add_u32 v26, s29, v26")
    a("v_lshlrev_b32 v26, 8, v26")
    a("v_lshl_add_u32 v26, v25, 4, v26")
    a("s_lshl_b32 s30, s28, 6")
    a("v_add_u32 v26, s30, v26")
    stamp()
    a("s_waitcnt vmcnt(6)")
    stamp()
    a("s_barrier")
    stamp()
    def xreads(ps):
        for s_ in range(8):
            ad = vX0 if s_ % 2 == 0 else vX1
            a(f"ds_read_b128 v[{fX+4*s_}:{fX+4*s_+3}], v{ad} offset:{ps*2*XSLOT + (s_>>1)*64}")
    for s in range(8):
        for part in range(2):
            a(f"ds_read_b64_tr_b16 v[{f0+4*s+2*part}:{f0+4*s+2*part+1}], v{vWt} offset:{G_W0 + (16*s+4*part)*256}")
        if s == 5: a("s_waitcnt lgkmcnt(4)")
    a("s_waitcnt lgkmcnt(4)")
    xreads(0)
    a(f"s_mov_b32 s30, {NEG_LOG2E:#x}")
    for ps in range(2):
        if ps == 0:
            for s_ in range(8):
                if s_ % 2 == 0: a(f"s_waitcnt lgkmcnt({6 - s_})")
                a(mf(d0, f0 + 4*s_, fX + 4*s_, None if s_ == 0 else d0))
            a("s_waitcnt vmcnt(0)")
            a("s_barrier")
            for s_ in range(8):
                if s_ == 6: a("s_waitcnt lgkmcnt(8)")
                for part in range(2):
                    a(f"ds_read_b64_tr_b16 v[{f1+4*s_+2*part}:{f1+4*s_+2*part+1}], v{vWt} offset:{G_W1 + (16*s_+4*part)*256}")
            a("s_waitcnt lgkmcnt(0)")
        else:
            a("s_waitcnt lgkmcnt(0)")
            for s_ in range(8): a(mf(d0, f0 + 4*s_, fX + 4*s_, None if s_ == 0 else d0))
        for s_ in range(8):
            a(mf(d1, f1 + 4*s_, fX + 4*s_, None if s_ == 0 else d1))
        a("s_nop 3")
        for r in range(16): a(f"v_mul_f32 v{d0+r}, s30, v{d0+r}")
        for r in range(8): a(f"v_cvt_pk_bf16_f32 v{d0+r}, v{d0+2*r}, v{d0+2*r+1}")
        for r in range(8): a(f"v_cvt_pk_bf16_f32 v{d0+8+r}, v{d1+2*r}, v{d1+2*r+1}")
        a("s_cmp_eq_u32 s36, 0")
        a(f"s_cbranch_scc0 P_g_au{ps}")
        a(f"ds_write_b128 v16, v[{d0}:{d0+3}]")
        a("v_xor_b32 v17, 16, v16")
        a(f"ds_write_b128 v17, v[{d0+4}:{d0+7}]")
        a("v_xor_b32 v18, 64, v16")
        a(f"ds_write_b128 v18, v[{d0+8}:{d0+11}]")
        a("v_xor_b32 v19, 64, v17")
        a(f"ds_write_b128 v19, v[{d0+12}:{d0+15}]")
        for i in range(4):
            a(f"ds_read_b128 v[{d1+4*i}:{d1+4*i+3}], v22 offset:{i*1024}")
        if ps == 0:
            a("s_waitcnt lgkmcnt(4)")
            xreads(1)
        a(f"s_mov_b32 s33, {ps*64*512}")
        for i in range(4):
            a(f"s_waitcnt lgkmcnt({3-i + (8 if ps == 0 else 0)})")
            a(f"buffer_store_dwordx4 v[{d1+4*i}:{d1+4*i+3}], v20, s[24:27], s33 offen {SF}")
            if i < 3: a("s_add_u32 s33, s33, 4096")
        a(f"s_branch P_g_done{ps}")
        a(f"P_g_au{ps}:")
        for j in range(4):
            if j: a(f"v_xor_b32 v17, {16*j}, v23")
            ad = 23 if j == 0 else 17
            a(f"ds_write_b64 v{ad}, v[{d0+2*j}:{d0+2*j+1}]")
            a(f"ds_write_b64 v{ad}, v[{d0+8+2*j}:{d0+8+2*j+1}] offset:2048")
        for i in range(4):
            a(f"ds_read_b128 v[{d1+4*i}:{d1+4*i+3}], v24 offset:{i*1024}")
        if ps == 0:
            a("s_waitcnt lgkmcnt(4)")
            xreads(1)
        a(f"s_mov_b32 s33, {ps*64*256}")
        for i in range(4):
            a(f"s_waitcnt lgkmcnt({3-i + (8 if ps == 0 else 0)})")
            sr = 24 if i < 2 else sXU
            a(f"buffer_store_dwordx4 v[{d1+4*i}:{d1+4*i+3}], v26, s[{sr}:{sr+3}], s33 offen offset:0 {SF}")
            if i == 0: a("s_add_u32 s33, s33, 4096")
            if i == 1: a("s_sub_u32 s33, s33, 4096")
            if i == 2: a("s_add_u32 s33, s33, 4096")
        a(f"P_g_done{ps}:")
    stamp()
    if dbg: a("s_waitcnt vmcnt(0)")
    dump(2)
    tl_end()
    a("s_endpgm")
    if flag("cpf"):
        a("P_pf:")
        a("s_cmp_lg_u32 s22, 8")
        a("s_cbranch_scc1 P_end")
        a("s_getpc_b64 s[12:13]")
        a("P_pc:")
        a(f"s_add_u32 s12, s12, {KNAME}-P_pc")
        a("s_addc_u32 s13, s13, 0")
        a("v_lshlrev_b32 v2, 6, v1")
        a("v_mov_b32 v3, 0")
        a("v_mov_b32 v5, s13")
        a("v_add_co_u32 v4, vcc, s12, v2")
        a("v_addc_co_u32 v5, vcc, v5, v3, vcc")
        for i in range(3):
            if i == 2:
                a(f"s_mov_b32 s14, (M_last-{KNAME}-8192+64)>>6")
                a("v_cmp_gt_u32 vcc, s14, v1")
                a("s_mov_b64 exec, vcc")
                a("s_cbranch_execz P_pf_done")
            a(f"global_load_dword v{8+i}, v[4:5], off")
            if i < 2:
                a("v_add_co_u32 v4, vcc, 0x1000, v4")
                a("v_addc_co_u32 v5, vcc, v5, v3, vcc")
        a("P_pf_done:")
        a("s_waitcnt vmcnt(0)")
        a("s_endpgm")
    if flag("epf"):
        a("P_pf:")
        a("s_load_dwordx2 s[12:13], s[0:1], 8")
        a(f"s_sub_u32 s3, s2, {NCH}")
        a("s_lshl_b32 s3, s3, 1")
        a("s_add_u32 s3, s3, s22")
        a("s_sub_u32 s3, s3, 8")
        a("s_lshl_b32 s3, s3, 15")
        a("v_lshlrev_b32 v2, 4, v1")
        a("s_waitcnt lgkmcnt(0)")
        a("s_and_b32 s13, s13, 0xffff")
        a(f"s_mov_b32 s14, {E*32}")
        a("s_mov_b32 s15, 0x20000")
        for i in range(32):
            a(f"buffer_load_dwordx4 v[{8+4*(i%8)}:{11+4*(i%8)}], v2, s[12:15], s3 offen offset:{(i%4)*1024} {opt('epfflag', '')}")
            if i % 4 == 3: a("s_add_u32 s3, s3, 4096")
        a("s_endpgm")
    a("P_weights:")
    a("s_load_dwordx2 s[8:9], s[0:1], 48")
    a("s_load_dwordx2 s[10:11], s[0:1], 72")
    a("v_lshrrev_b32 v2, 6, v0")
    a("v_and_b32 v1, 63, v0")
    a("v_readfirstlane_b32 s3, v2")
    a("s_nop 0")
    a("s_cmp_ge_u32 s3, 4")
    a("s_cbranch_scc1 P_end")
    a("s_waitcnt lgkmcnt(0)")
    srd(a, 12, 8, 9, 272 * 256)
    a("s_lshl_b32 s28, s3, 6")
    a(f"s_add_u32 s28, s28, {256*256}")
    a("v_lshrrev_b32 v2, 5, v1")
    a("v_lshlrev_b32 v2, 11, v2")
    a("v_and_b32 v3, 31, v1")
    a("v_lshl_add_u32 v2, v3, 1, v2")
    for j in range(8):
        a(f"buffer_load_ushort v{8+j}, v2, s[12:15], s28 offen offset:{j*256}")
    srd(a, 16, 10, 11, WS_SZ)
    a("s_lshl_b32 s3, s3, 10")
    a(f"s_add_u32 s3, s3, {WS_W}")
    a("v_lshlrev_b32 v1, 4, v1")
    a(f"s_mov_b32 s29, {NEG_LOG2E:#x}")
    a("s_waitcnt vmcnt(0)")
    for j in range(8): a(f"v_lshlrev_b32 v{8+j}, 16, v{8+j}")
    for j in range(8): a(f"v_mul_f32 v{8+j}, s29, v{8+j}")
    for j in range(4): a(f"v_cvt_pk_bf16_f32 v{16+j}, v{8+2*j}, v{9+2*j}")
    a("buffer_store_dwordx4 v[16:19], v1, s[16:19], s3 offen")
    a("P_end:")
    a("s_endpgm")
    return a.text() + descriptor("prep_kernel", 160, 96 if flag("tl") else 80 if dbg else 48)

CAP = 640
NPAD = 128
L_GR = 0
L_XA = L_GR + 4 * 2 * 4096
L_ER = L_XA + 4096
L_OR = L_ER + 3 * 1024
L_LS = L_OR + 3 * 1024
LSZ = (CAP + NPAD) * 4
L_LE = L_LS + LSZ
L_LQ = L_LE + LSZ
M_LDS = (L_LQ + CAP + NPAD + 63) // 64 * 64
AGG_STRIDE = 528

vLANE, vE5, vH = 1, 2, 3
vG = 4
vEA, vO0, vT0, vT1 = 8, 9, 10, 11
vLs, vLe, vLq = 12, 13, 14
pG = 16
pE = 24
vQ, vOHa, vOHd = 26, 27, 28
vK = 29
vT = 32
vC, vXA, vI, vACC, vZ, vHV = 56, 60, 64, 72, 88, 104
vFX, vFH, vAE, vAO, vSO, vMSG, vXU = 120, 128, 136, 140, 144, 152, 160
NVGPR = 164
U_REC = 8

def main_kernel(dbg=False):
    a = A()
    nst = [0]
    def stamp():
        if not dbg: return
        a("s_waitcnt lgkmcnt(0)")
        a("s_memtime s[58:59]")
        a("s_waitcnt lgkmcnt(0)")
        a(f"s_mov_b32 s{64+nst[0]}, s58")
        nst[0] += 1
    PRIO = opt("prio", "pair")
    header(a, KNAME)
    a(f"s_cmp_ge_u32 s2, {NB}")
    a("s_cbranch_scc1 M_end")
    a("s_load_dwordx2 s[6:7], s[0:1], 8")
    a("s_load_dwordx2 s[8:9], s[0:1], 56")
    a("s_load_dwordx2 s[10:11], s[0:1], 72")
    if flag("tl"): a("s_memrealtime s[68:69]\ns_load_dwordx2 s[72:73], s[0:1], 64")
    if PRIO != "none": a("s_setprio 3")
    if dbg: a("s_memrealtime s[60:61]")
    stamp()
    t0, t1, t2, t3 = vT, vT + 1, vT + 2, vT + 3
    vTv = vT + 4
    a(f"v_lshrrev_b32 v{t0}, 6, v0")
    a(f"v_and_b32 v{vLANE}, 63, v0")
    a(f"v_readfirstlane_b32 s32, v{t0}")
    a(f"v_mul_u32_u24 v{t1}, {NB*8}, v{vLANE}")
    a("s_lshl_b32 s38, s2, 3")
    a("s_and_b32 s33, s2, 255")
    a("s_lshr_b32 s39, s2, 8")
    a("s_mul_i32 s33, s33, 625")
    a("s_add_u32 s34, s33, 640")
    a("s_add_u32 s33, s33, 15")
    a("s_lshr_b32 s33, s33, 4")
    a("s_lshr_b32 s34, s34, 4")
    a("s_sub_u32 s34, s34, s33")
    a(f"s_sub_u32 s34, s34, {S0 + S1}")
    a("s_cmp_eq_u32 s39, 1")
    a(f"s_cselect_b32 s34, {S1}, s34")
    a(f"s_cselect_b32 s42, {S0}, {S0 + S1}")
    a("s_cmp_eq_u32 s39, 0")
    a(f"s_cselect_b32 s34, {S0}, s34")
    a("s_cselect_b32 s42, 0, s42")
    a("s_add_u32 s33, s33, s42")
    a(f"v_and_b32 v{vE5}, 31, v{vLANE}")
    a(f"v_lshrrev_b32 v{vH}, 5, v{vLANE}")
    a("s_waitcnt lgkmcnt(0)")
    srd(a, 20, 10, 11, WS_SZ)
    a("s_cmp_lg_u32 s32, 0")
    a("s_cbranch_scc1 M_noT")
    a(f"buffer_load_dwordx2 v[{vTv}:{vTv+1}], v{t1}, s[20:23], s38 offen")
    a("M_noT:")
    srd(a, 24, 10, 11, N, stride=512, add=WS_TAB)
    NPF = 0
    srd(a, 16, 6, 7, E, stride=32)
    srd(a, 28, 8, 9, N * 256)
    srd(a, 12, 10, 11, N, stride=256, add=WS_XA)
    srd(a, 44, 10, 11, N * 256, add=WS_XU)
    a(f"v_lshrrev_b32 v{t0}, 4, v{vLANE}")
    a(f"v_and_b32 v{t1}, 7, v{vLANE}")
    a(f"v_xor_b32 v{t1}, v{t1}, v{t0}")
    a("s_lshl_b32 s38, s32, 7")
    a(f"v_lshl_add_u32 v{pG+1}, v{t1}, 4, s38")
    a(f"v_xor_b32 v{pG+3}, 64, v{pG+1}")
    a(f"v_mov_b32 v{pG+5}, v{pG+1}")
    a(f"v_mov_b32 v{pG+7}, v{pG+3}")
    a(f"v_lshrrev_b32 v{t0}, 1, v{vE5}")
    a(f"v_and_b32 v{t0}, 7, v{t0}")
    a(f"v_xor_b32 v{t0}, v{t0}, v{vH}")
    a(f"v_lshlrev_b32 v{t0}, 4, v{t0}")
    a(f"v_lshl_add_u32 v{t0}, v{vE5}, 7, v{t0}")
    a("s_lshl_b32 s40, s32, 13")
    a(f"v_add_u32 v{vG}, s40, v{t0}")
    for k in range(1, 4):
        a(f"v_xor_b32 v{vG+k}, {32*k}, v{vG}")
    a("s_lshl_b32 s41, s32, 8")
    a(f"s_add_u32 s41, s41, {L_ER}")
    a(f"v_lshlrev_b32 v{t1}, 5, v{vE5}")
    a(f"v_bfe_u32 v{t0}, v{vE5}, 3, 1")
    a(f"v_xor_b32 v{t0}, v{t0}, v{vH}")
    a(f"v_lshl_add_u32 v{t0}, v{t0}, 4, v{t1}")
    a(f"v_add_u32 v{vEA}, {L_ER}, v{t0}")
    a(f"v_lshl_add_u32 v{t0}, v{vH}, 4, v{t1}")
    a(f"v_add_u32 v{vO0}, {L_OR}, v{t0}")
    a(f"v_bfe_u32 v{t1}, v{vLANE}, 2, 2")
    a(f"v_lshl_add_u32 v{t1}, v{vH}, 2, v{t1}")
    a(f"v_and_b32 v{t0}, 3, v{vLANE}")
    a(f"v_lshlrev_b32 v{t0}, 3, v{t0}")
    a(f"v_lshl_add_u32 v{t0}, v{t1}, 5, v{t0}")
    a(f"v_add_u32 v{vT0}, {L_OR}, v{t0}")
    a("s_and_b32 s38, s32, 1")
    a(f"v_and_b32 v{t0}, 1, v{vLANE}")
    a(f"v_xor_b32 v{t0}, s38, v{t0}")
    a(f"v_lshlrev_b32 v{pE+1}, 4, v{t0}")
    a(f"v_and_b32 v{t0}, 7, v{vLANE}")
    a("s_lshl_b32 s38, s32, 3")
    a(f"v_add_u32 v{t0}, s38, v{t0}")
    a(f"v_lshlrev_b32 v{t1}, 5, v{t0}")
    a(f"v_bfe_u32 v{t2}, v{vLANE}, 3, 1")
    for k in range(3):
        s_set, s_clr = (k + 2) % 3, k
        a(f"v_mul_i32_i24 v{t3}, {(s_clr - s_set) * 1024}, v{t2}")
        a(f"v_add_u32 v{t3}, {s_set*1024 + L_OR}, v{t3}")
        a(f"v_add_u32 v{vK+k}, v{t3}, v{t1}")
    a(f"v_sub_u32 v{t3}, 1, v{t2}")
    a(f"v_mul_u32_u24 v{vOHd}, 0x3f80, v{t3}")
    vLq0 = vT + 22
    a(f"v_lshlrev_b32 v{t2}, 6, v{t2}")
    a(f"v_sub_u32 v{t0}, v{t0}, v{t2}")
    a(f"v_add_u32 v{vLq0}, {L_LQ + 64}, v{t0}")
    a(f"v_and_b32 v{t0}, 1, v{vE5}")
    a(f"v_lshlrev_b32 v{t0}, 4, v{t0}")
    a(f"v_mov_b32 v{t1}, 0x3f80")
    a(f"v_lshlrev_b32 v{t0}, v{t0}, v{t1}")
    a(f"v_bfe_u32 v{t1}, v{vE5}, 1, 1")
    a(f"v_lshrrev_b32 v{t2}, 2, v{vE5}")
    a(f"v_and_b32 v{t3}, 2, v{t2}")
    a(f"v_or_b32 v{t1}, v{t1}, v{t3}")
    a(f"v_and_b32 v{t2}, 1, v{t2}")
    a(f"v_lshl_add_u32 v{t1}, v{t2}, 2, v{t1}")
    a(f"v_lshrrev_b32 v{t2}, 4, v{vE5}")
    a(f"v_xor_b32 v{t2}, v{t2}, v{vH}")
    a(f"v_lshl_add_u32 v{t1}, v{t2}, 3, v{t1}")
    for g in range(2):
        pairs = ["vcc", "s[48:49]", "s[50:51]", "s[54:55]"]
        for k in range(4): a(f"v_cmp_eq_u32 {pairs[k]}, {4*g+k}, v{t1}")
        for k in range(4): a(f"v_cndmask_b32 v{vI+4*g+k}, 0, v{t0}, {pairs[k]}")
    for r in range(8):
        a(f"v_mov_b32 v{vACC+r}, 0")
    vRecI, vPos0, vCnt, vEb = vT + 4, vT + 5, vT + 6, vT + 7
    vc = vHV
    vp = vHV + 4
    tb = vZ
    L_TB = L_GR
    a("s_cmp_lg_u32 s32, 0")
    a("s_cbranch_scc1 M_scan_done")
    a(f"v_mul_u32_u24 v{t3}, {CH}, v{vLANE}")
    a(f"s_waitcnt vmcnt({NPF})")
    stamp()
    a(f"v_lshrrev_b32 v{t1}, 16, v{vTv}")
    a(f"v_and_b32 v{vc}, 0xff, v{vTv+1}")
    a(f"v_bfe_u32 v{vc+1}, v{vTv+1}, 8, 8")
    a(f"v_bfe_u32 v{vc+2}, v{vTv+1}, 16, 8")
    a(f"v_add3_u32 v{t0}, v{vc}, v{vc+1}, v{vc+2}")
    a(f"v_sub_u32 v{vc+3}, v{t1}, v{t0}")
    for k in range(4): a(f"v_mov_b32 v{vp+k}, v{vc+k}")
    a(f"v_and_b32 v{t2}, 0xffff, v{vTv}")
    for sh in (1, 2, 4, 8):
        for k in range(4):
            a(f"v_add_u32_dpp v{vp+k}, v{vp+k}, v{vp+k} row_shr:{sh} row_mask:0xf bank_mask:0xf bound_ctrl:1")
    for k in range(4): a(f"v_add_u32_dpp v{vp+k}, v{vp+k}, v{vp+k} row_bcast:15 row_mask:0xa bank_mask:0xf")
    for k in range(4): a(f"v_add_u32_dpp v{vp+k}, v{vp+k}, v{vp+k} row_bcast:31 row_mask:0xc bank_mask:0xf")
    a(f"v_add_u32 v{tb}, v{t3}, v{t2}")
    for k in range(4): a(f"v_readlane_b32 s{48+k}, v{vp+k}, 63")
    for k in range(1, 4): a(f"v_add_u32 v{tb+4*k}, v{tb+4*k-4}, v{vc+k-1}")
    a("s_add_u32 s49, s49, s48")
    a("s_add_u32 s50, s50, s49")
    a("s_add_u32 s35, s51, s50")
    for k in range(4): a(f"v_sub_u32 v{tb+4*k+1}, v{vp+k}, v{vc+k}")
    for k in range(1, 4): a(f"v_add_u32 v{tb+4*k+1}, s{47+k}, v{tb+4*k+1}")
    for k in range(4): a(f"v_mov_b32 v{tb+4*k+2}, v{vc+k}")
    for k in range(4): a(f"v_mov_b32 v{tb+4*k+3}, v{t3}")
    wa = vHV + 8
    a(f"v_and_b32 v{wa+1}, 3, v{tb}")
    a(f"v_and_b32 v{wa}, 0xfffffffc, v{tb}")
    a(f"v_lshlrev_b32 v{wa}, 2, v{wa}")
    a(f"v_lshrrev_b32 v{t1}, 16, v{vTv}")
    a(f"v_add_u32 v{wa+1}, v{wa+1}, v{t1}")
    a(f"v_cmp_lt_u32 vcc, 32, v{wa+1}")
    a(f"s_cmp_le_u32 s35, {CAP}")
    a("s_cselect_b32 s54, 1, 0")
    a("s_cmp_eq_u64 vcc, 0")
    a("s_cselect_b32 s54, s54, 0")
    a(f"v_lshlrev_b32 v{t0}, 6, v{vLANE}")
    a(f"v_lshlrev_b32 v{t3}, 3, v{vLANE}")
    a(f"v_mov_b32 v{wa+2}, s35")
    a(f"v_mov_b32 v{wa+3}, s54")
    a(f"v_mov_b32 v{t2}, {L_TB + 4096}")
    for k in range(4): a(f"ds_write_b128 v{t0}, v[{tb+4*k}:{tb+4*k+3}] offset:{L_TB+16*k}")
    a(f"ds_write_b64 v{t3}, v[{wa}:{wa+1}] offset:{L_TB + 4160}")
    a(f"ds_write_b64 v{t2}, v[{wa+2}:{wa+3}]")
    a("s_waitcnt lgkmcnt(0)")
    a("M_scan_done:")
    if dbg: nst[0] = 2
    a(f"v_lshlrev_b32 v{t0}, 4, v0")
    a(f"v_mov_b32 v{t2}, {L_TB + 4096}")
    a("s_barrier")
    wb = vHV
    a(f"ds_read_b128 v[{vRecI}:{vRecI+3}], v{t0} offset:{L_TB}")
    a(f"ds_read_b64 v[{wb+4}:{wb+5}], v{t2}")
    a(f"v_lshrrev_b32 v{t1}, 3, v{vLANE}")
    a("s_lshl_b32 s38, s32, 7")
    a(f"v_lshl_add_u32 v{t1}, v{t1}, 3, s38")
    a(f"ds_read_b64 v[{wb}:{wb+1}], v{t1} offset:{L_TB + 4160}")
    a(f"ds_read_b64 v[{wb+2}:{wb+3}], v{t1} offset:{L_TB + 4160 + 64}")
    a(f"v_and_b32 v{t3}, 7, v{vLANE}")
    a(f"v_lshlrev_b32 v{t3}, 2, v{t3}")
    a("s_waitcnt lgkmcnt(0)")
    a(f"v_readfirstlane_b32 s35, v{wb+4}")
    a(f"v_readfirstlane_b32 s54, v{wb+5}")
    stamp()
    def side_loads():
        b0 = vMSG
        a(f"v_lshlrev_b32 v{b0+2}, 4, v{vLANE}")
        a("s_lshl_b32 s42, s32, 10")
        a(f"s_add_u32 m0, s42, {L_XA}")
        a(f"s_add_u32 s42, s42, {WS_W}")
        a(f"buffer_load_dwordx4 v[{vC}:{vC+3}], v{b0+2}, s[20:23], s42 offen")
        a(f"v_lshrrev_b32 v{b0}, 4, v0")
        a(f"v_add_u32 v{b0}, s33, v{b0}")
        a(f"v_and_b32 v{b0+1}, 15, v0")
        a(f"v_lshlrev_b32 v{b0+1}, 4, v{b0+1}")
        a(f"buffer_load_dwordx4 v[{b0}:{b0+1}], s[12:15], 0 idxen offen lds")
    def xu_load():
        a(f"v_lshrrev_b32 v{vOHa}, 4, v0")
        a(f"v_add_u32 v{vOHa}, s33, v{vOHa}")
        a(f"v_lshlrev_b32 v{vOHa}, 8, v{vOHa}")
        a(f"v_and_b32 v{vXU}, 15, v0")
        a(f"v_lshl_add_u32 v{vOHa}, v{vXU}, 4, v{vOHa}")
        a(f"buffer_load_dwordx4 v[{vXU}:{vXU+3}], v{vOHa}, s[44:47], 0 offen")
    a("s_mov_b32 s36, 0")
    a("s_mov_b32 s43, 1")
    a("s_mov_b32 s53, 1")
    a("s_cmp_eq_u32 s35, 0")
    a("s_cbranch_scc1 M_empty")

    vXAa = vT + 23
    def pads_and_readers(tag):
        a("s_cmp_ge_u32 s32, 2")
        a(f"s_cbranch_scc1 M_pad_done{tag}")
        a(f"v_add_u32 v{t0}, s37, v0")
        a(f"v_mov_b32 v{t2}, 0xffffff")
        a(f"v_lshlrev_b32 v{t1}, 2, v{t0}")
        a(f"ds_write_b32 v{t1}, v{t2} offset:{L_LS}")
        a(f"ds_write_b32 v{t1}, v{t2} offset:{L_LE}")
        a(f"v_mov_b32 v{t2}, 15")
        a(f"ds_write_b8 v{t0}, v{t2} offset:{L_LQ}")
        a(f"M_pad_done{tag}:")
        a(f"v_lshrrev_b32 v{t0}, 3, v{vLANE}")
        a("s_lshl_b32 s38, s32, 5")
        a(f"v_lshlrev_b32 v{t0}, 2, v{t0}")
        a(f"s_add_u32 s38, s38, {L_LE}")
        a(f"v_bfe_u32 v{t1}, v{vLANE}, 1, 3")
        a(f"v_add_u32 v{vLs}, {L_LS}, v{t0}")
        a(f"v_lshl_add_u32 v{vLe}, v{t1}, 2, s38")
        a(f"v_mov_b32 v{vLq}, v{vLq0}")
    a(f"v_bfe_u32 v{t0}, v{vLANE}, 2, 2")
    a(f"v_bfe_u32 v{t1}, v{vLANE}, 4, 1")
    a(f"v_lshl_add_u32 v{t0}, v{vH}, 3, v{t0}")
    a(f"v_and_b32 v{t2}, 3, v{vLANE}")
    a(f"v_lshlrev_b32 v{t0}, 8, v{t0}")
    a("s_lshl_b32 s38, s32, 6")
    a(f"v_lshl_add_u32 v{t0}, v{t1}, 5, v{t0}")
    a(f"v_lshl_add_u32 v{t0}, v{t2}, 3, v{t0}")
    a(f"v_add_u32 v{vXAa}, s38, v{t0}")
    a("s_cmp_eq_u32 s54, 0")
    a("s_cbranch_scc1 M_batch")
    L_RW = L_GR + 8192
    a(f"s_mov_b32 s52, {WS_REC}")
    a("s_lshl_b32 s38, s32, 11")
    for i in range(2):
        a(f"v_cmp_lt_u32 vcc, v{t3}, v{wb+2*i+1}")
        a(f"v_lshl_add_u32 v{wb+2*i}, v{t3}, 2, v{wb+2*i}")
        a(f"s_add_u32 m0, s38, {L_RW + 1024*i}")
        a("s_mov_b64 exec, vcc")
        a(f"buffer_load_dwordx4 v{wb+2*i}, s[20:23], s52 offen lds")
        a("s_mov_b64 exec, -1")
    side_loads()
    NP2 = int(opt("tpf", "0"))
    if NP2:
        a("s_lshr_b32 s38, s2, 3")
        a(f"s_mul_i32 s38, s38, {8*NP2}")
        a(f"s_mul_i32 s39, s32, {2*NP2}")
        a("s_add_u32 s38, s38, s39")
        a(f"v_add_u32 v{vMSG+4}, s38, v{vH}")
        a(f"v_lshlrev_b32 v{vMSG+5}, 4, v{vE5}")
        a("s_lshr_b32 s39, s32, 1")
        a("s_lshl_b32 s39, s39, 13")
        a("s_and_b32 s38, s32, 1")
        a(f"s_mul_i32 s38, s38, {1024*NP2}")
        a("s_add_u32 s39, s39, s38")
        for i in range(NP2):
            a(f"s_add_u32 m0, s39, {L_GR + 20480 + 1024*i}")
            if i: a(f"v_add_u32 v{vMSG+4}, 2, v{vMSG+4}")
            else: a("s_nop 0")
            a(f"buffer_load_dwordx4 v[{vMSG+4}:{vMSG+5}], s[24:27], 0 idxen offen lds")
    a("s_mov_b32 s43, 0")
    z = vT + 10
    for k in range(4): a(f"v_mov_b32 v{z+k}, 0")
    a(f"v_lshlrev_b32 v{t0}, 4, v0")
    a(f"v_cmp_gt_u32 vcc, 192, v0")
    a("s_mov_b64 exec, vcc")
    a(f"ds_write_b128 v{t0}, v[{z}:{z+3}] offset:{L_OR}")
    a("s_mov_b64 exec, -1")
    a("s_mov_b32 s37, s35")
    vP4, vP1, vA = vT + 12, vT + 13, vT + 3
    vR = vT + 14
    a(f"v_lshrrev_b32 v{t0}, 2, v0")
    a(f"v_lshlrev_b32 v{t0}, 7, v{t0}")
    a(f"v_mov_b32_dpp v{t2}, v{vRecI} quad_perm:[0,0,0,0] row_mask:0xf bank_mask:0xf")
    a(f"v_and_b32 v{t2}, 0xfffffffc, v{t2}")
    a(f"v_sub_u32 v{t2}, v{vRecI}, v{t2}")
    a(f"v_lshl_add_u32 v{vA}, v{t2}, 2, v{t0}")
    a(f"v_mov_b32 v{vP1}, v{vPos0}")
    a(f"v_lshlrev_b32 v{vP4}, 2, v{vPos0}")
    pads_and_readers("f")
    a(f"s_waitcnt vmcnt({2 + NP2})")
    if dbg:
        a("s_memtime s[58:59]\ns_waitcnt lgkmcnt(0)\ns_mov_b32 s67, s58")
    a("M_fast_round:")
    for u in range(8): a(f"ds_read_b32 v{vR+u}, v{vA} offset:{L_RW + 4*u}")
    for u in range(8):
        a(f"v_cmp_lt_i32 vcc, {u}, v{vCnt}")
        a("s_mov_b64 exec, vcc")
        a("s_cbranch_execz M_fast_done")
        if u == 0: a("s_waitcnt lgkmcnt(0)")
        a(f"v_and_b32 v{t0}, 0x3fff, v{vR+u}")
        a(f"v_bfe_u32 v{t1}, v{vR+u}, 14, 5")
        a(f"v_lshrrev_b32 v{t2}, 19, v{vR+u}")
        a(f"v_add_u32 v{t2}, v{t2}, v{vEb}")
        if flag("exp_e"): a(f"v_and_b32 v{t2}, 0x3fff, v{t2}")
        if flag("exp_t"): a(f"v_and_b32 v{t0}, 0x7ff, v{t0}")
        a(f"ds_write_b32 v{vP4}, v{t0} offset:{L_LS + 4*u}")
        a(f"ds_write_b8 v{vP1}, v{t1} offset:{L_LQ + u}")
        a(f"ds_write_b32 v{vP4}, v{t2} offset:{L_LE + 4*u}")
    a("s_mov_b64 exec, -1")
    a(f"v_subrev_u32 v{vCnt}, 8, v{vCnt}")
    a(f"v_add_u32 v{vA}, 32, v{vA}")
    a(f"v_add_u32 v{vP4}, 32, v{vP4}")
    a(f"v_add_u32 v{vP1}, 8, v{vP1}")
    a(f"v_cmp_lt_i32 vcc, 0, v{vCnt}")
    a("s_cbranch_vccnz M_fast_round")
    a("M_fast_done:")
    a("s_mov_b64 exec, -1")
    hot = a.l
    a.l = []
    a("M_batch:")
    z = vT + 10
    for k in range(4): a(f"v_mov_b32 v{z+k}, 0")
    a(f"v_lshlrev_b32 v{t0}, 4, v0")
    a(f"v_cmp_gt_u32 vcc, 192, v0")
    a("s_mov_b64 exec, vcc")
    a(f"ds_write_b128 v{t0}, v[{z}:{z+3}] offset:{L_OR}")
    a("s_mov_b64 exec, -1")
    a("s_sub_u32 s37, s35, s36")
    a(f"s_min_u32 s37, s37, {CAP}")
    vJ, vRem, vRa, vP4, vP1 = vT + 10, vT + 11, vT + 3, vT + 12, vT + 13
    a(f"v_sub_u32 v{vJ}, s36, v{vPos0}")
    a(f"v_add_u32 v{vRem}, {CAP}, v{vJ}")
    a(f"v_max_i32 v{vJ}, 0, v{vJ}")
    a(f"v_min_i32 v{vRem}, v{vRem}, v{vCnt}")
    a(f"v_sub_u32 v{vRem}, v{vRem}, v{vJ}")
    a(f"v_add_lshl_u32 v{vRa}, v{vJ}, v{vRecI}, 2")
    a(f"v_add_u32 v{vP1}, v{vPos0}, v{vJ}")
    a(f"v_subrev_u32 v{vP1}, s36, v{vP1}")
    a(f"v_lshlrev_b32 v{vP4}, 2, v{vP1}")
    a(f"s_mov_b32 s52, {WS_REC}")
    vR = vT + 14
    a("M_round:")
    for half in range(2):
        a(f"v_cmp_lt_i32 vcc, {4*half}, v{vRem}")
        a("s_mov_b64 exec, vcc")
        a("s_cbranch_execz M_round_issued")
        a(f"buffer_load_dwordx4 v[{vR+4*half}:{vR+4*half+3}], v{vRa}, s[20:23], s52 offen offset:{16*half}")
    a("M_round_issued:")
    a("s_mov_b64 exec, -1")
    a("s_cmp_eq_u32 s43, 0")
    a("s_cbranch_scc1 M_round_w0")
    side_loads()
    a("s_mov_b32 s43, 0")
    a("s_waitcnt vmcnt(2)")
    a("s_branch M_round_proc")
    a("M_round_w0:")
    a("s_waitcnt vmcnt(0)")
    a("M_round_proc:")
    if dbg:
        a("s_memtime s[58:59]\ns_waitcnt lgkmcnt(0)\ns_mov_b32 s67, s58"); nst[0] = 4
    for u in range(8):
        a(f"v_cmp_lt_i32 vcc, {u}, v{vRem}")
        a("s_mov_b64 exec, vcc")
        a("s_cbranch_execz M_round_done")
        a(f"v_and_b32 v{t0}, 0x3fff, v{vR+u}")
        a(f"v_bfe_u32 v{t1}, v{vR+u}, 14, 5")
        a(f"v_lshrrev_b32 v{t2}, 19, v{vR+u}")
        a(f"v_add_u32 v{t2}, v{t2}, v{vEb}")
        if flag("exp_e"): a(f"v_and_b32 v{t2}, 0x3fff, v{t2}")
        if flag("exp_t"): a(f"v_and_b32 v{t0}, 0x7ff, v{t0}")
        a(f"ds_write_b32 v{vP4}, v{t0} offset:{L_LS + 4*u}")
        a(f"ds_write_b8 v{vP1}, v{t1} offset:{L_LQ + u}")
        a(f"ds_write_b32 v{vP4}, v{t2} offset:{L_LE + 4*u}")
    a("M_round_done:")
    a("s_mov_b64 exec, -1")
    a(f"v_subrev_u32 v{vRem}, 8, v{vRem}")
    a(f"v_add_u32 v{vRa}, 32, v{vRa}")
    a(f"v_add_u32 v{vP4}, 32, v{vP4}")
    a(f"v_add_u32 v{vP1}, 8, v{vP1}")
    a(f"v_cmp_lt_i32 vcc, 0, v{vRem}")
    a("s_cbranch_vccnz M_round")
    pads_and_readers("s")
    a("s_branch M_lists_done")
    cold = a.l
    a.l = hot
    a("M_lists_done:")
    a("s_waitcnt lgkmcnt(0)")
    a("s_barrier")
    stamp()
    def idx_reads(T):
        for q in range(4):
            a(f"ds_read_b32 v{pG+2*q}, v{vLs} offset:{128*T + 32*q}")
        a(f"ds_read_b32 v{pE}, v{vLe} offset:{128*T}")
    def dma_tile(gslot, eslot):
        for q in range(4):
            a(f"s_add_u32 m0, s40, {L_GR + gslot*4096 + q*1024}")
            a("s_nop 0")
            a(f"buffer_load_dwordx4 v[{pG+2*q}:{pG+2*q+1}], s[24:27], 0 idxen offen {opt('gflag', '').replace('_', ' ')} lds")
        a(f"s_add_u32 m0, s41, {eslot*1024}")
        a("s_mov_b64 exec, 0xffff")
        a(f"buffer_load_dwordx4 v[{pE}:{pE+1}], s[16:19], 0 idxen offen {opt('eflag', '').replace('_', ' ')} lds")
        a("s_mov_b64 exec, -1")
    def frag_reads(gs, es):
        a(f"ds_read_b128 v[{vFX}:{vFX+3}], v{vG} offset:{L_GR + gs*4096}")
        a(f"ds_read_b128 v[{vFX+4}:{vFX+7}], v{vG+1} offset:{L_GR + gs*4096}")
        a(f"ds_read_b128 v[{vAE}:{vAE+3}], v{vEA} offset:{es*1024}")
        a(f"ds_read_b128 v[{vAO}:{vAO+3}], v{vO0} offset:{es*1024}")
        a(f"ds_read_b128 v[{vFH}:{vFH+3}], v{vG+2} offset:{L_GR + gs*4096}")
        a(f"ds_read_b128 v[{vFH+4}:{vFH+7}], v{vG+3} offset:{L_GR + gs*4096}")
    idx_reads(0)
    a(f"v_subrev_u32 v{t0}, 64, v{vLq}")
    a(f"ds_read_u8 v{vQ}, v{t0}")
    a(f"ds_read_u8 v{vOHa}, v{t0} offset:32")
    a("s_waitcnt lgkmcnt(2)")
    dma_tile(0, 0)
    idx_reads(1)
    if flag("t1early"):
        a("s_waitcnt lgkmcnt(0)")
        dma_tile(1, 1)
    a("s_waitcnt lgkmcnt(5)")
    a(f"v_lshl_add_u32 v{vQ}, v{vQ}, 1, v{vK+1}")
    a(f"v_lshl_add_u32 v{vOHa}, v{vOHa}, 1, v{vK+2}")
    a("s_mov_b64 exec, 0xff")
    a(f"ds_write_b16 v{vQ}, v{vOHd}")
    a(f"ds_write_b16 v{vOHa}, v{vOHd}")
    a("s_mov_b64 exec, -1")
    T1E = flag("t1early")
    if T1E:
        a("s_waitcnt vmcnt(5) lgkmcnt(0)")
        a("s_barrier")
        frag_reads(0, 0)
        idx_reads(2)
    else:
        a("s_waitcnt vmcnt(0) lgkmcnt(0)")
        a("s_barrier")
        frag_reads(0, 0)
    a("s_cmp_lg_u32 s36, 0")
    a("s_cbranch_scc1 M_noxa")
    a(f"ds_read_b64_tr_b16 v[{vXA}:{vXA+1}], v{vXAa} offset:{L_XA}")
    a(f"ds_read_b64_tr_b16 v[{vXA+2}:{vXA+3}], v{vXAa} offset:{L_XA + 1024}")
    a("M_noxa:")
    if not T1E:
        dma_tile(1, 1)
        idx_reads(2)
    a("s_waitcnt lgkmcnt(0)")
    SPREAD = opt("spread", "1") != "0"
    LATE = {"0": [0, 1, 2, 3, 4], "1": [0, 1], "2": [], "3": [0]}[opt("spread", "1")]
    EARLY = [p for p in range(5) if p not in LATE]
    def dma_part(p, gslot, eslot, filler=None):
        if p < 4:
            a(f"s_add_u32 m0, s40, {L_GR + gslot*4096 + p*1024}")
            a(filler if filler else "s_nop 0")
            a(f"buffer_load_dwordx4 v[{pG+2*p}:{pG+2*p+1}], s[24:27], 0 idxen offen {opt('gflag', '').replace('_', ' ')} lds")
        else:
            a(f"s_add_u32 m0, s41, {eslot*1024}")
            a("s_mov_b64 exec, 0xffff")
            a(f"buffer_load_dwordx4 v[{pE}:{pE+1}], s[16:19], 0 idxen offen {opt('eflag', '').replace('_', ' ')} lds")
            a("s_mov_b64 exec, -1")
            if filler: a(filler)
    for p in LATE: dma_part(p, 0, 2)
    stamp()
    if dbg: a("s_memrealtime s[72:73]\ns_waitcnt lgkmcnt(0)")
    a("s_add_u32 s37, s37, 31")
    a("s_lshr_b32 s37, s37, 5")
    def chain(z, h):
        return [mf(z, vFX, vI, None), mf(z, vFX + 4, vI + 4, z), mf(z, vAE, vC, z), mf(z, vAO, vXA, z),
                mf(h, vFH, vI, None), mf(h, vFH + 4, vI + 4, h)]
    nlab = [0]
    def prio(p):
        if PRIO == "pair": a(f"s_setprio {p}")
        if PRIO == "pairbal":
            nlab[0] += 1
            a(f"s_setprio {p}")
            a(f"s_cbranch_vccz M_pr{nlab[0]}")
            a(f"s_setprio {p + 2}")
            a(f"M_pr{nlab[0]}:")
    if flag("tl"): a("s_memrealtime s[84:85]\ns_waitcnt lgkmcnt(0)")
    a("M_loop:")
    loop_start = len(a.l)
    for k in range(6):
        es = k % 3; es1 = (k + 1) % 3; gs1 = (k + 1) % 2
        gs2 = k % 2; es2 = (k + 2) % 3
        z, h = vZ, vHV
        a.c(f"---- position {k}: e/one-hot slot {es} ----")
        if PRIO == "bal" and k % 2 == 0:
            a(f"s_cmp_ge_u32 s37, 9\ns_cbranch_scc1 M_prio_done{k}\ns_setprio 2\ns_cmp_ge_u32 s37, 5\ns_cbranch_scc1 M_prio_done{k}\ns_setprio 1\ns_cmp_ge_u32 s37, 2\ns_cbranch_scc1 M_prio_done{k}\ns_setprio 0\nM_prio_done{k}:")
        if PRIO == "pairbal":
            a(f"s_cmp_gt_u32 s37, {opt('X', '4')}")
            a("s_cselect_b64 vcc, -1, 0")
        early = list(EARLY)
        ch = chain(z, h)
        SKIP = flag("skip")
        nsk = [0]
        def guarded(cond, fn):
            if not SKIP: fn(); return
            nsk[0] += 1
            a(f"s_cmp_lt_u32 s37, {cond}")
            a(f"s_cbranch_scc1 M_sk{k}_{cond}_{nsk[0]}")
            fn()
            a(f"M_sk{k}_{cond}_{nsk[0]}:")
        _dp = dma_part
        def dma_early(p): guarded(3, lambda: _dp(p, gs2, es2))
        if len(early) <= 3:
            if early: dma_early(early.pop(0))
            a("s_waitcnt lgkmcnt(0)")
            for s_ in range(2):
                a(f"ds_read_b64_tr_b16 v[{vSO+4*s_}:{vSO+4*s_+1}], v{vT0} offset:{es*1024 + s_*512}")
                a(f"ds_read_b64_tr_b16 v[{vSO+4*s_+2}:{vSO+4*s_+3}], v{vT0} offset:{es*1024 + s_*512 + 256}")
            for x in ch[0:4]: a(x)
            if early: dma_early(early.pop(0))
            for x in ch[4:6]: a(x)
            while early: dma_early(early.pop(0))
        else:
            a("s_waitcnt lgkmcnt(0)")
            for s_ in range(2):
                a(f"ds_read_b64_tr_b16 v[{vSO+4*s_}:{vSO+4*s_+1}], v{vT0} offset:{es*1024 + s_*512}")
                a(f"ds_read_b64_tr_b16 v[{vSO+4*s_+2}:{vSO+4*s_+3}], v{vT0} offset:{es*1024 + s_*512 + 256}")
            for j, x in enumerate(ch):
                a(x)
                if early and j < 5: dma_part(early.pop(0), gs2, es2)
            while early: dma_part(early.pop(0), gs2, es2)
        if SKIP:
            a("s_cmp_lt_u32 s37, 3")
            a(f"s_cbranch_scc1 M_w0_{k}")
            a("s_waitcnt vmcnt(5) lgkmcnt(0)")
            a(f"s_branch M_w1_{k}")
            a(f"M_w0_{k}:")
            a("s_waitcnt vmcnt(0) lgkmcnt(0)")
            a(f"M_w1_{k}:")
        else:
            a("s_waitcnt vmcnt(5) lgkmcnt(0)")
        a("s_barrier")
        frag_reads(gs1, es1)
        T3 = k + 3
        for q in range(4):
            a(f"ds_read_b32 v{pG+2*q}, v{vLs} offset:{128*T3 + 32*q}")
        a(f"ds_read_b32 v{pE}, v{vLe} offset:{128*T3}")
        a(f"ds_read_u8 v{vQ}, v{vLq} offset:{32*k}")
        if k == 1:
            a("s_cmp_eq_u32 s53, 0")
            a("s_cbranch_scc1 M_xu_done")
            xu_load()
            a("s_mov_b32 s53, 0")
            a("M_xu_done:")
        ex = [f"v_exp_f32 v{z+r}, v{z+r}" for r in range(16)]
        ad = [f"v_add_f32 v{z+r}, 1.0, v{z+r}" for r in range(16)]
        rc = [f"v_rcp_f32 v{z+r}, v{z+r}" for r in range(16)]
        mu = [f"v_mul_f32 v{z+r}, v{z+r}, v{h+r}" for r in range(16)]
        cv = [f"v_cvt_pk_bf16_f32 v{vMSG+r}, v{z+2*r}, v{z+2*r+1}" for r in range(8)]
        for x in ex: a(x)
        prio(0)
        for x in ad: a(x)
        prio(1)
        a("s_waitcnt lgkmcnt(0)")
        late = list(LATE)
        pos = {5: [0, 3, 6, 9, 12], 2: [1, 9], 1: [4], 0: []}[len(late)]
        r0 = 0
        for p, at in zip(late, pos):
            for x in rc[r0:at]: a(x)
            if SKIP:
                a(rc[at])
                guarded(4, lambda: _dp(p, gs1, es))
            else:
                dma_part(p, gs1, es, rc[at])
            r0 = at + 1
        for x in rc[r0:16]: a(x)
        a(f"v_lshl_add_u32 v{vOHa}, v{vQ}, 1, v{vK+es}")
        a("s_mov_b64 exec, 0xffff")
        a(f"ds_write_b16 v{vOHa}, v{vOHd}")
        a("s_mov_b64 exec, -1")
        prio(0)
        for x in mu: a(x)
        prio(1)
        for x in cv: a(x)
        a("s_sub_u32 s37, s37, 1")
        a(mf(vACC, vSO, vMSG, vACC))
        a(mf(vACC, vSO + 4, vMSG + 4, vACC))
        a("s_cmp_eq_u32 s37, 0")
        a("s_cbranch_scc1 M_loop_done")
    a(f"v_add_u32 v{vLs}, {128*6}, v{vLs}")
    a(f"v_add_u32 v{vLe}, {128*6}, v{vLe}")
    a(f"v_add_u32 v{vLq}, {32*6}, v{vLq}")
    a("s_branch M_loop")
    abl = [x[6:] for x in ARGS if x.startswith("--abl_")]
    if abl:
        body = a.l[loop_start:]
        def drop(l):
            t = l.strip()
            if "dma" in abl and t.startswith("buffer_load") and " lds" in t: return True
            if "valu" in abl and t.startswith(("v_exp", "v_add_f32", "v_rcp", "v_mul_f32", "v_cvt_pk")): return True
            if "mfma" in abl and t.startswith("v_mfma"): return True
            if "bar" in abl and t.startswith("s_barrier"): return True
            if "frag" in abl and t.startswith("ds_read_b128"): return True
            if "tr" in abl and t.startswith("ds_read_b64_tr"): return True
            if "idx" in abl and t.startswith(("ds_read_b32", "ds_read_u8")): return True
            if "oh" in abl and t.startswith("ds_write_b16"): return True
            if "dmae" in abl and t.startswith("buffer_load") and "s[16:19]" in t: return True
            if "dmag" in abl and t.startswith("buffer_load") and "s[24:27]" in t: return True
            return False
        body = [l for l in body if not drop(l)]
        if "vmw" in abl: body = [l.replace("vmcnt(5) ", "") for l in body]
        a.l[loop_start:] = body
    a("M_loop_done:")
    if flag("tl"): a("s_memrealtime s[86:87]\ns_waitcnt lgkmcnt(0)")
    stamp()
    if dbg: a("s_memrealtime s[74:75]\ns_waitcnt lgkmcnt(0)")
    a("s_cmp_eq_u32 s53, 0")
    a("s_cbranch_scc1 M_xu_done2")
    xu_load()
    a("s_mov_b32 s53, 0")
    a("M_xu_done2:")
    a("s_waitcnt vmcnt(0) lgkmcnt(0)")
    a("s_barrier")
    a(f"s_add_u32 s36, s36, {CAP}")
    a("s_cmp_lt_u32 s36, s35")
    a("s_cbranch_scc1 M_batch")
    hot = a.l
    a.l = cold
    a("M_empty:")
    xu_load()
    a("s_waitcnt vmcnt(0)")
    a("s_branch M_epilogue")
    cold = a.l
    a.l = hot
    a("M_epilogue:")
    a(f"v_mul_u32_u24 v{t0}, {4*AGG_STRIDE}, v{vH}")
    a(f"v_lshl_add_u32 v{t0}, v{vE5}, 2, v{t0}")
    a("s_lshl_b32 s39, s32, 7")
    a(f"v_add_u32 v{t0}, s39, v{t0}")
    a("s_nop 7")
    for r in range(8):
        a(f"ds_write_b32 v{t0}, v{vACC+r} offset:{L_GR + (8*(r >> 2) + (r & 3))*AGG_STRIDE}")
    a(f"v_lshrrev_b32 v{t0}, 4, v0")
    a(f"v_and_b32 v{t1}, 15, v0")
    a(f"v_mul_u32_u24 v{t2}, {AGG_STRIDE}, v{t0}")
    a(f"v_lshl_add_u32 v{t2}, v{t1}, 5, v{t2}")
    a(f"v_add_u32 v{t3}, s33, v{t0}")
    a(f"v_lshlrev_b32 v{t3}, 8, v{t3}")
    a(f"v_lshl_add_u32 v{t3}, v{t1}, 4, v{t3}")
    a(f"s_mov_b32 s38, {NEG_LOG2E:#x}")
    a("s_waitcnt lgkmcnt(0)")
    a("s_barrier")
    y = vZ; w_ = vHV
    a(f"ds_read_b128 v[{y}:{y+3}], v{t2} offset:{L_GR}")
    a(f"ds_read_b128 v[{y+4}:{y+7}], v{t2} offset:{L_GR + 16}")
    for i in range(4):
        a(f"v_lshlrev_b32 v{w_+2*i}, 16, v{vXU+i}")
        a(f"v_and_b32 v{w_+2*i+1}, 0xffff0000, v{vXU+i}")
    a("s_waitcnt lgkmcnt(0)")
    for r in range(8): a(f"v_add_f32 v{y+r}, v{y+r}, v{w_+r}")
    for r in range(8): a(f"v_mul_f32 v{w_+r}, s38, v{y+r}")
    for r in range(8): a(f"v_exp_f32 v{w_+r}, v{w_+r}")
    for r in range(8): a(f"v_add_f32 v{w_+r}, 1.0, v{w_+r}")
    for r in range(8): a(f"v_rcp_f32 v{w_+r}, v{w_+r}")
    a("s_nop 0")
    for r in range(8): a(f"v_mul_f32 v{y+r}, v{y+r}, v{w_+r}")
    for r in range(4): a(f"v_cvt_pk_bf16_f32 v{vMSG+r}, v{y+2*r}, v{y+2*r+1}")
    if dbg:
        stamp()
        a("s_memrealtime s[62:63]\ns_waitcnt lgkmcnt(0)")
        a("s_mov_b32 s52, s10\ns_and_b32 s53, s11, 0xffff\ns_mov_b32 s54, 0x1000000\ns_mov_b32 s55, 0x20000")
        a(f"s_lshl_b32 s56, s2, 2\ns_add_u32 s56, s56, s32\ns_lshl_b32 s56, s56, 6\ns_add_u32 s56, s56, {DBG2:#x}")
        vals = [64, 65, 66, 67, 68, 69, 70, 71, 60, 62, 35, 72, 74]
        a("s_mov_b64 s[50:51], exec\ns_mov_b64 exec, 1")
        for i, r in enumerate(vals):
            a(f"v_mov_b32 v{vT+20}, s{r}")
            a(f"v_mov_b32 v{vT+21}, 0")
            a(f"buffer_store_dword v{vT+20}, v{vT+21}, s[52:55], s56 offen offset:{4*i}")
        a("s_mov_b64 exec, s[50:51]")
    if flag("tl"):
        a("s_memrealtime s[70:71]\ns_waitcnt lgkmcnt(0)")
        a("s_mov_b32 s76, s10\ns_and_b32 s77, s11, 0xffff\ns_mov_b32 s78, 0x1000000\ns_mov_b32 s79, 0x20000")
        a(f"s_lshl_b32 s75, s2, 2\ns_add_u32 s75, s75, s32\ns_lshl_b32 s75, s75, 4\ns_add_u32 s75, s75, {DBG2:#x}")
        a("s_mov_b64 s[80:81], exec\ns_mov_b64 exec, 1")
        a(f"v_mov_b32 v{vT+18}, s68\nv_mov_b32 v{vT+19}, s70\nv_mov_b32 v{vT+20}, s84\nv_mov_b32 v{vT+21}, s86\nv_mov_b32 v{vT+22}, 0")
        a(f"buffer_store_dwordx4 v[{vT+18}:{vT+21}], v{vT+22}, s[76:79], s75 offen")
        a("s_mov_b64 exec, s[80:81]")
    a(f"v_cmp_gt_u32 vcc, s34, v{t0}")
    a("s_mov_b64 exec, vcc")
    a("s_cbranch_execz M_end")
    a(f"buffer_store_dwordx4 v[{vMSG}:{vMSG+3}], v{t3}, s[28:31], 0 offen {opt('oflag', '').replace('_', ' ')}")
    a("M_end:")
    a("s_endpgm")
    a.l += cold
    a("M_last:")
    return a.text() + descriptor(KNAME, NVGPR, 96 if (dbg or flag("tl")) else 56)

HEAD = f"""; Edge-gated message passing (gated graph conv) for gfx950.
;                 [-log2e * x@B | x@V], -log2e * x@A, x@U; C fragments in MFMA layout
;   main kernel : per bucket of 13/14 destination nodes: gather node-table rows and e_attr rows into LDS,
;                 gate pre-activation on the matrix cores, sigmoid gate, one-hot segment sum, silu
; @launch kernel=prep_kernel grid=({P_GRID},1,1) block=({P_BLOCK},1,1) lds={P_LDS}
; @launch kernel={KNAME} grid=({NB},1,1) block=(256,1,1) lds={M_LDS}
.amdgcn_target "amdgcn-amd-amdhsa--gfx950"
.text
"""

def tl_kernel():
    a = A()
    header(a, "tl_kernel")
    a("s_cmp_ge_u32 s2, 1\ns_cbranch_scc1 T_end")
    a("s_load_dwordx4 s[4:7], s[0:1], 64\ns_waitcnt lgkmcnt(0)")
    a("s_mov_b32 s8, s4\ns_and_b32 s9, s5, 0xffff\ns_mov_b32 s10, 256\ns_mov_b32 s11, 0x20000")
    a("s_mov_b32 s12, s6\ns_and_b32 s13, s7, 0xffff\ns_mov_b32 s14, 0x1000000\ns_mov_b32 s15, 0x20000")
    a("v_mov_b32 v10, 0")
    a(f"v_lshlrev_b32 v1, 6, v0\nv_add_u32 v1, {DBG2}, v1")
    a("v_cmp_gt_u32 vcc, 768, v0\ns_mov_b64 exec, vcc")
    a("buffer_load_dwordx4 v[4:7], v1, s[12:15], 0 offen\ns_waitcnt vmcnt(0)")
    a("v_not_b32 v8, v4\nbuffer_atomic_umax v8, v10, s[8:11], 0 offen offset:0")
    a("buffer_atomic_umax v4, v10, s[8:11], 0 offen offset:4")
    a("buffer_atomic_umax v5, v10, s[8:11], 0 offen offset:8")
    a("v_not_b32 v8, v6\nbuffer_atomic_umax v8, v10, s[8:11], 0 offen offset:12")
    a("buffer_atomic_umax v6, v10, s[8:11], 0 offen offset:16")
    a("v_not_b32 v8, v7\nbuffer_atomic_umax v8, v10, s[8:11], 0 offen offset:20")
    a("buffer_atomic_umax v7, v10, s[8:11], 0 offen offset:24")
    a("s_mov_b64 exec, -1")
    a(f"v_lshlrev_b32 v1, 7, v0\nv_add_u32 v1, {DBG1}, v1")
    a(f"v_cmp_gt_u32 vcc, {NCH + 2*P_NG}, v0\ns_mov_b64 exec, vcc")
    a("s_cbranch_execz T_end")
    a("buffer_load_dwordx2 v[4:5], v1, s[12:15], 0 offen\ns_waitcnt vmcnt(0)")
    a("v_not_b32 v8, v4\nbuffer_atomic_umax v8, v10, s[8:11], 0 offen offset:28")
    a("buffer_atomic_umax v5, v10, s[8:11], 0 offen offset:32")
    a(f"v_cmp_gt_u32 vcc, {NCH}, v0\ns_mov_b64 exec, vcc")
    a("s_cbranch_execz T_end")
    a("buffer_atomic_umax v5, v10, s[8:11], 0 offen offset:36")
    a("T_end:\ns_endpgm")
    return a.text() + descriptor("tl_kernel", 16, 32)

def build(dbg=False):
    h = HEAD
    if flag("tl"):
        h = h.replace(".amdgcn_target", "; @launch kernel=tl_kernel grid=(1,1,1) block=(1024,1,1) lds=0\n.amdgcn_target")
    return h + prep_kernel(dbg) + main_kernel(dbg) + (tl_kernel() if flag("tl") else "")

if __name__ == "__main__":
    args = [x for x in ARGS if not x.startswith("--")]
    out = args[0] if args else "gather_scatter__edge_featured_mpnn_egc__graph.s"
    open(out, "w").write(build(dbg=flag("dbg")))
    print("wrote", out, "M_LDS", M_LDS, "P_LDS", P_LDS)
```

```python
import sys

N = 10000; E = 320000
NB = 768
NCH = 64; CH = 5000
MAGIC_G = 214749
WS_T = 0
WS_W = 0x60000
WS_REC = 0x80000
MAGIC_R = 6554
WS_SZ = 0x200000
WS_TAB = 0x200000
WS_XA = 0x700000
WS_XU = 0x980000
DBG2, DBG1 = 0xC00000, 0xE00000
NEG_LOG2E = 0xBFB8AA3B
KNAME = "gather_scatter__edge_featured_mpnn_egc__graph_kernel"
ARGS = sys.argv[1:]
def flag(n): return ("--" + n) in ARGS
def opt(n, d):
    for x in ARGS:
        if x.startswith("--" + n + "="): return x.split("=", 1)[1]
    return d

S0 = int(opt('s0', '16')); S1 = int(opt('s1', '13'))
assert S0 <= 16 and S1 <= 16 and 40 - S0 - S1 <= 16

class A:
    def __init__(self):
        self.l = []
    def __call__(self, s=""):
        for x in s.split("\n"):
            x = x.strip()
            if not x: continue
            if x.endswith(":"):
                self.l.append(x)
            else:
                self.l.append("    " + x)
    def c(self, s):
        self.l.append("    ; " + s)
    def raw(self, s):
        self.l.append(s)
    def text(self):
        return "\n".join(self.l) + "\n"

def srd(a, r, lo, hi, size, stride=0, add=0):
    if add:
        a(f"s_add_u32 s{r}, s{lo}, {add:#x}")
        a(f"s_addc_u32 s{r+1}, s{hi}, 0")
        a(f"s_and_b32 s{r+1}, s{r+1}, 0xffff")
    else:
        a(f"s_mov_b32 s{r}, s{lo}")
        a(f"s_and_b32 s{r+1}, s{hi}, 0xffff")
    if stride:
        a(f"s_or_b32 s{r+1}, s{r+1}, {stride << 16:#x}")
    a(f"s_mov_b32 s{r+2}, {size:#x}")
    a(f"s_mov_b32 s{r+3}, 0x20000")

def wave_scan(a, v):
    for sh in (1, 2, 4, 8):
        a("s_nop 1")
        a(f"v_add_u32_dpp v{v}, v{v}, v{v} row_shr:{sh} row_mask:0xf bank_mask:0xf bound_ctrl:1")
    a("s_nop 1")
    a(f"v_add_u32_dpp v{v}, v{v}, v{v} row_bcast:15 row_mask:0xa bank_mask:0xf")
    a("s_nop 1")
    a(f"v_add_u32_dpp v{v}, v{v}, v{v} row_bcast:31 row_mask:0xc bank_mask:0xf")
    a("s_nop 1")

def header(a, name):
    a.raw(f".globl {name}")
    a.raw(".p2align 8")
    a.raw(f".type {name},@function")
    a.raw(f"{name}:")

def descriptor(name, vgpr, sgpr):
    acc = (vgpr + 3) // 4 * 4
    return f""".section .rodata,"a"
.p2align 6
.amdhsa_kernel {name}
  .amdhsa_next_free_vgpr {vgpr}
  .amdhsa_next_free_sgpr {sgpr}
  .amdhsa_accum_offset {acc}
  .amdhsa_group_segment_fixed_size 0
  .amdhsa_kernarg_size 80
  .amdhsa_user_sgpr_count 2
  .amdhsa_user_sgpr_kernarg_segment_ptr 1
  .amdhsa_system_sgpr_workgroup_id_x 1
  .amdhsa_float_denorm_mode_32 3
.end_amdhsa_kernel
.text
"""

def mf(d, x, y, c):
    cs = "0" if c is None else f"v[{c}:{c+15}]"
    return f"v_mfma_f32_32x32x16_bf16 v[{d}:{d+15}], v[{x}:{x+3}], v[{y}:{y+3}], {cs}"

XGRP = 1088
XSLOT = 8 * XGRP

def xfrag_addr(a, d0, d1, row, h, t0, t1, t2):
    a(f"v_lshrrev_b32 v{t0}, 2, v{row}")
    a(f"v_mul_u32_u24 v{t0}, {XGRP}, v{t0}")
    a(f"v_and_b32 v{t1}, 3, v{row}")
    a(f"v_lshl_add_u32 v{t0}, v{t1}, 8, v{t0}")
    a(f"v_xor_b32 v{t2}, v{h}, v{t1}")
    a(f"v_lshl_add_u32 v{d0}, v{t2}, 4, v{t0}")
    a(f"v_xor_b32 v{t2}, 2, v{t2}")
    a(f"v_lshl_add_u32 v{d1}, v{t2}, 4, v{t0}")

P_BLOCK = 640
P_NG = 79
P_GRID = NCH + 2 * P_NG + 1
P_HIST, P_START, P_TOT, P_SORT = 0, 12288, 24576, 24640
G_W0, G_W1, G_X = 0, 32768, 65536
G_ST = G_X + 4 * XSLOT
P_LDS = G_ST + 8 * 4096

def prep_kernel(dbg=False):
    SF = opt("sflag", "").replace("_", " ")
    SFR = opt("rflag", opt("sflag", "")).replace("_", " ")
    a = A()
    nst = [0]
    def stamp():
        if not dbg: return
        a("s_waitcnt lgkmcnt(0)\ns_memtime s[40:41]\ns_waitcnt lgkmcnt(0)")
        a(f"s_mov_b32 s{50+nst[0]}, s40")
        nst[0] += 1
    def dump(role):
        if not dbg: return
        while nst[0] < 8: stamp()
        a("s_memrealtime s[46:47]\ns_load_dwordx2 s[42:43], s[0:1], 72\ns_waitcnt lgkmcnt(0)")
        a("s_mov_b32 s60, s42\ns_and_b32 s61, s43, 0xffff\ns_mov_b32 s62, 0x1000000\ns_mov_b32 s63, 0x20000")
        a("v_lshrrev_b32 v158, 6, v0\ns_nop 0\nv_readfirstlane_b32 s48, v158\ns_nop 3")
        a(f"s_lshl_b32 s49, s2, 4\ns_add_u32 s49, s49, s48\ns_lshl_b32 s49, s49, 6\ns_add_u32 s49, s49, {DBG1:#x}")
        a("s_mov_b64 exec, 1")
        for i, r in enumerate([50,51,52,53,54,55,56,57,44,46]):
            a(f"v_mov_b32 v158, s{r}\nv_mov_b32 v159, 0\nbuffer_store_dword v158, v159, s[60:63], s49 offen offset:{4*i}")
        a(f"v_mov_b32 v158, {role}\nv_mov_b32 v159, 0\nbuffer_store_dword v158, v159, s[60:63], s49 offen offset:40")
        nst[0] = 0
    TL = flag("tl")
    def tl_end():
        if not TL: return
        a("s_waitcnt vmcnt(0) lgkmcnt(0)")
        a("s_memrealtime s[70:71]\ns_load_dwordx2 s[72:73], s[0:1], 72\ns_waitcnt lgkmcnt(0)")
        a("s_mov_b32 s76, s72\ns_and_b32 s77, s73, 0xffff\ns_mov_b32 s78, 0x1000000\ns_mov_b32 s79, 0x20000")
        a("v_lshrrev_b32 v158, 6, v0\ns_nop 0\nv_readfirstlane_b32 s74, v158\ns_nop 3")
        a(f"s_lshl_b32 s75, s2, 4\ns_add_u32 s75, s75, s74\ns_lshl_b32 s75, s75, 3\ns_add_u32 s75, s75, {DBG1:#x}")
        a("s_mov_b64 exec, 1\nv_mov_b32 v156, s68\nv_mov_b32 v157, s70\nv_mov_b32 v159, 0")
        a("buffer_store_dwordx2 v[156:157], v159, s[76:79], s75 offen")
    header(a, "prep_kernel")
    if TL: a("s_memrealtime s[68:69]")
    if dbg:
        a("s_memrealtime s[44:45]")
        stamp()
    a(f"s_cmp_ge_u32 s2, {P_GRID}")
    a("s_cbranch_scc1 P_end")
    a(f"s_cmp_ge_u32 s2, {NCH + 2*P_NG}")
    a("s_cbranch_scc1 P_weights")
    a(f"s_cmp_ge_u32 s2, {NCH}")
    a("s_cbranch_scc1 P_gemm")
    a("s_load_dwordx4 s[4:7], s[0:1], 16")
    a("s_load_dwordx2 s[8:9], s[0:1], 72")
    a("v_lshlrev_b32 v2, 4, v0")
    a("v_mov_b32 v4, 0\nv_mov_b32 v5, 0\nv_mov_b32 v6, 0\nv_mov_b32 v7, 0")
    a("ds_write_b128 v2, v[4:7]")
    a("ds_write_b128 v2, v[4:7] offset:10240")
    a("v_lshlrev_b32 v1, 4, v0")
    a(f"s_mul_i32 s3, s2, {CH*4}")
    a(f"s_mov_b32 s20, {MAGIC_G}")
    a("s_movk_i32 s21, 625")
    a(f"s_movk_i32 s28, {-S0}")
    a(f"s_movk_i32 s31, {-S1}")
    a("v_lshrrev_b32 v2, 6, v0")
    a("v_mov_b32 v3, 1")
    a("v_readfirstlane_b32 s22, v2")
    a("s_waitcnt lgkmcnt(0)")
    srd(a, 16, 6, 7, E * 4)
    a(f"v_cmp_gt_u32 vcc, {CH//8}, v0")
    a("s_mov_b64 exec, vcc")
    a(f"s_add_u32 s33, s3, {CH*2}")
    a("buffer_load_dwordx4 v[8:11], v1, s[16:19], s3 offen")
    a("buffer_load_dwordx4 v[12:15], v1, s[16:19], s33 offen")
    srd(a, 12, 4, 5, E * 4)
    a("buffer_load_dwordx4 v[16:19], v1, s[12:15], s3 offen")
    a("buffer_load_dwordx4 v[20:23], v1, s[12:15], s33 offen")
    srd(a, 24, 8, 9, WS_SZ)
    a("v_lshlrev_b32 v64, 21, v0")
    a("s_barrier")
    stamp()
    a("s_waitcnt vmcnt(2)")
    vD, vS, vBk, vAd, vRk, vRec, vT = 8, 16, 24, 32, 40, 48, 56
    for i in range(8): a(f"v_mul_u32_u24 v{vBk+i}, s20, v{vD+i}")
    for i in range(8): a(f"v_lshrrev_b32 v{vBk+i}, 23, v{vBk+i}")
    for i in range(8): a(f"v_mad_u32_u24 v{vRec+i}, v{vBk+i}, s21, 15")
    for i in range(8): a(f"v_lshrrev_b32 v{vRec+i}, 4, v{vRec+i}")
    for i in range(8): a(f"v_sub_u32 v{vRec+i}, v{vD+i}, v{vRec+i}")
    if S0 == 16 and S1 == 16:
        for i in range(8): a(f"v_lshrrev_b32 v{vT+i}, 4, v{vRec+i}")
        for i in range(8): a(f"v_and_b32 v{vRec+i}, 15, v{vRec+i}")
    else:
        for i in range(8): a(f"v_add_u32 v{vT+i}, {64 - S0}, v{vRec+i}")
        for i in range(8): a(f"v_add_u32 v{vAd+i}, {64 - S0 - S1}, v{vRec+i}")
        for i in range(8): a(f"v_lshrrev_b32 v{vT+i}, 6, v{vT+i}")
        for i in range(8): a(f"v_lshrrev_b32 v{vAd+i}, 6, v{vAd+i}")
        for i in range(8): a(f"v_mad_i32_i24 v{vRec+i}, v{vT+i}, s28, v{vRec+i}")
        for i in range(8): a(f"v_mad_i32_i24 v{vRec+i}, v{vAd+i}, s31, v{vRec+i}")
        for i in range(8): a(f"v_add_u32 v{vT+i}, v{vT+i}, v{vAd+i}")
    for i in range(8): a(f"v_lshl_add_u32 v{vBk+i}, v{vT+i}, 8, v{vBk+i}")
    a("s_waitcnt vmcnt(0)")
    stamp()
    a(f"s_movk_i32 s29, {6554}")
    for i in range(8): a(f"v_mul_u32_u24 v{vT+i}, s29, v{vS+i}")
    for i in range(8): a(f"v_lshrrev_b32 v{vT+i}, 24, v{vT+i}")
    for i in range(8): a(f"v_lshl_add_u32 v{vAd+i}, v{vBk+i}, 2, v{vT+i}")
    for i in range(8): a(f"v_lshlrev_b32 v{vAd+i}, 2, v{vAd+i}")
    for i in range(8): a(f"ds_add_rtn_u32 v{vRk+i}, v{vAd+i}, v3")
    for i in range(8): a(f"v_lshl_or_b32 v{vRec+i}, v{vRec+i}, 14, v{vS+i}")
    for i in range(8):
        a(f"s_mov_b32 s30, {((i & 3) + (CH // 2) * (i >> 2)) << 19:#x}")
        a(f"v_add3_u32 v{vRec+i}, v{vRec+i}, v64, s30")
    a("s_waitcnt lgkmcnt(0)")
    stamp()
    a("s_barrier")
    c0, p0 = 68, 76
    a("s_cmp_ge_u32 s22, 6")
    a("s_cbranch_scc1 P_scan1_done")
    a("v_lshlrev_b32 v2, 5, v0")
    a(f"ds_read_b128 v[{c0}:{c0+3}], v2 offset:{P_HIST}")
    a(f"ds_read_b128 v[{c0+4}:{c0+7}], v2 offset:{P_HIST+16}")
    a("s_waitcnt lgkmcnt(0)")
    a(f"v_mov_b32 v{p0}, 0")
    a(f"v_mov_b32 v{p0+1}, v{c0}")
    for k in range(2, 8): a(f"v_add_u32 v{p0+k}, v{p0+k-1}, v{c0+k-1}")
    a(f"v_add_u32 v84, v{p0+7}, v{c0+7}")
    a("v_mov_b32 v85, v84")
    wave_scan(a, 85)
    a("v_readlane_b32 s23, v85, 63")
    a("v_sub_u32 v85, v85, v84")
    a("s_lshl_b32 s30, s22, 2")
    a("v_mov_b32 v87, s30")
    a("v_mov_b32 v86, s23")
    a(f"ds_write_b32 v87, v86 offset:{P_TOT}")
    a("s_waitcnt lgkmcnt(0)")
    a("P_scan1_done:")
    a("s_barrier")
    a("s_cmp_ge_u32 s22, 6")
    a("s_cbranch_scc1 P_noscan")
    a("v_mov_b32 v87, 0")
    a(f"ds_read_b128 v[88:91], v87 offset:{P_TOT}")
    a(f"ds_read_b64 v[92:93], v87 offset:{P_TOT+16}")
    a("s_waitcnt lgkmcnt(0)")
    a("s_mov_b32 s30, 0")
    for k in range(5):
        a(f"v_readfirstlane_b32 s23, v{88+k}")
        a(f"s_cmp_gt_u32 s22, {k}")
        a("s_nop 1")
        a("s_cselect_b32 s23, s23, 0")
        a("s_add_u32 s30, s30, s23")
    a("v_add_u32 v85, s30, v85")
    for k in range(8): a(f"v_add_u32 v{p0+k}, v{p0+k}, v85")
    a(f"ds_write_b128 v2, v[{p0}:{p0+3}] offset:{P_START}")
    a(f"ds_write_b128 v2, v[{p0+4}:{p0+7}] offset:{P_START+16}")
    for b in range(2):
        cc = c0 + 4*b; pp = p0 + 4*b; o = 88 + 2*b
        a(f"v_add3_u32 v86, v{cc}, v{cc+1}, v{cc+2}")
        a(f"v_add_u32 v86, v86, v{cc+3}")
        a(f"v_lshl_or_b32 v{o}, v86, 16, v{pp}")
        for k in range(3): a(f"v_min_u32 v{cc+k}, 0xff, v{cc+k}")
        a(f"v_lshl_or_b32 v{o+1}, v{cc+1}, 8, v{cc}")
        a(f"v_lshl_or_b32 v{o+1}, v{cc+2}, 16, v{o+1}")
    a(f"s_mul_i32 s23, s2, {NB*8}")
    a("v_lshlrev_b32 v86, 4, v0")
    a(f"buffer_store_dwordx4 v[88:91], v86, s[24:27], s23 offen offset:{WS_T} {SFR}")
    a("s_waitcnt lgkmcnt(0)")
    a("P_noscan:")
    a("s_barrier")
    stamp()
    for i in range(8): a(f"ds_read_b32 v{vT+i}, v{vAd+i} offset:{P_START}")
    a("s_waitcnt lgkmcnt(0)")
    for i in range(8): a(f"v_add_lshl_u32 v{vT+i}, v{vT+i}, v{vRk+i}, 2")
    for i in range(8): a(f"ds_write_b32 v{vT+i}, v{vRec+i} offset:{P_SORT}")
    a("s_waitcnt lgkmcnt(0)")
    a("s_barrier")
    a(f"ds_read_b128 v[4:7], v1 offset:{P_SORT}")
    a(f"ds_read_b128 v[8:11], v1 offset:{P_SORT + CH*2}")
    a(f"s_add_u32 s3, s3, {WS_REC}")
    a(f"s_add_u32 s33, s3, {CH*2}")
    a("s_waitcnt lgkmcnt(1)")
    a(f"buffer_store_dwordx4 v[4:7], v1, s[24:27], s3 offen {SFR}")
    a("s_waitcnt lgkmcnt(0)")
    a(f"buffer_store_dwordx4 v[8:11], v1, s[24:27], s33 offen {SFR}")
    stamp()
    if dbg: a("s_waitcnt vmcnt(0)")
    dump(1)
    tl_end()
    a("s_endpgm")
    a("P_gemm:")
    nst[0] = 1
    a("s_load_dwordx2 s[4:5], s[0:1], 0")
    a("s_load_dwordx4 s[8:11], s[0:1], 32")
    a("s_load_dwordx2 s[34:35], s[0:1], 48")
    a("s_load_dwordx2 s[6:7], s[0:1], 72")
    a("v_lshrrev_b32 v2, 6, v0")
    a("v_and_b32 v1, 63, v0")
    a("v_readfirstlane_b32 s22, v2")
    a(f"s_sub_u32 s3, s2, {NCH}")
    a(f"s_cmp_ge_u32 s3, {P_NG}")
    a("s_cselect_b32 s36, 1, 0")
    a(f"s_cselect_b32 s37, {P_NG}, 0")
    a("s_sub_u32 s3, s3, s37")
    a("s_cmp_ge_u32 s22, 8")
    a("s_cbranch_scc1 P_pf" if (flag("epf") or flag("cpf")) else "s_cbranch_scc1 P_end")
    a("s_lshr_b32 s23, s22, 2")
    a("s_and_b32 s28, s22, 3")
    a("s_lshl_b32 s3, s3, 2")
    a("s_add_u32 s3, s3, s23")
    a("s_lshl_b32 s29, s3, 5")
    a("v_lshrrev_b32 v3, 4, v1")
    a("v_and_b32 v4, 15, v1")
    a("v_lshlrev_b32 v5, 2, v3")
    a("v_xor_b32 v5, v5, v4")
    a("v_lshlrev_b32 v5, 4, v5")
    a("v_lshl_add_u32 v5, v3, 8, v5")
    a("v_xor_b32 v4, v4, v3")
    a("v_lshlrev_b32 v7, 4, v4")
    a("v_mov_b32 v9, v7")
    a("s_waitcnt lgkmcnt(0)")
    sW1 = 44 if not dbg else 72
    a("s_cmp_eq_u32 s36, 0")
    a("s_cselect_b32 s30, 32768, 0")
    a(f"s_cselect_b32 s{sW1}, s10, s8\ns_cselect_b32 s{sW1+1}, s11, s9")
    a("s_add_u32 s16, s34, s30\ns_addc_u32 s17, s35, 0")
    a("s_and_b32 s17, s17, 0xffff")
    a("s_mov_b32 s18, 32768\ns_mov_b32 s19, 0x20000")
    a(f"s_and_b32 s{sW1+1}, s{sW1+1}, 0xffff")
    a(f"s_mov_b32 s{sW1+2}, 32768\ns_mov_b32 s{sW1+3}, 0x20000")
    srd(a, 12, 4, 5, N, stride=256)
    a("s_lshl_b32 s33, s22, 12")
    a("s_lshl_b32 s30, s28, 3")
    a("s_add_u32 s30, s30, s29")
    a(f"s_mul_i32 s31, s23, {XSLOT}")
    a(f"s_mul_i32 s37, s28, {2*XGRP}")
    a("s_add_u32 s31, s31, s37")
    def wdma(sr, lds):
        a(f"s_add_u32 m0, s33, {lds}")
        a("s_nop 0")
        for ii in range(4):
            a(f"buffer_load_dwordx4 v5, s[{sr}:{sr+3}], s33 offen offset:{ii*1024} lds")
    def xdma(ps):
        a("v_add_u32 v6, s30, v3")
        a("v_add_u32 v8, 4, v6")
        a(f"s_add_u32 m0, s31, {G_X + ps*2*XSLOT}")
        a("s_add_u32 s30, s30, 64")
        a("buffer_load_dwordx4 v[6:7], s[12:15], 0 idxen offen lds")
        a(f"s_add_u32 m0, s31, {G_X + ps*2*XSLOT + XGRP}")
        a("s_nop 0")
        a("buffer_load_dwordx4 v[8:9], s[12:15], 0 idxen offen lds")
    wdma(16, G_W0)
    xdma(0)
    wdma(sW1, G_W1)
    xdma(1)
    vE5, vH, vX0, vX1, vWt = 10, 11, 12, 13, 14
    a(f"v_and_b32 v{vE5}, 31, v1")
    a(f"v_lshrrev_b32 v{vH}, 5, v1")
    xfrag_addr(a, vX0, vX1, vE5, vH, 15, 16, 17)
    a(f"s_mul_i32 s30, s23, {XSLOT}")
    a(f"s_add_u32 s30, s30, {G_X}")
    a(f"v_add_u32 v{vX0}, s30, v{vX0}")
    a(f"v_add_u32 v{vX1}, s30, v{vX1}")
    a("v_lshrrev_b32 v15, 2, v1\nv_and_b32 v15, 3, v15")
    a("s_lshl_b32 s30, s28, 2")
    a("v_lshlrev_b32 v16, 2, v15")
    a("v_xor_b32 v16, s30, v16")
    a("v_lshrrev_b32 v17, 4, v1\nv_and_b32 v17, 1, v17")
    a("v_lshl_add_u32 v16, v17, 1, v16")
    a("v_lshrrev_b32 v17, 1, v1\nv_and_b32 v17, 1, v17")
    a("v_add_u32 v16, v16, v17")
    a("v_lshlrev_b32 v16, 4, v16")
    a("v_and_b32 v17, 1, v1")
    a("v_lshl_add_u32 v16, v17, 3, v16")
    a(f"v_lshl_add_u32 v15, v{vH}, 3, v15")
    a(f"v_lshl_add_u32 v{vWt}, v15, 8, v16")
    srd(a, 24, 6, 7, N * 512, add=WS_TAB)
    a("s_cmp_eq_u32 s36, 0")
    a("s_cbranch_scc1 P_g_bvsrd")
    srd(a, 24, 6, 7, N * 256, add=WS_XA)
    srd(a, 40 if not dbg else 64, 6, 7, N * 256, add=WS_XU)
    a("P_g_bvsrd:")
    sXU = 40 if not dbg else 64
    f0, f1, fX, d0, d1 = 32, 64, 96, 128, 144
    a("s_lshl_b32 s31, s22, 12")
    a(f"s_add_u32 s31, s31, {G_ST}")
    a(f"v_and_b32 v15, 7, v{vE5}")
    a(f"v_lshlrev_b32 v16, 1, v{vH}")
    a("v_xor_b32 v16, v16, v15")
    a("v_lshlrev_b32 v16, 4, v16")
    a(f"v_lshl_add_u32 v16, v{vE5}, 7, v16")
    a("v_add_u32 v16, s31, v16")
    a("v_lshrrev_b32 v20, 3, v1")
    a("v_and_b32 v21, 7, v1")
    a("v_xor_b32 v22, v21, v20")
    a("v_lshlrev_b32 v22, 4, v22")
    a("v_lshl_add_u32 v22, v20, 7, v22")
    a("v_add_u32 v22, s31, v22")
    a("v_add_u32 v20, s29, v20")
    a("v_lshlrev_b32 v20, 9, v20")
    a("v_lshl_add_u32 v20, v21, 4, v20")
    a("s_lshl_b32 s30, s28, 7")
    a("v_add_u32 v20, s30, v20")
    a(f"v_lshrrev_b32 v23, 2, v{vE5}")
    a("v_and_b32 v23, 3, v23")
    a("v_lshlrev_b32 v23, 4, v23")
    a(f"v_lshl_add_u32 v23, v{vE5}, 6, v23")
    a(f"v_lshl_add_u32 v23, v{vH}, 3, v23")
    a("v_add_u32 v23, s31, v23")
    a("v_lshrrev_b32 v24, 4, v1\nv_and_b32 v24, 3, v24")
    a("v_and_b32 v25, 3, v1")
    a("v_xor_b32 v24, v24, v25")
    a("v_lshlrev_b32 v24, 4, v24")
    a("v_lshrrev_b32 v26, 2, v1")
    a("v_lshl_add_u32 v24, v26, 6, v24")
    a("v_add_u32 v24, s31, v24")
    a("v_add_u32 v26, s29, v26")
    a("v_lshlrev_b32 v26, 8, v26")
    a("v_lshl_add_u32 v26, v25, 4, v26")
    a("s_lshl_b32 s30, s28, 6")
    a("v_add_u32 v26, s30, v26")
    stamp()
    a("s_waitcnt vmcnt(6)")
    stamp()
    a("s_barrier")
    stamp()
    def xreads(ps):
        for s_ in range(8):
            ad = vX0 if s_ % 2 == 0 else vX1
            a(f"ds_read_b128 v[{fX+4*s_}:{fX+4*s_+3}], v{ad} offset:{ps*2*XSLOT + (s_>>1)*64}")
    for s in range(8):
        for part in range(2):
            a(f"ds_read_b64_tr_b16 v[{f0+4*s+2*part}:{f0+4*s+2*part+1}], v{vWt} offset:{G_W0 + (16*s+4*part)*256}")
        if s == 5: a("s_waitcnt lgkmcnt(4)")
    a("s_waitcnt lgkmcnt(4)")
    xreads(0)
    a(f"s_mov_b32 s30, {NEG_LOG2E:#x}")
    for ps in range(2):
        if ps == 0:
            for s_ in range(8):
                if s_ % 2 == 0: a(f"s_waitcnt lgkmcnt({6 - s_})")
                a(mf(d0, f0 + 4*s_, fX + 4*s_, None if s_ == 0 else d0))
            a("s_waitcnt vmcnt(0)")
            a("s_barrier")
            for s_ in range(8):
                if s_ == 6: a("s_waitcnt lgkmcnt(8)")
                for part in range(2):
                    a(f"ds_read_b64_tr_b16 v[{f1+4*s_+2*part}:{f1+4*s_+2*part+1}], v{vWt} offset:{G_W1 + (16*s_+4*part)*256}")
            a("s_waitcnt lgkmcnt(0)")
        else:
            a("s_waitcnt lgkmcnt(0)")
            for s_ in range(8): a(mf(d0, f0 + 4*s_, fX + 4*s_, None if s_ == 0 else d0))
        for s_ in range(8):
            a(mf(d1, f1 + 4*s_, fX + 4*s_, None if s_ == 0 else d1))
        a("s_nop 3")
        for r in range(16): a(f"v_mul_f32 v{d0+r}, s30, v{d0+r}")
        for r in range(8): a(f"v_cvt_pk_bf16_f32 v{d0+r}, v{d0+2*r}, v{d0+2*r+1}")
        for r in range(8): a(f"v_cvt_pk_bf16_f32 v{d0+8+r}, v{d1+2*r}, v{d1+2*r+1}")
        a("s_cmp_eq_u32 s36, 0")
        a(f"s_cbranch_scc0 P_g_au{ps}")
        a(f"ds_write_b128 v16, v[{d0}:{d0+3}]")
        a("v_xor_b32 v17, 16, v16")
        a(f"ds_write_b128 v17, v[{d0+4}:{d0+7}]")
        a("v_xor_b32 v18, 64, v16")
        a(f"ds_write_b128 v18, v[{d0+8}:{d0+11}]")
        a("v_xor_b32 v19, 64, v17")
        a(f"ds_write_b128 v19, v[{d0+12}:{d0+15}]")
        for i in range(4):
            a(f"ds_read_b128 v[{d1+4*i}:{d1+4*i+3}], v22 offset:{i*1024}")
        if ps == 0:
            a("s_waitcnt lgkmcnt(4)")
            xreads(1)
        a(f"s_mov_b32 s33, {ps*64*512}")
        for i in range(4):
            a(f"s_waitcnt lgkmcnt({3-i + (8 if ps == 0 else 0)})")
            a(f"buffer_store_dwordx4 v[{d1+4*i}:{d1+4*i+3}], v20, s[24:27], s33 offen {SF}")
            if i < 3: a("s_add_u32 s33, s33, 4096")
        a(f"s_branch P_g_done{ps}")
        a(f"P_g_au{ps}:")
        for j in range(4):
            if j: a(f"v_xor_b32 v17, {16*j}, v23")
            ad = 23 if j == 0 else 17
            a(f"ds_write_b64 v{ad}, v[{d0+2*j}:{d0+2*j+1}]")
            a(f"ds_write_b64 v{ad}, v[{d0+8+2*j}:{d0+8+2*j+1}] offset:2048")
        for i in range(4):
            a(f"ds_read_b128 v[{d1+4*i}:{d1+4*i+3}], v24 offset:{i*1024}")
        if ps == 0:
            a("s_waitcnt lgkmcnt(4)")
            xreads(1)
        a(f"s_mov_b32 s33, {ps*64*256}")
        for i in range(4):
            a(f"s_waitcnt lgkmcnt({3-i + (8 if ps == 0 else 0)})")
            sr = 24 if i < 2 else sXU
            a(f"buffer_store_dwordx4 v[{d1+4*i}:{d1+4*i+3}], v26, s[{sr}:{sr+3}], s33 offen offset:0 {SF}")
            if i == 0: a("s_add_u32 s33, s33, 4096")
            if i == 1: a("s_sub_u32 s33, s33, 4096")
            if i == 2: a("s_add_u32 s33, s33, 4096")
        a(f"P_g_done{ps}:")
    stamp()
    if dbg: a("s_waitcnt vmcnt(0)")
    dump(2)
    tl_end()
    a("s_endpgm")
    if flag("cpf"):
        a("P_pf:")
        a("s_cmp_lg_u32 s22, 8")
        a("s_cbranch_scc1 P_end")
        a("s_getpc_b64 s[12:13]")
        a("P_pc:")
        a(f"s_add_u32 s12, s12, {KNAME}-P_pc")
        a("s_addc_u32 s13, s13, 0")
        a("v_lshlrev_b32 v2, 6, v1")
        a("v_mov_b32 v3, 0")
        a("v_mov_b32 v5, s13")
        a("v_add_co_u32 v4, vcc, s12, v2")
        a("v_addc_co_u32 v5, vcc, v5, v3, vcc")
        for i in range(3):
            if i == 2:
                a(f"s_mov_b32 s14, (M_last-{KNAME}-8192+64)>>6")
                a("v_cmp_gt_u32 vcc, s14, v1")
                a("s_mov_b64 exec, vcc")
                a("s_cbranch_execz P_pf_done")
            a(f"global_load_dword v{8+i}, v[4:5], off")
            if i < 2:
                a("v_add_co_u32 v4, vcc, 0x1000, v4")
                a("v_addc_co_u32 v5, vcc, v5, v3, vcc")
        a("P_pf_done:")
        a("s_waitcnt vmcnt(0)")
        a("s_endpgm")
    if flag("epf"):
        a("P_pf:")
        a("s_load_dwordx2 s[12:13], s[0:1], 8")
        a(f"s_sub_u32 s3, s2, {NCH}")
        a("s_lshl_b32 s3, s3, 1")
        a("s_add_u32 s3, s3, s22")
        a("s_sub_u32 s3, s3, 8")
        a("s_lshl_b32 s3, s3, 15")
        a("v_lshlrev_b32 v2, 4, v1")
        a("s_waitcnt lgkmcnt(0)")
        a("s_and_b32 s13, s13, 0xffff")
        a(f"s_mov_b32 s14, {E*32}")
        a("s_mov_b32 s15, 0x20000")
        for i in range(32):
            a(f"buffer_load_dwordx4 v[{8+4*(i%8)}:{11+4*(i%8)}], v2, s[12:15], s3 offen offset:{(i%4)*1024} {opt('epfflag', '')}")
            if i % 4 == 3: a("s_add_u32 s3, s3, 4096")
        a("s_endpgm")
    a("P_weights:")
    a("s_load_dwordx2 s[8:9], s[0:1], 48")
    a("s_load_dwordx2 s[10:11], s[0:1], 72")
    a("v_lshrrev_b32 v2, 6, v0")
    a("v_and_b32 v1, 63, v0")
    a("v_readfirstlane_b32 s3, v2")
    a("s_nop 0")
    a("s_cmp_ge_u32 s3, 4")
    a("s_cbranch_scc1 P_end")
    a("s_waitcnt lgkmcnt(0)")
    srd(a, 12, 8, 9, 272 * 256)
    a("s_lshl_b32 s28, s3, 6")
    a(f"s_add_u32 s28, s28, {256*256}")
    a("v_lshrrev_b32 v2, 5, v1")
    a("v_lshlrev_b32 v2, 11, v2")
    a("v_and_b32 v3, 31, v1")
    a("v_lshl_add_u32 v2, v3, 1, v2")
    for j in range(8):
        a(f"buffer_load_ushort v{8+j}, v2, s[12:15], s28 offen offset:{j*256}")
    srd(a, 16, 10, 11, WS_SZ)
    a("s_lshl_b32 s3, s3, 10")
    a(f"s_add_u32 s3, s3, {WS_W}")
    a("v_lshlrev_b32 v1, 4, v1")
    a(f"s_mov_b32 s29, {NEG_LOG2E:#x}")
    a("s_waitcnt vmcnt(0)")
    for j in range(8): a(f"v_lshlrev_b32 v{8+j}, 16, v{8+j}")
    for j in range(8): a(f"v_mul_f32 v{8+j}, s29, v{8+j}")
    for j in range(4): a(f"v_cvt_pk_bf16_f32 v{16+j}, v{8+2*j}, v{9+2*j}")
    a("buffer_store_dwordx4 v[16:19], v1, s[16:19], s3 offen")
    a("P_end:")
    a("s_endpgm")
    return a.text() + descriptor("prep_kernel", 160, 96 if flag("tl") else 80 if dbg else 48)

CAP = 640
NPAD = 128
L_GR = 0
L_XA = L_GR + 4 * 2 * 4096
L_ER = L_XA + 4096
L_OR = L_ER + 3 * 1024
L_LS = L_OR + 3 * 1024
LSZ = (CAP + NPAD) * 4
L_LE = L_LS + LSZ
L_LQ = L_LE + LSZ
M_LDS = (L_LQ + CAP + NPAD + 63) // 64 * 64
AGG_STRIDE = 528

vLANE, vE5, vH = 1, 2, 3
vG = 4
vEA, vO0, vT0, vT1 = 8, 9, 10, 11
vLs, vLe, vLq = 12, 13, 14
pG = 16
pE = 24
vQ, vOHa, vOHd = 26, 27, 28
vK = 29
vT = 32
vC, vXA, vI, vACC, vZ, vHV = 56, 60, 64, 72, 88, 104
vFX, vFH, vAE, vAO, vSO, vMSG, vXU = 120, 128, 136, 140, 144, 152, 160
NVGPR = 164
U_REC = 8

def main_kernel(dbg=False):
    a = A()
    nst = [0]
    def stamp():
        if not dbg: return
        a("s_waitcnt lgkmcnt(0)")
        a("s_memtime s[58:59]")
        a("s_waitcnt lgkmcnt(0)")
        a(f"s_mov_b32 s{64+nst[0]}, s58")
        nst[0] += 1
    PRIO = opt("prio", "pair")
    header(a, KNAME)
    a(f"s_cmp_ge_u32 s2, {NB}")
    a("s_cbranch_scc1 M_end")
    a("s_load_dwordx2 s[6:7], s[0:1], 8")
    a("s_load_dwordx2 s[8:9], s[0:1], 56")
    a("s_load_dwordx2 s[10:11], s[0:1], 72")
    if flag("tl"): a("s_memrealtime s[68:69]\ns_load_dwordx2 s[72:73], s[0:1], 64")
    if PRIO != "none": a("s_setprio 3")
    if dbg: a("s_memrealtime s[60:61]")
    stamp()
    t0, t1, t2, t3 = vT, vT + 1, vT + 2, vT + 3
    vTv = vT + 4
    a(f"v_lshrrev_b32 v{t0}, 6, v0")
    a(f"v_and_b32 v{vLANE}, 63, v0")
    a(f"v_readfirstlane_b32 s32, v{t0}")
    a(f"v_mul_u32_u24 v{t1}, {NB*8}, v{vLANE}")
    a("s_lshl_b32 s38, s2, 3")
    a("s_and_b32 s33, s2, 255")
    a("s_lshr_b32 s39, s2, 8")
    a("s_mul_i32 s33, s33, 625")
    a("s_add_u32 s34, s33, 640")
    a("s_add_u32 s33, s33, 15")
    a("s_lshr_b32 s33, s33, 4")
    a("s_lshr_b32 s34, s34, 4")
    a("s_sub_u32 s34, s34, s33")
    a(f"s_sub_u32 s34, s34, {S0 + S1}")
    a("s_cmp_eq_u32 s39, 1")
    a(f"s_cselect_b32 s34, {S1}, s34")
    a(f"s_cselect_b32 s42, {S0}, {S0 + S1}")
    a("s_cmp_eq_u32 s39, 0")
    a(f"s_cselect_b32 s34, {S0}, s34")
    a("s_cselect_b32 s42, 0, s42")
    a("s_add_u32 s33, s33, s42")
    a(f"v_and_b32 v{vE5}, 31, v{vLANE}")
    a(f"v_lshrrev_b32 v{vH}, 5, v{vLANE}")
    a("s_waitcnt lgkmcnt(0)")
    srd(a, 20, 10, 11, WS_SZ)
    a("s_cmp_lg_u32 s32, 0")
    a("s_cbranch_scc1 M_noT")
    a(f"buffer_load_dwordx2 v[{vTv}:{vTv+1}], v{t1}, s[20:23], s38 offen")
    a("M_noT:")
    srd(a, 24, 10, 11, N, stride=512, add=WS_TAB)
    NPF = 0
    srd(a, 16, 6, 7, E, stride=32)
    srd(a, 28, 8, 9, N * 256)
    srd(a, 12, 10, 11, N, stride=256, add=WS_XA)
    srd(a, 44, 10, 11, N * 256, add=WS_XU)
    a(f"v_lshrrev_b32 v{t0}, 4, v{vLANE}")
    a(f"v_and_b32 v{t1}, 7, v{vLANE}")
    a(f"v_xor_b32 v{t1}, v{t1}, v{t0}")
    a("s_lshl_b32 s38, s32, 7")
    a(f"v_lshl_add_u32 v{pG+1}, v{t1}, 4, s38")
    a(f"v_xor_b32 v{pG+3}, 64, v{pG+1}")
    a(f"v_mov_b32 v{pG+5}, v{pG+1}")
    a(f"v_mov_b32 v{pG+7}, v{pG+3}")
    a(f"v_lshrrev_b32 v{t0}, 1, v{vE5}")
    a(f"v_and_b32 v{t0}, 7, v{t0}")
    a(f"v_xor_b32 v{t0}, v{t0}, v{vH}")
    a(f"v_lshlrev_b32 v{t0}, 4, v{t0}")
    a(f"v_lshl_add_u32 v{t0}, v{vE5}, 7, v{t0}")
    a("s_lshl_b32 s40, s32, 13")
    a(f"v_add_u32 v{vG}, s40, v{t0}")
    for k in range(1, 4):
        a(f"v_xor_b32 v{vG+k}, {32*k}, v{vG}")
    a("s_lshl_b32 s41, s32, 8")
    a(f"s_add_u32 s41, s41, {L_ER}")
    a(f"v_lshlrev_b32 v{t1}, 5, v{vE5}")
    a(f"v_bfe_u32 v{t0}, v{vE5}, 3, 1")
    a(f"v_xor_b32 v{t0}, v{t0}, v{vH}")
    a(f"v_lshl_add_u32 v{t0}, v{t0}, 4, v{t1}")
    a(f"v_add_u32 v{vEA}, {L_ER}, v{t0}")
    a(f"v_lshl_add_u32 v{t0}, v{vH}, 4, v{t1}")
    a(f"v_add_u32 v{vO0}, {L_OR}, v{t0}")
    a(f"v_bfe_u32 v{t1}, v{vLANE}, 2, 2")
    a(f"v_lshl_add_u32 v{t1}, v{vH}, 2, v{t1}")
    a(f"v_and_b32 v{t0}, 3, v{vLANE}")
    a(f"v_lshlrev_b32 v{t0}, 3, v{t0}")
    a(f"v_lshl_add_u32 v{t0}, v{t1}, 5, v{t0}")
    a(f"v_add_u32 v{vT0}, {L_OR}, v{t0}")
    a("s_and_b32 s38, s32, 1")
    a(f"v_and_b32 v{t0}, 1, v{vLANE}")
    a(f"v_xor_b32 v{t0}, s38, v{t0}")
    a(f"v_lshlrev_b32 v{pE+1}, 4, v{t0}")
    a(f"v_and_b32 v{t0}, 7, v{vLANE}")
    a("s_lshl_b32 s38, s32, 3")
    a(f"v_add_u32 v{t0}, s38, v{t0}")
    a(f"v_lshlrev_b32 v{t1}, 5, v{t0}")
    a(f"v_bfe_u32 v{t2}, v{vLANE}, 3, 1")
    for k in range(3):
        s_set, s_clr = (k + 2) % 3, k
        a(f"v_mul_i32_i24 v{t3}, {(s_clr - s_set) * 1024}, v{t2}")
        a(f"v_add_u32 v{t3}, {s_set*1024 + L_OR}, v{t3}")
        a(f"v_add_u32 v{vK+k}, v{t3}, v{t1}")
    a(f"v_sub_u32 v{t3}, 1, v{t2}")
    a(f"v_mul_u32_u24 v{vOHd}, 0x3f80, v{t3}")
    vLq0 = vT + 22
    a(f"v_lshlrev_b32 v{t2}, 6, v{t2}")
    a(f"v_sub_u32 v{t0}, v{t0}, v{t2}")
    a(f"v_add_u32 v{vLq0}, {L_LQ + 64}, v{t0}")
    a(f"v_and_b32 v{t0}, 1, v{vE5}")
    a(f"v_lshlrev_b32 v{t0}, 4, v{t0}")
    a(f"v_mov_b32 v{t1}, 0x3f80")
    a(f"v_lshlrev_b32 v{t0}, v{t0}, v{t1}")
    a(f"v_bfe_u32 v{t1}, v{vE5}, 1, 1")
    a(f"v_lshrrev_b32 v{t2}, 2, v{vE5}")
    a(f"v_and_b32 v{t3}, 2, v{t2}")
    a(f"v_or_b32 v{t1}, v{t1}, v{t3}")
    a(f"v_and_b32 v{t2}, 1, v{t2}")
    a(f"v_lshl_add_u32 v{t1}, v{t2}, 2, v{t1}")
    a(f"v_lshrrev_b32 v{t2}, 4, v{vE5}")
    a(f"v_xor_b32 v{t2}, v{t2}, v{vH}")
    a(f"v_lshl_add_u32 v{t1}, v{t2}, 3, v{t1}")
    for g in range(2):
        pairs = ["vcc", "s[48:49]", "s[50:51]", "s[54:55]"]
        for k in range(4): a(f"v_cmp_eq_u32 {pairs[k]}, {4*g+k}, v{t1}")
        for k in range(4): a(f"v_cndmask_b32 v{vI+4*g+k}, 0, v{t0}, {pairs[k]}")
    for r in range(8):
        a(f"v_mov_b32 v{vACC+r}, 0")
    vRecI, vPos0, vCnt, vEb = vT + 4, vT + 5, vT + 6, vT + 7
    vc = vHV
    vp = vHV + 4
    tb = vZ
    L_TB = L_GR
    a("s_cmp_lg_u32 s32, 0")
    a("s_cbranch_scc1 M_scan_done")
    a(f"v_mul_u32_u24 v{t3}, {CH}, v{vLANE}")
    a(f"s_waitcnt vmcnt({NPF})")
    stamp()
    a(f"v_lshrrev_b32 v{t1}, 16, v{vTv}")
    a(f"v_and_b32 v{vc}, 0xff, v{vTv+1}")
    a(f"v_bfe_u32 v{vc+1}, v{vTv+1}, 8, 8")
    a(f"v_bfe_u32 v{vc+2}, v{vTv+1}, 16, 8")
    a(f"v_add3_u32 v{t0}, v{vc}, v{vc+1}, v{vc+2}")
    a(f"v_sub_u32 v{vc+3}, v{t1}, v{t0}")
    for k in range(4): a(f"v_mov_b32 v{vp+k}, v{vc+k}")
    a(f"v_and_b32 v{t2}, 0xffff, v{vTv}")
    for sh in (1, 2, 4, 8):
        for k in range(4):
            a(f"v_add_u32_dpp v{vp+k}, v{vp+k}, v{vp+k} row_shr:{sh} row_mask:0xf bank_mask:0xf bound_ctrl:1")
    for k in range(4): a(f"v_add_u32_dpp v{vp+k}, v{vp+k}, v{vp+k} row_bcast:15 row_mask:0xa bank_mask:0xf")
    for k in range(4): a(f"v_add_u32_dpp v{vp+k}, v{vp+k}, v{vp+k} row_bcast:31 row_mask:0xc bank_mask:0xf")
    a(f"v_add_u32 v{tb}, v{t3}, v{t2}")
    for k in range(4): a(f"v_readlane_b32 s{48+k}, v{vp+k}, 63")
    for k in range(1, 4): a(f"v_add_u32 v{tb+4*k}, v{tb+4*k-4}, v{vc+k-1}")
    a("s_add_u32 s49, s49, s48")
    a("s_add_u32 s50, s50, s49")
    a("s_add_u32 s35, s51, s50")
    for k in range(4): a(f"v_sub_u32 v{tb+4*k+1}, v{vp+k}, v{vc+k}")
    for k in range(1, 4): a(f"v_add_u32 v{tb+4*k+1}, s{47+k}, v{tb+4*k+1}")
    for k in range(4): a(f"v_mov_b32 v{tb+4*k+2}, v{vc+k}")
    for k in range(4): a(f"v_mov_b32 v{tb+4*k+3}, v{t3}")
    wa = vHV + 8
    a(f"v_and_b32 v{wa+1}, 3, v{tb}")
    a(f"v_and_b32 v{wa}, 0xfffffffc, v{tb}")
    a(f"v_lshlrev_b32 v{wa}, 2, v{wa}")
    a(f"v_lshrrev_b32 v{t1}, 16, v{vTv}")
    a(f"v_add_u32 v{wa+1}, v{wa+1}, v{t1}")
    a(f"v_cmp_lt_u32 vcc, 32, v{wa+1}")
    a(f"s_cmp_le_u32 s35, {CAP}")
    a("s_cselect_b32 s54, 1, 0")
    a("s_cmp_eq_u64 vcc, 0")
    a("s_cselect_b32 s54, s54, 0")
    a(f"v_lshlrev_b32 v{t0}, 6, v{vLANE}")
    a(f"v_lshlrev_b32 v{t3}, 3, v{vLANE}")
    a(f"v_mov_b32 v{wa+2}, s35")
    a(f"v_mov_b32 v{wa+3}, s54")
    a(f"v_mov_b32 v{t2}, {L_TB + 4096}")
    for k in range(4): a(f"ds_write_b128 v{t0}, v[{tb+4*k}:{tb+4*k+3}] offset:{L_TB+16*k}")
    a(f"ds_write_b64 v{t3}, v[{wa}:{wa+1}] offset:{L_TB + 4160}")
    a(f"ds_write_b64 v{t2}, v[{wa+2}:{wa+3}]")
    a("s_waitcnt lgkmcnt(0)")
    a("M_scan_done:")
    if dbg: nst[0] = 2
    a(f"v_lshlrev_b32 v{t0}, 4, v0")
    a(f"v_mov_b32 v{t2}, {L_TB + 4096}")
    a("s_barrier")
    wb = vHV
    a(f"ds_read_b128 v[{vRecI}:{vRecI+3}], v{t0} offset:{L_TB}")
    a(f"ds_read_b64 v[{wb+4}:{wb+5}], v{t2}")
    a(f"v_lshrrev_b32 v{t1}, 3, v{vLANE}")
    a("s_lshl_b32 s38, s32, 7")
    a(f"v_lshl_add_u32 v{t1}, v{t1}, 3, s38")
    a(f"ds_read_b64 v[{wb}:{wb+1}], v{t1} offset:{L_TB + 4160}")
    a(f"ds_read_b64 v[{wb+2}:{wb+3}], v{t1} offset:{L_TB + 4160 + 64}")
    a(f"v_and_b32 v{t3}, 7, v{vLANE}")
    a(f"v_lshlrev_b32 v{t3}, 2, v{t3}")
    a("s_waitcnt lgkmcnt(0)")
    a(f"v_readfirstlane_b32 s35, v{wb+4}")
    a(f"v_readfirstlane_b32 s54, v{wb+5}")
    stamp()
    def side_loads():
        b0 = vMSG
        a(f"v_lshlrev_b32 v{b0+2}, 4, v{vLANE}")
        a("s_lshl_b32 s42, s32, 10")
        a(f"s_add_u32 m0, s42, {L_XA}")
        a(f"s_add_u32 s42, s42, {WS_W}")
        a(f"buffer_load_dwordx4 v[{vC}:{vC+3}], v{b0+2}, s[20:23], s42 offen")
        a(f"v_lshrrev_b32 v{b0}, 4, v0")
        a(f"v_add_u32 v{b0}, s33, v{b0}")
        a(f"v_and_b32 v{b0+1}, 15, v0")
        a(f"v_lshlrev_b32 v{b0+1}, 4, v{b0+1}")
        a(f"buffer_load_dwordx4 v[{b0}:{b0+1}], s[12:15], 0 idxen offen lds")
    def xu_load():
        a(f"v_lshrrev_b32 v{vOHa}, 4, v0")
        a(f"v_add_u32 v{vOHa}, s33, v{vOHa}")
        a(f"v_lshlrev_b32 v{vOHa}, 8, v{vOHa}")
        a(f"v_and_b32 v{vXU}, 15, v0")
        a(f"v_lshl_add_u32 v{vOHa}, v{vXU}, 4, v{vOHa}")
        a(f"buffer_load_dwordx4 v[{vXU}:{vXU+3}], v{vOHa}, s[44:47], 0 offen")
    a("s_mov_b32 s36, 0")
    a("s_mov_b32 s43, 1")
    a("s_mov_b32 s53, 1")
    a("s_cmp_eq_u32 s35, 0")
    a("s_cbranch_scc1 M_empty")

    vXAa = vT + 23
    def pads_and_readers(tag):
        a("s_cmp_ge_u32 s32, 2")
        a(f"s_cbranch_scc1 M_pad_done{tag}")
        a(f"v_add_u32 v{t0}, s37, v0")
        a(f"v_mov_b32 v{t2}, 0xffffff")
        a(f"v_lshlrev_b32 v{t1}, 2, v{t0}")
        a(f"ds_write_b32 v{t1}, v{t2} offset:{L_LS}")
        a(f"ds_write_b32 v{t1}, v{t2} offset:{L_LE}")
        a(f"v_mov_b32 v{t2}, 15")
        a(f"ds_write_b8 v{t0}, v{t2} offset:{L_LQ}")
        a(f"M_pad_done{tag}:")
        a(f"v_lshrrev_b32 v{t0}, 3, v{vLANE}")
        a("s_lshl_b32 s38, s32, 5")
        a(f"v_lshlrev_b32 v{t0}, 2, v{t0}")
        a(f"s_add_u32 s38, s38, {L_LE}")
        a(f"v_bfe_u32 v{t1}, v{vLANE}, 1, 3")
        a(f"v_add_u32 v{vLs}, {L_LS}, v{t0}")
        a(f"v_lshl_add_u32 v{vLe}, v{t1}, 2, s38")
        a(f"v_mov_b32 v{vLq}, v{vLq0}")
    a(f"v_bfe_u32 v{t0}, v{vLANE}, 2, 2")
    a(f"v_bfe_u32 v{t1}, v{vLANE}, 4, 1")
    a(f"v_lshl_add_u32 v{t0}, v{vH}, 3, v{t0}")
    a(f"v_and_b32 v{t2}, 3, v{vLANE}")
    a(f"v_lshlrev_b32 v{t0}, 8, v{t0}")
    a("s_lshl_b32 s38, s32, 6")
    a(f"v_lshl_add_u32 v{t0}, v{t1}, 5, v{t0}")
    a(f"v_lshl_add_u32 v{t0}, v{t2}, 3, v{t0}")
    a(f"v_add_u32 v{vXAa}, s38, v{t0}")
    a("s_cmp_eq_u32 s54, 0")
    a("s_cbranch_scc1 M_batch")
    L_RW = L_GR + 8192
    a(f"s_mov_b32 s52, {WS_REC}")
    a("s_lshl_b32 s38, s32, 11")
    for i in range(2):
        a(f"v_cmp_lt_u32 vcc, v{t3}, v{wb+2*i+1}")
        a(f"v_lshl_add_u32 v{wb+2*i}, v{t3}, 2, v{wb+2*i}")
        a(f"s_add_u32 m0, s38, {L_RW + 1024*i}")
        a("s_mov_b64 exec, vcc")
        a(f"buffer_load_dwordx4 v{wb+2*i}, s[20:23], s52 offen lds")
        a("s_mov_b64 exec, -1")
    side_loads()
    NP2 = int(opt("tpf", "0"))
    if NP2:
        a("s_lshr_b32 s38, s2, 3")
        a(f"s_mul_i32 s38, s38, {8*NP2}")
        a(f"s_mul_i32 s39, s32, {2*NP2}")
        a("s_add_u32 s38, s38, s39")
        a(f"v_add_u32 v{vMSG+4}, s38, v{vH}")
        a(f"v_lshlrev_b32 v{vMSG+5}, 4, v{vE5}")
        a("s_lshr_b32 s39, s32, 1")
        a("s_lshl_b32 s39, s39, 13")
        a("s_and_b32 s38, s32, 1")
        a(f"s_mul_i32 s38, s38, {1024*NP2}")
        a("s_add_u32 s39, s39, s38")
        for i in range(NP2):
            a(f"s_add_u32 m0, s39, {L_GR + 20480 + 1024*i}")
            if i: a(f"v_add_u32 v{vMSG+4}, 2, v{vMSG+4}")
            else: a("s_nop 0")
            a(f"buffer_load_dwordx4 v[{vMSG+4}:{vMSG+5}], s[24:27], 0 idxen offen lds")
    a("s_mov_b32 s43, 0")
    z = vT + 10
    for k in range(4): a(f"v_mov_b32 v{z+k}, 0")
    a(f"v_lshlrev_b32 v{t0}, 4, v0")
    a(f"v_cmp_gt_u32 vcc, 192, v0")
    a("s_mov_b64 exec, vcc")
    a(f"ds_write_b128 v{t0}, v[{z}:{z+3}] offset:{L_OR}")
    a("s_mov_b64 exec, -1")
    a("s_mov_b32 s37, s35")
    vP4, vP1, vA = vT + 12, vT + 13, vT + 3
    vR = vT + 14
    a(f"v_lshrrev_b32 v{t0}, 2, v0")
    a(f"v_lshlrev_b32 v{t0}, 7, v{t0}")
    a(f"v_mov_b32_dpp v{t2}, v{vRecI} quad_perm:[0,0,0,0] row_mask:0xf bank_mask:0xf")
    a(f"v_and_b32 v{t2}, 0xfffffffc, v{t2}")
    a(f"v_sub_u32 v{t2}, v{vRecI}, v{t2}")
    a(f"v_lshl_add_u32 v{vA}, v{t2}, 2, v{t0}")
    a(f"v_mov_b32 v{vP1}, v{vPos0}")
    a(f"v_lshlrev_b32 v{vP4}, 2, v{vPos0}")
    pads_and_readers("f")
    a(f"s_waitcnt vmcnt({2 + NP2})")
    if dbg:
        a("s_memtime s[58:59]\ns_waitcnt lgkmcnt(0)\ns_mov_b32 s67, s58")
    a("M_fast_round:")
    for u in range(8): a(f"ds_read_b32 v{vR+u}, v{vA} offset:{L_RW + 4*u}")
    for u in range(8):
        a(f"v_cmp_lt_i32 vcc, {u}, v{vCnt}")
        a("s_mov_b64 exec, vcc")
        a("s_cbranch_execz M_fast_done")
        if u == 0: a("s_waitcnt lgkmcnt(0)")
        a(f"v_and_b32 v{t0}, 0x3fff, v{vR+u}")
        a(f"v_bfe_u32 v{t1}, v{vR+u}, 14, 5")
        a(f"v_lshrrev_b32 v{t2}, 19, v{vR+u}")
        a(f"v_add_u32 v{t2}, v{t2}, v{vEb}")
        if flag("exp_e"): a(f"v_and_b32 v{t2}, 0x3fff, v{t2}")
        if flag("exp_t"): a(f"v_and_b32 v{t0}, 0x7ff, v{t0}")
        a(f"ds_write_b32 v{vP4}, v{t0} offset:{L_LS + 4*u}")
        a(f"ds_write_b8 v{vP1}, v{t1} offset:{L_LQ + u}")
        a(f"ds_write_b32 v{vP4}, v{t2} offset:{L_LE + 4*u}")
    a("s_mov_b64 exec, -1")
    a(f"v_subrev_u32 v{vCnt}, 8, v{vCnt}")
    a(f"v_add_u32 v{vA}, 32, v{vA}")
    a(f"v_add_u32 v{vP4}, 32, v{vP4}")
    a(f"v_add_u32 v{vP1}, 8, v{vP1}")
    a(f"v_cmp_lt_i32 vcc, 0, v{vCnt}")
    a("s_cbranch_vccnz M_fast_round")
    a("M_fast_done:")
    a("s_mov_b64 exec, -1")
    hot = a.l
    a.l = []
    a("M_batch:")
    z = vT + 10
    for k in range(4): a(f"v_mov_b32 v{z+k}, 0")
    a(f"v_lshlrev_b32 v{t0}, 4, v0")
    a(f"v_cmp_gt_u32 vcc, 192, v0")
    a("s_mov_b64 exec, vcc")
    a(f"ds_write_b128 v{t0}, v[{z}:{z+3}] offset:{L_OR}")
    a("s_mov_b64 exec, -1")
    a("s_sub_u32 s37, s35, s36")
    a(f"s_min_u32 s37, s37, {CAP}")
    vJ, vRem, vRa, vP4, vP1 = vT + 10, vT + 11, vT + 3, vT + 12, vT + 13
    a(f"v_sub_u32 v{vJ}, s36, v{vPos0}")
    a(f"v_add_u32 v{vRem}, {CAP}, v{vJ}")
    a(f"v_max_i32 v{vJ}, 0, v{vJ}")
    a(f"v_min_i32 v{vRem}, v{vRem}, v{vCnt}")
    a(f"v_sub_u32 v{vRem}, v{vRem}, v{vJ}")
    a(f"v_add_lshl_u32 v{vRa}, v{vJ}, v{vRecI}, 2")
    a(f"v_add_u32 v{vP1}, v{vPos0}, v{vJ}")
    a(f"v_subrev_u32 v{vP1}, s36, v{vP1}")
    a(f"v_lshlrev_b32 v{vP4}, 2, v{vP1}")
    a(f"s_mov_b32 s52, {WS_REC}")
    vR = vT + 14
    a("M_round:")
    for half in range(2):
        a(f"v_cmp_lt_i32 vcc, {4*half}, v{vRem}")
        a("s_mov_b64 exec, vcc")
        a("s_cbranch_execz M_round_issued")
        a(f"buffer_load_dwordx4 v[{vR+4*half}:{vR+4*half+3}], v{vRa}, s[20:23], s52 offen offset:{16*half}")
    a("M_round_issued:")
    a("s_mov_b64 exec, -1")
    a("s_cmp_eq_u32 s43, 0")
    a("s_cbranch_scc1 M_round_w0")
    side_loads()
    a("s_mov_b32 s43, 0")
    a("s_waitcnt vmcnt(2)")
    a("s_branch M_round_proc")
    a("M_round_w0:")
    a("s_waitcnt vmcnt(0)")
    a("M_round_proc:")
    if dbg:
        a("s_memtime s[58:59]\ns_waitcnt lgkmcnt(0)\ns_mov_b32 s67, s58"); nst[0] = 4
    for u in range(8):
        a(f"v_cmp_lt_i32 vcc, {u}, v{vRem}")
        a("s_mov_b64 exec, vcc")
        a("s_cbranch_execz M_round_done")
        a(f"v_and_b32 v{t0}, 0x3fff, v{vR+u}")
        a(f"v_bfe_u32 v{t1}, v{vR+u}, 14, 5")
        a(f"v_lshrrev_b32 v{t2}, 19, v{vR+u}")
        a(f"v_add_u32 v{t2}, v{t2}, v{vEb}")
        if flag("exp_e"): a(f"v_and_b32 v{t2}, 0x3fff, v{t2}")
        if flag("exp_t"): a(f"v_and_b32 v{t0}, 0x7ff, v{t0}")
        a(f"ds_write_b32 v{vP4}, v{t0} offset:{L_LS + 4*u}")
        a(f"ds_write_b8 v{vP1}, v{t1} offset:{L_LQ + u}")
        a(f"ds_write_b32 v{vP4}, v{t2} offset:{L_LE + 4*u}")
    a("M_round_done:")
    a("s_mov_b64 exec, -1")
    a(f"v_subrev_u32 v{vRem}, 8, v{vRem}")
    a(f"v_add_u32 v{vRa}, 32, v{vRa}")
    a(f"v_add_u32 v{vP4}, 32, v{vP4}")
    a(f"v_add_u32 v{vP1}, 8, v{vP1}")
    a(f"v_cmp_lt_i32 vcc, 0, v{vRem}")
    a("s_cbranch_vccnz M_round")
    pads_and_readers("s")
    a("s_branch M_lists_done")
    cold = a.l
    a.l = hot
    a("M_lists_done:")
    a("s_waitcnt lgkmcnt(0)")
    a("s_barrier")
    stamp()
    def idx_reads(T):
        for q in range(4):
            a(f"ds_read_b32 v{pG+2*q}, v{vLs} offset:{128*T + 32*q}")
        a(f"ds_read_b32 v{pE}, v{vLe} offset:{128*T}")
    def dma_tile(gslot, eslot):
        for q in range(4):
            a(f"s_add_u32 m0, s40, {L_GR + gslot*4096 + q*1024}")
            a("s_nop 0")
            a(f"buffer_load_dwordx4 v[{pG+2*q}:{pG+2*q+1}], s[24:27], 0 idxen offen {opt('gflag', '').replace('_', ' ')} lds")
        a(f"s_add_u32 m0, s41, {eslot*1024}")
        a("s_mov_b64 exec, 0xffff")
        a(f"buffer_load_dwordx4 v[{pE}:{pE+1}], s[16:19], 0 idxen offen {opt('eflag', '').replace('_', ' ')} lds")
        a("s_mov_b64 exec, -1")
    def frag_reads(gs, es):
        a(f"ds_read_b128 v[{vFX}:{vFX+3}], v{vG} offset:{L_GR + gs*4096}")
        a(f"ds_read_b128 v[{vFX+4}:{vFX+7}], v{vG+1} offset:{L_GR + gs*4096}")
        a(f"ds_read_b128 v[{vAE}:{vAE+3}], v{vEA} offset:{es*1024}")
        a(f"ds_read_b128 v[{vAO}:{vAO+3}], v{vO0} offset:{es*1024}")
        a(f"ds_read_b128 v[{vFH}:{vFH+3}], v{vG+2} offset:{L_GR + gs*4096}")
        a(f"ds_read_b128 v[{vFH+4}:{vFH+7}], v{vG+3} offset:{L_GR + gs*4096}")
    idx_reads(0)
    a(f"v_subrev_u32 v{t0}, 64, v{vLq}")
    a(f"ds_read_u8 v{vQ}, v{t0}")
    a(f"ds_read_u8 v{vOHa}, v{t0} offset:32")
    a("s_waitcnt lgkmcnt(2)")
    dma_tile(0, 0)
    idx_reads(1)
    if flag("t1early"):
        a("s_waitcnt lgkmcnt(0)")
        dma_tile(1, 1)
    a("s_waitcnt lgkmcnt(5)")
    a(f"v_lshl_add_u32 v{vQ}, v{vQ}, 1, v{vK+1}")
    a(f"v_lshl_add_u32 v{vOHa}, v{vOHa}, 1, v{vK+2}")
    a("s_mov_b64 exec, 0xff")
    a(f"ds_write_b16 v{vQ}, v{vOHd}")
    a(f"ds_write_b16 v{vOHa}, v{vOHd}")
    a("s_mov_b64 exec, -1")
    T1E = flag("t1early")
    if T1E:
        a("s_waitcnt vmcnt(5) lgkmcnt(0)")
        a("s_barrier")
        frag_reads(0, 0)
        idx_reads(2)
    else:
        a("s_waitcnt vmcnt(0) lgkmcnt(0)")
        a("s_barrier")
        frag_reads(0, 0)
    a("s_cmp_lg_u32 s36, 0")
    a("s_cbranch_scc1 M_noxa")
    a(f"ds_read_b64_tr_b16 v[{vXA}:{vXA+1}], v{vXAa} offset:{L_XA}")
    a(f"ds_read_b64_tr_b16 v[{vXA+2}:{vXA+3}], v{vXAa} offset:{L_XA + 1024}")
    a("M_noxa:")
    if not T1E:
        dma_tile(1, 1)
        idx_reads(2)
    a("s_waitcnt lgkmcnt(0)")
    SPREAD = opt("spread", "1") != "0"
    LATE = {"0": [0, 1, 2, 3, 4], "1": [0, 1], "2": [], "3": [0]}[opt("spread", "1")]
    EARLY = [p for p in range(5) if p not in LATE]
    def dma_part(p, gslot, eslot, filler=None):
        if p < 4:
            a(f"s_add_u32 m0, s40, {L_GR + gslot*4096 + p*1024}")
            a(filler if filler else "s_nop 0")
            a(f"buffer_load_dwordx4 v[{pG+2*p}:{pG+2*p+1}], s[24:27], 0 idxen offen {opt('gflag', '').replace('_', ' ')} lds")
        else:
            a(f"s_add_u32 m0, s41, {eslot*1024}")
            a("s_mov_b64 exec, 0xffff")
            a(f"buffer_load_dwordx4 v[{pE}:{pE+1}], s[16:19], 0 idxen offen {opt('eflag', '').replace('_', ' ')} lds")
            a("s_mov_b64 exec, -1")
            if filler: a(filler)
    for p in LATE: dma_part(p, 0, 2)
    stamp()
    if dbg: a("s_memrealtime s[72:73]\ns_waitcnt lgkmcnt(0)")
    a("s_add_u32 s37, s37, 31")
    a("s_lshr_b32 s37, s37, 5")
    def chain(z, h):
        return [mf(z, vFX, vI, None), mf(z, vFX + 4, vI + 4, z), mf(z, vAE, vC, z), mf(z, vAO, vXA, z),
                mf(h, vFH, vI, None), mf(h, vFH + 4, vI + 4, h)]
    nlab = [0]
    def prio(p):
        if PRIO == "pair": a(f"s_setprio {p}")
        if PRIO == "pairbal":
            nlab[0] += 1
            a(f"s_setprio {p}")
            a(f"s_cbranch_vccz M_pr{nlab[0]}")
            a(f"s_setprio {p + 2}")
            a(f"M_pr{nlab[0]}:")
    if flag("tl"): a("s_memrealtime s[84:85]\ns_waitcnt lgkmcnt(0)")
    a("M_loop:")
    loop_start = len(a.l)
    for k in range(6):
        es = k % 3; es1 = (k + 1) % 3; gs1 = (k + 1) % 2
        gs2 = k % 2; es2 = (k + 2) % 3
        z, h = vZ, vHV
        a.c(f"---- position {k}: e/one-hot slot {es} ----")
        if PRIO == "bal" and k % 2 == 0:
            a(f"s_cmp_ge_u32 s37, 9\ns_cbranch_scc1 M_prio_done{k}\ns_setprio 2\ns_cmp_ge_u32 s37, 5\ns_cbranch_scc1 M_prio_done{k}\ns_setprio 1\ns_cmp_ge_u32 s37, 2\ns_cbranch_scc1 M_prio_done{k}\ns_setprio 0\nM_prio_done{k}:")
        if PRIO == "pairbal":
            a(f"s_cmp_gt_u32 s37, {opt('X', '4')}")
            a("s_cselect_b64 vcc, -1, 0")
        early = list(EARLY)
        ch = chain(z, h)
        SKIP = flag("skip")
        nsk = [0]
        def guarded(cond, fn):
            if not SKIP: fn(); return
            nsk[0] += 1
            a(f"s_cmp_lt_u32 s37, {cond}")
            a(f"s_cbranch_scc1 M_sk{k}_{cond}_{nsk[0]}")
            fn()
            a(f"M_sk{k}_{cond}_{nsk[0]}:")
        _dp = dma_part
        def dma_early(p): guarded(3, lambda: _dp(p, gs2, es2))
        if len(early) <= 3:
            if early: dma_early(early.pop(0))
            a("s_waitcnt lgkmcnt(0)")
            for s_ in range(2):
                a(f"ds_read_b64_tr_b16 v[{vSO+4*s_}:{vSO+4*s_+1}], v{vT0} offset:{es*1024 + s_*512}")
                a(f"ds_read_b64_tr_b16 v[{vSO+4*s_+2}:{vSO+4*s_+3}], v{vT0} offset:{es*1024 + s_*512 + 256}")
            for x in ch[0:4]: a(x)
            if early: dma_early(early.pop(0))
            for x in ch[4:6]: a(x)
            while early: dma_early(early.pop(0))
        else:
            a("s_waitcnt lgkmcnt(0)")
            for s_ in range(2):
                a(f"ds_read_b64_tr_b16 v[{vSO+4*s_}:{vSO+4*s_+1}], v{vT0} offset:{es*1024 + s_*512}")
                a(f"ds_read_b64_tr_b16 v[{vSO+4*s_+2}:{vSO+4*s_+3}], v{vT0} offset:{es*1024 + s_*512 + 256}")
            for j, x in enumerate(ch):
                a(x)
                if early and j < 5: dma_part(early.pop(0), gs2, es2)
            while early: dma_part(early.pop(0), gs2, es2)
        if SKIP:
            a("s_cmp_lt_u32 s37, 3")
            a(f"s_cbranch_scc1 M_w0_{k}")
            a("s_waitcnt vmcnt(5) lgkmcnt(0)")
            a(f"s_branch M_w1_{k}")
            a(f"M_w0_{k}:")
            a("s_waitcnt vmcnt(0) lgkmcnt(0)")
            a(f"M_w1_{k}:")
        else:
            a("s_waitcnt vmcnt(5) lgkmcnt(0)")
        a("s_barrier")
        frag_reads(gs1, es1)
        T3 = k + 3
        for q in range(4):
            a(f"ds_read_b32 v{pG+2*q}, v{vLs} offset:{128*T3 + 32*q}")
        a(f"ds_read_b32 v{pE}, v{vLe} offset:{128*T3}")
        a(f"ds_read_u8 v{vQ}, v{vLq} offset:{32*k}")
        if k == 1:
            a("s_cmp_eq_u32 s53, 0")
            a("s_cbranch_scc1 M_xu_done")
            xu_load()
            a("s_mov_b32 s53, 0")
            a("M_xu_done:")
        ex = [f"v_exp_f32 v{z+r}, v{z+r}" for r in range(16)]
        ad = [f"v_add_f32 v{z+r}, 1.0, v{z+r}" for r in range(16)]
        rc = [f"v_rcp_f32 v{z+r}, v{z+r}" for r in range(16)]
        mu = [f"v_mul_f32 v{z+r}, v{z+r}, v{h+r}" for r in range(16)]
        cv = [f"v_cvt_pk_bf16_f32 v{vMSG+r}, v{z+2*r}, v{z+2*r+1}" for r in range(8)]
        for x in ex: a(x)
        prio(0)
        for x in ad: a(x)
        prio(1)
        a("s_waitcnt lgkmcnt(0)")
        late = list(LATE)
        pos = {5: [0, 3, 6, 9, 12], 2: [1, 9], 1: [4], 0: []}[len(late)]
        r0 = 0
        for p, at in zip(late, pos):
            for x in rc[r0:at]: a(x)
            if SKIP:
                a(rc[at])
                guarded(4, lambda: _dp(p, gs1, es))
            else:
                dma_part(p, gs1, es, rc[at])
            r0 = at + 1
        for x in rc[r0:16]: a(x)
        a(f"v_lshl_add_u32 v{vOHa}, v{vQ}, 1, v{vK+es}")
        a("s_mov_b64 exec, 0xffff")
        a(f"ds_write_b16 v{vOHa}, v{vOHd}")
        a("s_mov_b64 exec, -1")
        prio(0)
        for x in mu: a(x)
        prio(1)
        for x in cv: a(x)
        a("s_sub_u32 s37, s37, 1")
        a(mf(vACC, vSO, vMSG, vACC))
        a(mf(vACC, vSO + 4, vMSG + 4, vACC))
        a("s_cmp_eq_u32 s37, 0")
        a("s_cbranch_scc1 M_loop_done")
    a(f"v_add_u32 v{vLs}, {128*6}, v{vLs}")
    a(f"v_add_u32 v{vLe}, {128*6}, v{vLe}")
    a(f"v_add_u32 v{vLq}, {32*6}, v{vLq}")
    a("s_branch M_loop")
    abl = [x[6:] for x in ARGS if x.startswith("--abl_")]
    if abl:
        body = a.l[loop_start:]
        def drop(l):
            t = l.strip()
            if "dma" in abl and t.startswith("buffer_load") and " lds" in t: return True
            if "valu" in abl and t.startswith(("v_exp", "v_add_f32", "v_rcp", "v_mul_f32", "v_cvt_pk")): return True
            if "mfma" in abl and t.startswith("v_mfma"): return True
            if "bar" in abl and t.startswith("s_barrier"): return True
            if "frag" in abl and t.startswith("ds_read_b128"): return True
            if "tr" in abl and t.startswith("ds_read_b64_tr"): return True
            if "idx" in abl and t.startswith(("ds_read_b32", "ds_read_u8")): return True
            if "oh" in abl and t.startswith("ds_write_b16"): return True
            if "dmae" in abl and t.startswith("buffer_load") and "s[16:19]" in t: return True
            if "dmag" in abl and t.startswith("buffer_load") and "s[24:27]" in t: return True
            return False
        body = [l for l in body if not drop(l)]
        if "vmw" in abl: body = [l.replace("vmcnt(5) ", "") for l in body]
        a.l[loop_start:] = body
    a("M_loop_done:")
    if flag("tl"): a("s_memrealtime s[86:87]\ns_waitcnt lgkmcnt(0)")
    stamp()
    if dbg: a("s_memrealtime s[74:75]\ns_waitcnt lgkmcnt(0)")
    a("s_cmp_eq_u32 s53, 0")
    a("s_cbranch_scc1 M_xu_done2")
    xu_load()
    a("s_mov_b32 s53, 0")
    a("M_xu_done2:")
    a("s_waitcnt vmcnt(0) lgkmcnt(0)")
    a("s_barrier")
    a(f"s_add_u32 s36, s36, {CAP}")
    a("s_cmp_lt_u32 s36, s35")
    a("s_cbranch_scc1 M_batch")
    hot = a.l
    a.l = cold
    a("M_empty:")
    xu_load()
    a("s_waitcnt vmcnt(0)")
    a("s_branch M_epilogue")
    cold = a.l
    a.l = hot
    a("M_epilogue:")
    a(f"v_mul_u32_u24 v{t0}, {4*AGG_STRIDE}, v{vH}")
    a(f"v_lshl_add_u32 v{t0}, v{vE5}, 2, v{t0}")
    a("s_lshl_b32 s39, s32, 7")
    a(f"v_add_u32 v{t0}, s39, v{t0}")
    a("s_nop 7")
    for r in range(8):
        a(f"ds_write_b32 v{t0}, v{vACC+r} offset:{L_GR + (8*(r >> 2) + (r & 3))*AGG_STRIDE}")
    a(f"v_lshrrev_b32 v{t0}, 4, v0")
    a(f"v_and_b32 v{t1}, 15, v0")
    a(f"v_mul_u32_u24 v{t2}, {AGG_STRIDE}, v{t0}")
    a(f"v_lshl_add_u32 v{t2}, v{t1}, 5, v{t2}")
    a(f"v_add_u32 v{t3}, s33, v{t0}")
    a(f"v_lshlrev_b32 v{t3}, 8, v{t3}")
    a(f"v_lshl_add_u32 v{t3}, v{t1}, 4, v{t3}")
    a(f"s_mov_b32 s38, {NEG_LOG2E:#x}")
    a("s_waitcnt lgkmcnt(0)")
    a("s_barrier")
    y = vZ; w_ = vHV
    a(f"ds_read_b128 v[{y}:{y+3}], v{t2} offset:{L_GR}")
    a(f"ds_read_b128 v[{y+4}:{y+7}], v{t2} offset:{L_GR + 16}")
    for i in range(4):
        a(f"v_lshlrev_b32 v{w_+2*i}, 16, v{vXU+i}")
        a(f"v_and_b32 v{w_+2*i+1}, 0xffff0000, v{vXU+i}")
    a("s_waitcnt lgkmcnt(0)")
    for r in range(8): a(f"v_add_f32 v{y+r}, v{y+r}, v{w_+r}")
    for r in range(8): a(f"v_mul_f32 v{w_+r}, s38, v{y+r}")
    for r in range(8): a(f"v_exp_f32 v{w_+r}, v{w_+r}")
    for r in range(8): a(f"v_add_f32 v{w_+r}, 1.0, v{w_+r}")
    for r in range(8): a(f"v_rcp_f32 v{w_+r}, v{w_+r}")
    a("s_nop 0")
    for r in range(8): a(f"v_mul_f32 v{y+r}, v{y+r}, v{w_+r}")
    for r in range(4): a(f"v_cvt_pk_bf16_f32 v{vMSG+r}, v{y+2*r}, v{y+2*r+1}")
    if dbg:
        stamp()
        a("s_memrealtime s[62:63]\ns_waitcnt lgkmcnt(0)")
        a("s_mov_b32 s52, s10\ns_and_b32 s53, s11, 0xffff\ns_mov_b32 s54, 0x1000000\ns_mov_b32 s55, 0x20000")
        a(f"s_lshl_b32 s56, s2, 2\ns_add_u32 s56, s56, s32\ns_lshl_b32 s56, s56, 6\ns_add_u32 s56, s56, {DBG2:#x}")
        vals = [64, 65, 66, 67, 68, 69, 70, 71, 60, 62, 35, 72, 74]
        a("s_mov_b64 s[50:51], exec\ns_mov_b64 exec, 1")
        for i, r in enumerate(vals):
            a(f"v_mov_b32 v{vT+20}, s{r}")
            a(f"v_mov_b32 v{vT+21}, 0")
            a(f"buffer_store_dword v{vT+20}, v{vT+21}, s[52:55], s56 offen offset:{4*i}")
        a("s_mov_b64 exec, s[50:51]")
    if flag("tl"):
        a("s_memrealtime s[70:71]\ns_waitcnt lgkmcnt(0)")
        a("s_mov_b32 s76, s10\ns_and_b32 s77, s11, 0xffff\ns_mov_b32 s78, 0x1000000\ns_mov_b32 s79, 0x20000")
        a(f"s_lshl_b32 s75, s2, 2\ns_add_u32 s75, s75, s32\ns_lshl_b32 s75, s75, 4\ns_add_u32 s75, s75, {DBG2:#x}")
        a("s_mov_b64 s[80:81], exec\ns_mov_b64 exec, 1")
        a(f"v_mov_b32 v{vT+18}, s68\nv_mov_b32 v{vT+19}, s70\nv_mov_b32 v{vT+20}, s84\nv_mov_b32 v{vT+21}, s86\nv_mov_b32 v{vT+22}, 0")
        a(f"buffer_store_dwordx4 v[{vT+18}:{vT+21}], v{vT+22}, s[76:79], s75 offen")
        a("s_mov_b64 exec, s[80:81]")
    a(f"v_cmp_gt_u32 vcc, s34, v{t0}")
    a("s_mov_b64 exec, vcc")
    a("s_cbranch_execz M_end")
    a(f"buffer_store_dwordx4 v[{vMSG}:{vMSG+3}], v{t3}, s[28:31], 0 offen {opt('oflag', '').replace('_', ' ')}")
    a("M_end:")
    a("s_endpgm")
    a.l += cold
    a("M_last:")
    return a.text() + descriptor(KNAME, NVGPR, 96 if (dbg or flag("tl")) else 56)

HEAD = f"""; Edge-gated message passing (gated graph conv) for gfx950.
;                 [-log2e * x@B | x@V], -log2e * x@A, x@U; C fragments in MFMA layout
;   main kernel : per bucket of 13/14 destination nodes: gather node-table rows and e_attr rows into LDS,
;                 gate pre-activation on the matrix cores, sigmoid gate, one-hot segment sum, silu
; @launch kernel=prep_kernel grid=({P_GRID},1,1) block=({P_BLOCK},1,1) lds={P_LDS}
; @launch kernel={KNAME} grid=({NB},1,1) block=(256,1,1) lds={M_LDS}
.amdgcn_target "amdgcn-amd-amdhsa--gfx950"
.text
"""

def tl_kernel():
    a = A()
    header(a, "tl_kernel")
    a("s_cmp_ge_u32 s2, 1\ns_cbranch_scc1 T_end")
    a("s_load_dwordx4 s[4:7], s[0:1], 64\ns_waitcnt lgkmcnt(0)")
    a("s_mov_b32 s8, s4\ns_and_b32 s9, s5, 0xffff\ns_mov_b32 s10, 256\ns_mov_b32 s11, 0x20000")
    a("s_mov_b32 s12, s6\ns_and_b32 s13, s7, 0xffff\ns_mov_b32 s14, 0x1000000\ns_mov_b32 s15, 0x20000")
    a("v_mov_b32 v10, 0")
    a(f"v_lshlrev_b32 v1, 6, v0\nv_add_u32 v1, {DBG2}, v1")
    a("v_cmp_gt_u32 vcc, 768, v0\ns_mov_b64 exec, vcc")
    a("buffer_load_dwordx4 v[4:7], v1, s[12:15], 0 offen\ns_waitcnt vmcnt(0)")
    a("v_not_b32 v8, v4\nbuffer_atomic_umax v8, v10, s[8:11], 0 offen offset:0")
    a("buffer_atomic_umax v4, v10, s[8:11], 0 offen offset:4")
    a("buffer_atomic_umax v5, v10, s[8:11], 0 offen offset:8")
    a("v_not_b32 v8, v6\nbuffer_atomic_umax v8, v10, s[8:11], 0 offen offset:12")
    a("buffer_atomic_umax v6, v10, s[8:11], 0 offen offset:16")
    a("v_not_b32 v8, v7\nbuffer_atomic_umax v8, v10, s[8:11], 0 offen offset:20")
    a("buffer_atomic_umax v7, v10, s[8:11], 0 offen offset:24")
    a("s_mov_b64 exec, -1")
    a(f"v_lshlrev_b32 v1, 7, v0\nv_add_u32 v1, {DBG1}, v1")
    a(f"v_cmp_gt_u32 vcc, {NCH + 2*P_NG}, v0\ns_mov_b64 exec, vcc")
    a("s_cbranch_execz T_end")
    a("buffer_load_dwordx2 v[4:5], v1, s[12:15], 0 offen\ns_waitcnt vmcnt(0)")
    a("v_not_b32 v8, v4\nbuffer_atomic_umax v8, v10, s[8:11], 0 offen offset:28")
    a("buffer_atomic_umax v5, v10, s[8:11], 0 offen offset:32")
    a(f"v_cmp_gt_u32 vcc, {NCH}, v0\ns_mov_b64 exec, vcc")
    a("s_cbranch_execz T_end")
    a("buffer_atomic_umax v5, v10, s[8:11], 0 offen offset:36")
    a("T_end:\ns_endpgm")
    return a.text() + descriptor("tl_kernel", 16, 32)

def build(dbg=False):
    h = HEAD
    if flag("tl"):
        h = h.replace(".amdgcn_target", "; @launch kernel=tl_kernel grid=(1,1,1) block=(1024,1,1) lds=0\n.amdgcn_target")
    return h + prep_kernel(dbg) + main_kernel(dbg) + (tl_kernel() if flag("tl") else "")

if __name__ == "__main__":
    args = [x for x in ARGS if not x.startswith("--")]
    out = args[0] if args else "gather_scatter__edge_featured_mpnn_egc__graph.s"
    open(out, "w").write(build(dbg=flag("dbg")))
    print("wrote", out, "M_LDS", M_LDS, "P_LDS", P_LDS)
```

```python
import sys

N = 10000; E = 320000
NB = 768
NCH = 64; CH = 5000
MAGIC_G = 214749
WS_T = 0
WS_W = 0x60000
WS_REC = 0x80000
MAGIC_R = 6554
WS_SZ = 0x200000
WS_TAB = 0x200000
WS_XA = 0x700000
WS_XU = 0x980000
DBG2, DBG1 = 0xC00000, 0xE00000
NEG_LOG2E = 0xBFB8AA3B
KNAME = "gather_scatter__edge_featured_mpnn_egc__graph_kernel"
ARGS = sys.argv[1:]
def flag(n): return ("--" + n) in ARGS
def opt(n, d):
    for x in ARGS:
        if x.startswith("--" + n + "="): return x.split("=", 1)[1]
    return d

S0 = int(opt('s0', '16')); S1 = int(opt('s1', '13'))
assert S0 <= 16 and S1 <= 16 and 40 - S0 - S1 <= 16

class A:
    def __init__(self):
        self.l = []
    def __call__(self, s=""):
        for x in s.split("\n"):
            x = x.strip()
            if not x: continue
            if x.endswith(":"):
                self.l.append(x)
            else:
                self.l.append("    " + x)
    def c(self, s):
        self.l.append("    ; " + s)
    def raw(self, s):
        self.l.append(s)
    def text(self):
        return "\n".join(self.l) + "\n"

def srd(a, r, lo, hi, size, stride=0, add=0):
    if add:
        a(f"s_add_u32 s{r}, s{lo}, {add:#x}")
        a(f"s_addc_u32 s{r+1}, s{hi}, 0")
        a(f"s_and_b32 s{r+1}, s{r+1}, 0xffff")
    else:
        a(f"s_mov_b32 s{r}, s{lo}")
        a(f"s_and_b32 s{r+1}, s{hi}, 0xffff")
    if stride:
        a(f"s_or_b32 s{r+1}, s{r+1}, {stride << 16:#x}")
    a(f"s_mov_b32 s{r+2}, {size:#x}")
    a(f"s_mov_b32 s{r+3}, 0x20000")

def wave_scan(a, v):
    for sh in (1, 2, 4, 8):
        a("s_nop 1")
        a(f"v_add_u32_dpp v{v}, v{v}, v{v} row_shr:{sh} row_mask:0xf bank_mask:0xf bound_ctrl:1")
    a("s_nop 1")
    a(f"v_add_u32_dpp v{v}, v{v}, v{v} row_bcast:15 row_mask:0xa bank_mask:0xf")
    a("s_nop 1")
    a(f"v_add_u32_dpp v{v}, v{v}, v{v} row_bcast:31 row_mask:0xc bank_mask:0xf")
    a("s_nop 1")

def header(a, name):
    a.raw(f".globl {name}")
    a.raw(".p2align 8")
    a.raw(f".type {name},@function")
    a.raw(f"{name}:")

def descriptor(name, vgpr, sgpr):
    acc = (vgpr + 3) // 4 * 4
    return f""".section .rodata,"a"
.p2align 6
.amdhsa_kernel {name}
  .amdhsa_next_free_vgpr {vgpr}
  .amdhsa_next_free_sgpr {sgpr}
  .amdhsa_accum_offset {acc}
  .amdhsa_group_segment_fixed_size 0
  .amdhsa_kernarg_size 80
  .amdhsa_user_sgpr_count 2
  .amdhsa_user_sgpr_kernarg_segment_ptr 1
  .amdhsa_system_sgpr_workgroup_id_x 1
  .amdhsa_float_denorm_mode_32 3
.end_amdhsa_kernel
.text
"""

def mf(d, x, y, c):
    cs = "0" if c is None else f"v[{c}:{c+15}]"
    return f"v_mfma_f32_32x32x16_bf16 v[{d}:{d+15}], v[{x}:{x+3}], v[{y}:{y+3}], {cs}"

XGRP = 1088
XSLOT = 8 * XGRP

def xfrag_addr(a, d0, d1, row, h, t0, t1, t2):
    a(f"v_lshrrev_b32 v{t0}, 2, v{row}")
    a(f"v_mul_u32_u24 v{t0}, {XGRP}, v{t0}")
    a(f"v_and_b32 v{t1}, 3, v{row}")
    a(f"v_lshl_add_u32 v{t0}, v{t1}, 8, v{t0}")
    a(f"v_xor_b32 v{t2}, v{h}, v{t1}")
    a(f"v_lshl_add_u32 v{d0}, v{t2}, 4, v{t0}")
    a(f"v_xor_b32 v{t2}, 2, v{t2}")
    a(f"v_lshl_add_u32 v{d1}, v{t2}, 4, v{t0}")

P_BLOCK = 640
P_NG = 79
P_GRID = NCH + 2 * P_NG + 1
P_HIST, P_START, P_TOT, P_SORT = 0, 12288, 24576, 24640
G_W0, G_W1, G_X = 0, 32768, 65536
G_ST = G_X + 4 * XSLOT
P_LDS = G_ST + 8 * 4096

def prep_kernel(dbg=False):
    SF = opt("sflag", "").replace("_", " ")
    SFR = opt("rflag", opt("sflag", "")).replace("_", " ")
    a = A()
    nst = [0]
    def stamp():
        if not dbg: return
        a("s_waitcnt lgkmcnt(0)\ns_memtime s[40:41]\ns_waitcnt lgkmcnt(0)")
        a(f"s_mov_b32 s{50+nst[0]}, s40")
        nst[0] += 1
    def dump(role):
        if not dbg: return
        while nst[0] < 8: stamp()
        a("s_memrealtime s[46:47]\ns_load_dwordx2 s[42:43], s[0:1], 72\ns_waitcnt lgkmcnt(0)")
        a("s_mov_b32 s60, s42\ns_and_b32 s61, s43, 0xffff\ns_mov_b32 s62, 0x1000000\ns_mov_b32 s63, 0x20000")
        a("v_lshrrev_b32 v158, 6, v0\ns_nop 0\nv_readfirstlane_b32 s48, v158\ns_nop 3")
        a(f"s_lshl_b32 s49, s2, 4\ns_add_u32 s49, s49, s48\ns_lshl_b32 s49, s49, 6\ns_add_u32 s49, s49, {DBG1:#x}")
        a("s_mov_b64 exec, 1")
        for i, r in enumerate([50,51,52,53,54,55,56,57,44,46]):
            a(f"v_mov_b32 v158, s{r}\nv_mov_b32 v159, 0\nbuffer_store_dword v158, v159, s[60:63], s49 offen offset:{4*i}")
        a(f"v_mov_b32 v158, {role}\nv_mov_b32 v159, 0\nbuffer_store_dword v158, v159, s[60:63], s49 offen offset:40")
        nst[0] = 0
    TL = flag("tl")
    def tl_end():
        if not TL: return
        a("s_waitcnt vmcnt(0) lgkmcnt(0)")
        a("s_memrealtime s[70:71]\ns_load_dwordx2 s[72:73], s[0:1], 72\ns_waitcnt lgkmcnt(0)")
        a("s_mov_b32 s76, s72\ns_and_b32 s77, s73, 0xffff\ns_mov_b32 s78, 0x1000000\ns_mov_b32 s79, 0x20000")
        a("v_lshrrev_b32 v158, 6, v0\ns_nop 0\nv_readfirstlane_b32 s74, v158\ns_nop 3")
        a(f"s_lshl_b32 s75, s2, 4\ns_add_u32 s75, s75, s74\ns_lshl_b32 s75, s75, 3\ns_add_u32 s75, s75, {DBG1:#x}")
        a("s_mov_b64 exec, 1\nv_mov_b32 v156, s68\nv_mov_b32 v157, s70\nv_mov_b32 v159, 0")
        a("buffer_store_dwordx2 v[156:157], v159, s[76:79], s75 offen")
    header(a, "prep_kernel")
    if TL: a("s_memrealtime s[68:69]")
    if dbg:
        a("s_memrealtime s[44:45]")
        stamp()
    a(f"s_cmp_ge_u32 s2, {P_GRID}")
    a("s_cbranch_scc1 P_end")
    a(f"s_cmp_ge_u32 s2, {NCH + 2*P_NG}")
    a("s_cbranch_scc1 P_weights")
    a(f"s_cmp_ge_u32 s2, {NCH}")
    a("s_cbranch_scc1 P_gemm")
    a("s_load_dwordx4 s[4:7], s[0:1], 16")
    a("s_load_dwordx2 s[8:9], s[0:1], 72")
    a("v_lshlrev_b32 v2, 4, v0")
    a("v_mov_b32 v4, 0\nv_mov_b32 v5, 0\nv_mov_b32 v6, 0\nv_mov_b32 v7, 0")
    a("ds_write_b128 v2, v[4:7]")
    a("ds_write_b128 v2, v[4:7] offset:10240")
    a("v_lshlrev_b32 v1, 4, v0")
    a(f"s_mul_i32 s3, s2, {CH*4}")
    a(f"s_mov_b32 s20, {MAGIC_G}")
    a("s_movk_i32 s21, 625")
    a(f"s_movk_i32 s28, {-S0}")
    a(f"s_movk_i32 s31, {-S1}")
    a("v_lshrrev_b32 v2, 6, v0")
    a("v_mov_b32 v3, 1")
    a("v_readfirstlane_b32 s22, v2")
    a("s_waitcnt lgkmcnt(0)")
    srd(a, 16, 6, 7, E * 4)
    a(f"v_cmp_gt_u32 vcc, {CH//8}, v0")
    a("s_mov_b64 exec, vcc")
    a(f"s_add_u32 s33, s3, {CH*2}")
    a("buffer_load_dwordx4 v[8:11], v1, s[16:19], s3 offen")
    a("buffer_load_dwordx4 v[12:15], v1, s[16:19], s33 offen")
    srd(a, 12, 4, 5, E * 4)
    a("buffer_load_dwordx4 v[16:19], v1, s[12:15], s3 offen")
    a("buffer_load_dwordx4 v[20:23], v1, s[12:15], s33 offen")
    srd(a, 24, 8, 9, WS_SZ)
    a("v_lshlrev_b32 v64, 21, v0")
    a("s_barrier")
    stamp()
    a("s_waitcnt vmcnt(2)")
    vD, vS, vBk, vAd, vRk, vRec, vT = 8, 16, 24, 32, 40, 48, 56
    for i in range(8): a(f"v_mul_u32_u24 v{vBk+i}, s20, v{vD+i}")
    for i in range(8): a(f"v_lshrrev_b32 v{vBk+i}, 23, v{vBk+i}")
    for i in range(8): a(f"v_mad_u32_u24 v{vRec+i}, v{vBk+i}, s21, 15")
    for i in range(8): a(f"v_lshrrev_b32 v{vRec+i}, 4, v{vRec+i}")
    for i in range(8): a(f"v_sub_u32 v{vRec+i}, v{vD+i}, v{vRec+i}")
    if S0 == 16 and S1 == 16:
        for i in range(8): a(f"v_lshrrev_b32 v{vT+i}, 4, v{vRec+i}")
        for i in range(8): a(f"v_and_b32 v{vRec+i}, 15, v{vRec+i}")
    else:
        for i in range(8): a(f"v_add_u32 v{vT+i}, {64 - S0}, v{vRec+i}")
        for i in range(8): a(f"v_add_u32 v{vAd+i}, {64 - S0 - S1}, v{vRec+i}")
        for i in range(8): a(f"v_lshrrev_b32 v{vT+i}, 6, v{vT+i}")
        for i in range(8): a(f"v_lshrrev_b32 v{vAd+i}, 6, v{vAd+i}")
        for i in range(8): a(f"v_mad_i32_i24 v{vRec+i}, v{vT+i}, s28, v{vRec+i}")
        for i in range(8): a(f"v_mad_i32_i24 v{vRec+i}, v{vAd+i}, s31, v{vRec+i}")
        for i in range(8): a(f"v_add_u32 v{vT+i}, v{vT+i}, v{vAd+i}")
    for i in range(8): a(f"v_lshl_add_u32 v{vBk+i}, v{vT+i}, 8, v{vBk+i}")
    a("s_waitcnt vmcnt(0)")
    stamp()
    a(f"s_movk_i32 s29, {6554}")
    for i in range(8): a(f"v_mul_u32_u24 v{vT+i}, s29, v{vS+i}")
    for i in range(8): a(f"v_lshrrev_b32 v{vT+i}, 24, v{vT+i}")
    for i in range(8): a(f"v_lshl_add_u32 v{vAd+i}, v{vBk+i}, 2, v{vT+i}")
    for i in range(8): a(f"v_lshlrev_b32 v{vAd+i}, 2, v{vAd+i}")
    for i in range(8): a(f"ds_add_rtn_u32 v{vRk+i}, v{vAd+i}, v3")
    for i in range(8): a(f"v_lshl_or_b32 v{vRec+i}, v{vRec+i}, 14, v{vS+i}")
    for i in range(8):
        a(f"s_mov_b32 s30, {((i & 3) + (CH // 2) * (i >> 2)) << 19:#x}")
        a(f"v_add3_u32 v{vRec+i}, v{vRec+i}, v64, s30")
    a("s_waitcnt lgkmcnt(0)")
    stamp()
    a("s_barrier")
    c0, p0 = 68, 76
    a("s_cmp_ge_u32 s22, 6")
    a("s_cbranch_scc1 P_scan1_done")
    a("v_lshlrev_b32 v2, 5, v0")
    a(f"ds_read_b128 v[{c0}:{c0+3}], v2 offset:{P_HIST}")
    a(f"ds_read_b128 v[{c0+4}:{c0+7}], v2 offset:{P_HIST+16}")
    a("s_waitcnt lgkmcnt(0)")
    a(f"v_mov_b32 v{p0}, 0")
    a(f"v_mov_b32 v{p0+1}, v{c0}")
    for k in range(2, 8): a(f"v_add_u32 v{p0+k}, v{p0+k-1}, v{c0+k-1}")
    a(f"v_add_u32 v84, v{p0+7}, v{c0+7}")
    a("v_mov_b32 v85, v84")
    wave_scan(a, 85)
    a("v_readlane_b32 s23, v85, 63")
    a("v_sub_u32 v85, v85, v84")
    a("s_lshl_b32 s30, s22, 2")
    a("v_mov_b32 v87, s30")
    a("v_mov_b32 v86, s23")
    a(f"ds_write_b32 v87, v86 offset:{P_TOT}")
    a("s_waitcnt lgkmcnt(0)")
    a("P_scan1_done:")
    a("s_barrier")
    a("s_cmp_ge_u32 s22, 6")
    a("s_cbranch_scc1 P_noscan")
    a("v_mov_b32 v87, 0")
    a(f"ds_read_b128 v[88:91], v87 offset:{P_TOT}")
    a(f"ds_read_b64 v[92:93], v87 offset:{P_TOT+16}")
    a("s_waitcnt lgkmcnt(0)")
    a("s_mov_b32 s30, 0")
    for k in range(5):
        a(f"v_readfirstlane_b32 s23, v{88+k}")
        a(f"s_cmp_gt_u32 s22, {k}")
        a("s_nop 1")
        a("s_cselect_b32 s23, s23, 0")
        a("s_add_u32 s30, s30, s23")
    a("v_add_u32 v85, s30, v85")
    for k in range(8): a(f"v_add_u32 v{p0+k}, v{p0+k}, v85")
    a(f"ds_write_b128 v2, v[{p0}:{p0+3}] offset:{P_START}")
    a(f"ds_write_b128 v2, v[{p0+4}:{p0+7}] offset:{P_START+16}")
    for b in range(2):
        cc = c0 + 4*b; pp = p0 + 4*b; o = 88 + 2*b
        a(f"v_add3_u32 v86, v{cc}, v{cc+1}, v{cc+2}")
        a(f"v_add_u32 v86, v86, v{cc+3}")
        a(f"v_lshl_or_b32 v{o}, v86, 16, v{pp}")
        for k in range(3): a(f"v_min_u32 v{cc+k}, 0xff, v{cc+k}")
        a(f"v_lshl_or_b32 v{o+1}, v{cc+1}, 8, v{cc}")
        a(f"v_lshl_or_b32 v{o+1}, v{cc+2}, 16, v{o+1}")
    a(f"s_mul_i32 s23, s2, {NB*8}")
    a("v_lshlrev_b32 v86, 4, v0")
    a(f"buffer_store_dwordx4 v[88:91], v86, s[24:27], s23 offen offset:{WS_T} {SFR}")
    a("s_waitcnt lgkmcnt(0)")
    a("P_noscan:")
    a("s_barrier")
    stamp()
    for i in range(8): a(f"ds_read_b32 v{vT+i}, v{vAd+i} offset:{P_START}")
    a("s_waitcnt lgkmcnt(0)")
    for i in range(8): a(f"v_add_lshl_u32 v{vT+i}, v{vT+i}, v{vRk+i}, 2")
    for i in range(8): a(f"ds_write_b32 v{vT+i}, v{vRec+i} offset:{P_SORT}")
    a("s_waitcnt lgkmcnt(0)")
    a("s_barrier")
    a(f"ds_read_b128 v[4:7], v1 offset:{P_SORT}")
    a(f"ds_read_b128 v[8:11], v1 offset:{P_SORT + CH*2}")
    a(f"s_add_u32 s3, s3, {WS_REC}")
    a(f"s_add_u32 s33, s3, {CH*2}")
    a("s_waitcnt lgkmcnt(1)")
    a(f"buffer_store_dwordx4 v[4:7], v1, s[24:27], s3 offen {SFR}")
    a("s_waitcnt lgkmcnt(0)")
    a(f"buffer_store_dwordx4 v[8:11], v1, s[24:27], s33 offen {SFR}")
    stamp()
    if dbg: a("s_waitcnt vmcnt(0)")
    dump(1)
    tl_end()
    a("s_endpgm")
    a("P_gemm:")
    nst[0] = 1
    a("s_load_dwordx2 s[4:5], s[0:1], 0")
    a("s_load_dwordx4 s[8:11], s[0:1], 32")
    a("s_load_dwordx2 s[34:35], s[0:1], 48")
    a("s_load_dwordx2 s[6:7], s[0:1], 72")
    a("v_lshrrev_b32 v2, 6, v0")
    a("v_and_b32 v1, 63, v0")
    a("v_readfirstlane_b32 s22, v2")
    a(f"s_sub_u32 s3, s2, {NCH}")
    a(f"s_cmp_ge_u32 s3, {P_NG}")
    a("s_cselect_b32 s36, 1, 0")
    a(f"s_cselect_b32 s37, {P_NG}, 0")
    a("s_sub_u32 s3, s3, s37")
    a("s_cmp_ge_u32 s22, 8")
    a("s_cbranch_scc1 P_pf" if (flag("epf") or flag("cpf")) else "s_cbranch_scc1 P_end")
    a("s_lshr_b32 s23, s22, 2")
    a("s_and_b32 s28, s22, 3")
    a("s_lshl_b32 s3, s3, 2")
    a("s_add_u32 s3, s3, s23")
    a("s_lshl_b32 s29, s3, 5")
    a("v_lshrrev_b32 v3, 4, v1")
    a("v_and_b32 v4, 15, v1")
    a("v_lshlrev_b32 v5, 2, v3")
    a("v_xor_b32 v5, v5, v4")
    a("v_lshlrev_b32 v5, 4, v5")
    a("v_lshl_add_u32 v5, v3, 8, v5")
    a("v_xor_b32 v4, v4, v3")
    a("v_lshlrev_b32 v7, 4, v4")
    a("v_mov_b32 v9, v7")
    a("s_waitcnt lgkmcnt(0)")
    sW1 = 44 if not dbg else 72
    a("s_cmp_eq_u32 s36, 0")
    a("s_cselect_b32 s30, 32768, 0")
    a(f"s_cselect_b32 s{sW1}, s10, s8\ns_cselect_b32 s{sW1+1}, s11, s9")
    a("s_add_u32 s16, s34, s30\ns_addc_u32 s17, s35, 0")
    a("s_and_b32 s17, s17, 0xffff")
    a("s_mov_b32 s18, 32768\ns_mov_b32 s19, 0x20000")
    a(f"s_and_b32 s{sW1+1}, s{sW1+1}, 0xffff")
    a(f"s_mov_b32 s{sW1+2}, 32768\ns_mov_b32 s{sW1+3}, 0x20000")
    srd(a, 12, 4, 5, N, stride=256)
    a("s_lshl_b32 s33, s22, 12")
    a("s_lshl_b32 s30, s28, 3")
    a("s_add_u32 s30, s30, s29")
    a(f"s_mul_i32 s31, s23, {XSLOT}")
    a(f"s_mul_i32 s37, s28, {2*XGRP}")
    a("s_add_u32 s31, s31, s37")
    def wdma(sr, lds):
        a(f"s_add_u32 m0, s33, {lds}")
        a("s_nop 0")
        for ii in range(4):
            a(f"buffer_load_dwordx4 v5, s[{sr}:{sr+3}], s33 offen offset:{ii*1024} lds")
    def xdma(ps):
        a("v_add_u32 v6, s30, v3")
        a("v_add_u32 v8, 4, v6")
        a(f"s_add_u32 m0, s31, {G_X + ps*2*XSLOT}")
        a("s_add_u32 s30, s30, 64")
        a("buffer_load_dwordx4 v[6:7], s[12:15], 0 idxen offen lds")
        a(f"s_add_u32 m0, s31, {G_X + ps*2*XSLOT + XGRP}")
        a("s_nop 0")
        a("buffer_load_dwordx4 v[8:9], s[12:15], 0 idxen offen lds")
    wdma(16, G_W0)
    xdma(0)
    wdma(sW1, G_W1)
    xdma(1)
    vE5, vH, vX0, vX1, vWt = 10, 11, 12, 13, 14
    a(f"v_and_b32 v{vE5}, 31, v1")
    a(f"v_lshrrev_b32 v{vH}, 5, v1")
    xfrag_addr(a, vX0, vX1, vE5, vH, 15, 16, 17)
    a(f"s_mul_i32 s30, s23, {XSLOT}")
    a(f"s_add_u32 s30, s30, {G_X}")
    a(f"v_add_u32 v{vX0}, s30, v{vX0}")
    a(f"v_add_u32 v{vX1}, s30, v{vX1}")
    a("v_lshrrev_b32 v15, 2, v1\nv_and_b32 v15, 3, v15")
    a("s_lshl_b32 s30, s28, 2")
    a("v_lshlrev_b32 v16, 2, v15")
    a("v_xor_b32 v16, s30, v16")
    a("v_lshrrev_b32 v17, 4, v1\nv_and_b32 v17, 1, v17")
    a("v_lshl_add_u32 v16, v17, 1, v16")
    a("v_lshrrev_b32 v17, 1, v1\nv_and_b32 v17, 1, v17")
    a("v_add_u32 v16, v16, v17")
    a("v_lshlrev_b32 v16, 4, v16")
    a("v_and_b32 v17, 1, v1")
    a("v_lshl_add_u32 v16, v17, 3, v16")
    a(f"v_lshl_add_u32 v15, v{vH}, 3, v15")
    a(f"v_lshl_add_u32 v{vWt}, v15, 8, v16")
    srd(a, 24, 6, 7, N * 512, add=WS_TAB)
    a("s_cmp_eq_u32 s36, 0")
    a("s_cbranch_scc1 P_g_bvsrd")
    srd(a, 24, 6, 7, N * 256, add=WS_XA)
    srd(a, 40 if not dbg else 64, 6, 7, N * 256, add=WS_XU)
    a("P_g_bvsrd:")
    sXU = 40 if not dbg else 64
    f0, f1, fX, d0, d1 = 32, 64, 96, 128, 144
    a("s_lshl_b32 s31, s22, 12")
    a(f"s_add_u32 s31, s31, {G_ST}")
    a(f"v_and_b32 v15, 7, v{vE5}")
    a(f"v_lshlrev_b32 v16, 1, v{vH}")
    a("v_xor_b32 v16, v16, v15")
    a("v_lshlrev_b32 v16, 4, v16")
    a(f"v_lshl_add_u32 v16, v{vE5}, 7, v16")
    a("v_add_u32 v16, s31, v16")
    a("v_lshrrev_b32 v20, 3, v1")
    a("v_and_b32 v21, 7, v1")
    a("v_xor_b32 v22, v21, v20")
    a("v_lshlrev_b32 v22, 4, v22")
    a("v_lshl_add_u32 v22, v20, 7, v22")
    a("v_add_u32 v22, s31, v22")
    a("v_add_u32 v20, s29, v20")
    a("v_lshlrev_b32 v20, 9, v20")
    a("v_lshl_add_u32 v20, v21, 4, v20")
    a("s_lshl_b32 s30, s28, 7")
    a("v_add_u32 v20, s30, v20")
    a(f"v_lshrrev_b32 v23, 2, v{vE5}")
    a("v_and_b32 v23, 3, v23")
    a("v_lshlrev_b32 v23, 4, v23")
    a(f"v_lshl_add_u32 v23, v{vE5}, 6, v23")
    a(f"v_lshl_add_u32 v23, v{vH}, 3, v23")
    a("v_add_u32 v23, s31, v23")
    a("v_lshrrev_b32 v24, 4, v1\nv_and_b32 v24, 3, v24")
    a("v_and_b32 v25, 3, v1")
    a("v_xor_b32 v24, v24, v25")
    a("v_lshlrev_b32 v24, 4, v24")
    a("v_lshrrev_b32 v26, 2, v1")
    a("v_lshl_add_u32 v24, v26, 6, v24")
    a("v_add_u32 v24, s31, v24")
    a("v_add_u32 v26, s29, v26")
    a("v_lshlrev_b32 v26, 8, v26")
    a("v_lshl_add_u32 v26, v25, 4, v26")
    a("s_lshl_b32 s30, s28, 6")
    a("v_add_u32 v26, s30, v26")
    stamp()
    a("s_waitcnt vmcnt(6)")
    stamp()
    a("s_barrier")
    stamp()
    def xreads(ps):
        for s_ in range(8):
            ad = vX0 if s_ % 2 == 0 else vX1
            a(f"ds_read_b128 v[{fX+4*s_}:{fX+4*s_+3}], v{ad} offset:{ps*2*XSLOT + (s_>>1)*64}")
    for s in range(8):
        for part in range(2):
            a(f"ds_read_b64_tr_b16 v[{f0+4*s+2*part}:{f0+4*s+2*part+1}], v{vWt} offset:{G_W0 + (16*s+4*part)*256}")
        if s == 5: a("s_waitcnt lgkmcnt(4)")
    a("s_waitcnt lgkmcnt(4)")
    xreads(0)
    a(f"s_mov_b32 s30, {NEG_LOG2E:#x}")
    for ps in range(2):
        if ps == 0:
            for s_ in range(8):
                if s_ % 2 == 0: a(f"s_waitcnt lgkmcnt({6 - s_})")
                a(mf(d0, f0 + 4*s_, fX + 4*s_, None if s_ == 0 else d0))
            a("s_waitcnt vmcnt(0)")
            a("s_barrier")
            for s_ in range(8):
                if s_ == 6: a("s_waitcnt lgkmcnt(8)")
                for part in range(2):
                    a(f"ds_read_b64_tr_b16 v[{f1+4*s_+2*part}:{f1+4*s_+2*part+1}], v{vWt} offset:{G_W1 + (16*s_+4*part)*256}")
            a("s_waitcnt lgkmcnt(0)")
        else:
            a("s_waitcnt lgkmcnt(0)")
            for s_ in range(8): a(mf(d0, f0 + 4*s_, fX + 4*s_, None if s_ == 0 else d0))
        for s_ in range(8):
            a(mf(d1, f1 + 4*s_, fX + 4*s_, None if s_ == 0 else d1))
        a("s_nop 3")
        for r in range(16): a(f"v_mul_f32 v{d0+r}, s30, v{d0+r}")
        for r in range(8): a(f"v_cvt_pk_bf16_f32 v{d0+r}, v{d0+2*r}, v{d0+2*r+1}")
        for r in range(8): a(f"v_cvt_pk_bf16_f32 v{d0+8+r}, v{d1+2*r}, v{d1+2*r+1}")
        a("s_cmp_eq_u32 s36, 0")
        a(f"s_cbranch_scc0 P_g_au{ps}")
        a(f"ds_write_b128 v16, v[{d0}:{d0+3}]")
        a("v_xor_b32 v17, 16, v16")
        a(f"ds_write_b128 v17, v[{d0+4}:{d0+7}]")
        a("v_xor_b32 v18, 64, v16")
        a(f"ds_write_b128 v18, v[{d0+8}:{d0+11}]")
        a("v_xor_b32 v19, 64, v17")
        a(f"ds_write_b128 v19, v[{d0+12}:{d0+15}]")
        for i in range(4):
            a(f"ds_read_b128 v[{d1+4*i}:{d1+4*i+3}], v22 offset:{i*1024}")
        if ps == 0:
            a("s_waitcnt lgkmcnt(4)")
            xreads(1)
        a(f"s_mov_b32 s33, {ps*64*512}")
        for i in range(4):
            a(f"s_waitcnt lgkmcnt({3-i + (8 if ps == 0 else 0)})")
            a(f"buffer_store_dwordx4 v[{d1+4*i}:{d1+4*i+3}], v20, s[24:27], s33 offen {SF}")
            if i < 3: a("s_add_u32 s33, s33, 4096")
        a(f"s_branch P_g_done{ps}")
        a(f"P_g_au{ps}:")
        for j in range(4):
            if j: a(f"v_xor_b32 v17, {16*j}, v23")
            ad = 23 if j == 0 else 17
            a(f"ds_write_b64 v{ad}, v[{d0+2*j}:{d0+2*j+1}]")
            a(f"ds_write_b64 v{ad}, v[{d0+8+2*j}:{d0+8+2*j+1}] offset:2048")
        for i in range(4):
            a(f"ds_read_b128 v[{d1+4*i}:{d1+4*i+3}], v24 offset:{i*1024}")
        if ps == 0:
            a("s_waitcnt lgkmcnt(4)")
            xreads(1)
        a(f"s_mov_b32 s33, {ps*64*256}")
        for i in range(4):
            a(f"s_waitcnt lgkmcnt({3-i + (8 if ps == 0 else 0)})")
            sr = 24 if i < 2 else sXU
            a(f"buffer_store_dwordx4 v[{d1+4*i}:{d1+4*i+3}], v26, s[{sr}:{sr+3}], s33 offen offset:0 {SF}")
            if i == 0: a("s_add_u32 s33, s33, 4096")
            if i == 1: a("s_sub_u32 s33, s33, 4096")
            if i == 2: a("s_add_u32 s33, s33, 4096")
        a(f"P_g_done{ps}:")
    stamp()
    if dbg: a("s_waitcnt vmcnt(0)")
    dump(2)
    tl_end()
    a("s_endpgm")
    if flag("cpf"):
        a("P_pf:")
        a("s_cmp_lg_u32 s22, 8")
        a("s_cbranch_scc1 P_end")
        a("s_getpc_b64 s[12:13]")
        a("P_pc:")
        a(f"s_add_u32 s12, s12, {KNAME}-P_pc")
        a("s_addc_u32 s13, s13, 0")
        a("v_lshlrev_b32 v2, 6, v1")
        a("v_mov_b32 v3, 0")
        a("v_mov_b32 v5, s13")
        a("v_add_co_u32 v4, vcc, s12, v2")
        a("v_addc_co_u32 v5, vcc, v5, v3, vcc")
        for i in range(3):
            if i == 2:
                a(f"s_mov_b32 s14, (M_last-{KNAME}-8192+64)>>6")
                a("v_cmp_gt_u32 vcc, s14, v1")
                a("s_mov_b64 exec, vcc")
                a("s_cbranch_execz P_pf_done")
            a(f"global_load_dword v{8+i}, v[4:5], off")
            if i < 2:
                a("v_add_co_u32 v4, vcc, 0x1000, v4")
                a("v_addc_co_u32 v5, vcc, v5, v3, vcc")
        a("P_pf_done:")
        a("s_waitcnt vmcnt(0)")
        a("s_endpgm")
    if flag("epf"):
        a("P_pf:")
        a("s_load_dwordx2 s[12:13], s[0:1], 8")
        a(f"s_sub_u32 s3, s2, {NCH}")
        a("s_lshl_b32 s3, s3, 1")
        a("s_add_u32 s3, s3, s22")
        a("s_sub_u32 s3, s3, 8")
        a("s_lshl_b32 s3, s3, 15")
        a("v_lshlrev_b32 v2, 4, v1")
        a("s_waitcnt lgkmcnt(0)")
        a("s_and_b32 s13, s13, 0xffff")
        a(f"s_mov_b32 s14, {E*32}")
        a("s_mov_b32 s15, 0x20000")
        for i in range(32):
            a(f"buffer_load_dwordx4 v[{8+4*(i%8)}:{11+4*(i%8)}], v2, s[12:15], s3 offen offset:{(i%4)*1024} {opt('epfflag', '')}")
            if i % 4 == 3: a("s_add_u32 s3, s3, 4096")
        a("s_endpgm")
    a("P_weights:")
    a("s_load_dwordx2 s[8:9], s[0:1], 48")
    a("s_load_dwordx2 s[10:11], s[0:1], 72")
    a("v_lshrrev_b32 v2, 6, v0")
    a("v_and_b32 v1, 63, v0")
    a("v_readfirstlane_b32 s3, v2")
    a("s_nop 0")
    a("s_cmp_ge_u32 s3, 4")
    a("s_cbranch_scc1 P_end")
    a("s_waitcnt lgkmcnt(0)")
    srd(a, 12, 8, 9, 272 * 256)
    a("s_lshl_b32 s28, s3, 6")
    a(f"s_add_u32 s28, s28, {256*256}")
    a("v_lshrrev_b32 v2, 5, v1")
    a("v_lshlrev_b32 v2, 11, v2")
    a("v_and_b32 v3, 31, v1")
    a("v_lshl_add_u32 v2, v3, 1, v2")
    for j in range(8):
        a(f"buffer_load_ushort v{8+j}, v2, s[12:15], s28 offen offset:{j*256}")
    srd(a, 16, 10, 11, WS_SZ)
    a("s_lshl_b32 s3, s3, 10")
    a(f"s_add_u32 s3, s3, {WS_W}")
    a("v_lshlrev_b32 v1, 4, v1")
    a(f"s_mov_b32 s29, {NEG_LOG2E:#x}")
    a("s_waitcnt vmcnt(0)")
    for j in range(8): a(f"v_lshlrev_b32 v{8+j}, 16, v{8+j}")
    for j in range(8): a(f"v_mul_f32 v{8+j}, s29, v{8+j}")
    for j in range(4): a(f"v_cvt_pk_bf16_f32 v{16+j}, v{8+2*j}, v{9+2*j}")
    a("buffer_store_dwordx4 v[16:19], v1, s[16:19], s3 offen")
    a("P_end:")
    a("s_endpgm")
    return a.text() + descriptor("prep_kernel", 160, 96 if flag("tl") else 80 if dbg else 48)

CAP = 640
NPAD = 128
L_GR = 0
L_XA = L_GR + 4 * 2 * 4096
L_ER = L_XA + 4096
L_OR = L_ER + 3 * 1024
L_LS = L_OR + 3 * 1024
LSZ = (CAP + NPAD) * 4
L_LE = L_LS + LSZ
L_LQ = L_LE + LSZ
M_LDS = (L_LQ + CAP + NPAD + 63) // 64 * 64
AGG_STRIDE = 528

vLANE, vE5, vH = 1, 2, 3
vG = 4
vEA, vO0, vT0, vT1 = 8, 9, 10, 11
vLs, vLe, vLq = 12, 13, 14
pG = 16
pE = 24
vQ, vOHa, vOHd = 26, 27, 28
vK = 29
vT = 32
vC, vXA, vI, vACC, vZ, vHV = 56, 60, 64, 72, 88, 104
vFX, vFH, vAE, vAO, vSO, vMSG, vXU = 120, 128, 136, 140, 144, 152, 160
NVGPR = 164
U_REC = 8

def main_kernel(dbg=False):
    a = A()
    nst = [0]
    def stamp():
        if not dbg: return
        a("s_waitcnt lgkmcnt(0)")
        a("s_memtime s[58:59]")
        a("s_waitcnt lgkmcnt(0)")
        a(f"s_mov_b32 s{64+nst[0]}, s58")
        nst[0] += 1
    PRIO = opt("prio", "pair")
    header(a, KNAME)
    a(f"s_cmp_ge_u32 s2, {NB}")
    a("s_cbranch_scc1 M_end")
    a("s_load_dwordx2 s[6:7], s[0:1], 8")
    a("s_load_dwordx2 s[8:9], s[0:1], 56")
    a("s_load_dwordx2 s[10:11], s[0:1], 72")
    if flag("tl"): a("s_memrealtime s[68:69]\ns_load_dwordx2 s[72:73], s[0:1], 64")
    if PRIO != "none": a("s_setprio 3")
    if dbg: a("s_memrealtime s[60:61]")
    stamp()
    t0, t1, t2, t3 = vT, vT + 1, vT + 2, vT + 3
    vTv = vT + 4
    a(f"v_lshrrev_b32 v{t0}, 6, v0")
    a(f"v_and_b32 v{vLANE}, 63, v0")
    a(f"v_readfirstlane_b32 s32, v{t0}")
    a(f"v_mul_u32_u24 v{t1}, {NB*8}, v{vLANE}")
    a("s_lshl_b32 s38, s2, 3")
    a("s_and_b32 s33, s2, 255")
    a("s_lshr_b32 s39, s2, 8")
    a("s_mul_i32 s33, s33, 625")
    a("s_add_u32 s34, s33, 640")
    a("s_add_u32 s33, s33, 15")
    a("s_lshr_b32 s33, s33, 4")
    a("s_lshr_b32 s34, s34, 4")
    a("s_sub_u32 s34, s34, s33")
    a(f"s_sub_u32 s34, s34, {S0 + S1}")
    a("s_cmp_eq_u32 s39, 1")
    a(f"s_cselect_b32 s34, {S1}, s34")
    a(f"s_cselect_b32 s42, {S0}, {S0 + S1}")
    a("s_cmp_eq_u32 s39, 0")
    a(f"s_cselect_b32 s34, {S0}, s34")
    a("s_cselect_b32 s42, 0, s42")
    a("s_add_u32 s33, s33, s42")
    a(f"v_and_b32 v{vE5}, 31, v{vLANE}")
    a(f"v_lshrrev_b32 v{vH}, 5, v{vLANE}")
    a("s_waitcnt lgkmcnt(0)")
    srd(a, 20, 10, 11, WS_SZ)
    a("s_cmp_lg_u32 s32, 0")
    a("s_cbranch_scc1 M_noT")
    a(f"buffer_load_dwordx2 v[{vTv}:{vTv+1}], v{t1}, s[20:23], s38 offen")
    a("M_noT:")
    srd(a, 24, 10, 11, N, stride=512, add=WS_TAB)
    NPF = 0
    srd(a, 16, 6, 7, E, stride=32)
    srd(a, 28, 8, 9, N * 256)
    srd(a, 12, 10, 11, N, stride=256, add=WS_XA)
    srd(a, 44, 10, 11, N * 256, add=WS_XU)
    a(f"v_lshrrev_b32 v{t0}, 4, v{vLANE}")
    a(f"v_and_b32 v{t1}, 7, v{vLANE}")
    a(f"v_xor_b32 v{t1}, v{t1}, v{t0}")
    a("s_lshl_b32 s38, s32, 7")
    a(f"v_lshl_add_u32 v{pG+1}, v{t1}, 4, s38")
    a(f"v_xor_b32 v{pG+3}, 64, v{pG+1}")
    a(f"v_mov_b32 v{pG+5}, v{pG+1}")
    a(f"v_mov_b32 v{pG+7}, v{pG+3}")
    a(f"v_lshrrev_b32 v{t0}, 1, v{vE5}")
    a(f"v_and_b32 v{t0}, 7, v{t0}")
    a(f"v_xor_b32 v{t0}, v{t0}, v{vH}")
    a(f"v_lshlrev_b32 v{t0}, 4, v{t0}")
    a(f"v_lshl_add_u32 v{t0}, v{vE5}, 7, v{t0}")
    a("s_lshl_b32 s40, s32, 13")
    a(f"v_add_u32 v{vG}, s40, v{t0}")
    for k in range(1, 4):
        a(f"v_xor_b32 v{vG+k}, {32*k}, v{vG}")
    a("s_lshl_b32 s41, s32, 8")
    a(f"s_add_u32 s41, s41, {L_ER}")
    a(f"v_lshlrev_b32 v{t1}, 5, v{vE5}")
    a(f"v_bfe_u32 v{t0}, v{vE5}, 3, 1")
    a(f"v_xor_b32 v{t0}, v{t0}, v{vH}")
    a(f"v_lshl_add_u32 v{t0}, v{t0}, 4, v{t1}")
    a(f"v_add_u32 v{vEA}, {L_ER}, v{t0}")
    a(f"v_lshl_add_u32 v{t0}, v{vH}, 4, v{t1}")
    a(f"v_add_u32 v{vO0}, {L_OR}, v{t0}")
    a(f"v_bfe_u32 v{t1}, v{vLANE}, 2, 2")
    a(f"v_lshl_add_u32 v{t1}, v{vH}, 2, v{t1}")
    a(f"v_and_b32 v{t0}, 3, v{vLANE}")
    a(f"v_lshlrev_b32 v{t0}, 3, v{t0}")
    a(f"v_lshl_add_u32 v{t0}, v{t1}, 5, v{t0}")
    a(f"v_add_u32 v{vT0}, {L_OR}, v{t0}")
    a("s_and_b32 s38, s32, 1")
    a(f"v_and_b32 v{t0}, 1, v{vLANE}")
    a(f"v_xor_b32 v{t0}, s38, v{t0}")
    a(f"v_lshlrev_b32 v{pE+1}, 4, v{t0}")
    a(f"v_and_b32 v{t0}, 7, v{vLANE}")
    a("s_lshl_b32 s38, s32, 3")
    a(f"v_add_u32 v{t0}, s38, v{t0}")
    a(f"v_lshlrev_b32 v{t1}, 5, v{t0}")
    a(f"v_bfe_u32 v{t2}, v{vLANE}, 3, 1")
    for k in range(3):
        s_set, s_clr = (k + 2) % 3, k
        a(f"v_mul_i32_i24 v{t3}, {(s_clr - s_set) * 1024}, v{t2}")
        a(f"v_add_u32 v{t3}, {s_set*1024 + L_OR}, v{t3}")
        a(f"v_add_u32 v{vK+k}, v{t3}, v{t1}")
    a(f"v_sub_u32 v{t3}, 1, v{t2}")
    a(f"v_mul_u32_u24 v{vOHd}, 0x3f80, v{t3}")
    vLq0 = vT + 22
    a(f"v_lshlrev_b32 v{t2}, 6, v{t2}")
    a(f"v_sub_u32 v{t0}, v{t0}, v{t2}")
    a(f"v_add_u32 v{vLq0}, {L_LQ + 64}, v{t0}")
    a(f"v_and_b32 v{t0}, 1, v{vE5}")
    a(f"v_lshlrev_b32 v{t0}, 4, v{t0}")
    a(f"v_mov_b32 v{t1}, 0x3f80")
    a(f"v_lshlrev_b32 v{t0}, v{t0}, v{t1}")
    a(f"v_bfe_u32 v{t1}, v{vE5}, 1, 1")
    a(f"v_lshrrev_b32 v{t2}, 2, v{vE5}")
    a(f"v_and_b32 v{t3}, 2, v{t2}")
    a(f"v_or_b32 v{t1}, v{t1}, v{t3}")
    a(f"v_and_b32 v{t2}, 1, v{t2}")
    a(f"v_lshl_add_u32 v{t1}, v{t2}, 2, v{t1}")
    a(f"v_lshrrev_b32 v{t2}, 4, v{vE5}")
    a(f"v_xor_b32 v{t2}, v{t2}, v{vH}")
    a(f"v_lshl_add_u32 v{t1}, v{t2}, 3, v{t1}")
    for g in range(2):
        pairs = ["vcc", "s[48:49]", "s[50:51]", "s[54:55]"]
        for k in range(4): a(f"v_cmp_eq_u32 {pairs[k]}, {4*g+k}, v{t1}")
        for k in range(4): a(f"v_cndmask_b32 v{vI+4*g+k}, 0, v{t0}, {pairs[k]}")
    for r in range(8):
        a(f"v_mov_b32 v{vACC+r}, 0")
    vRecI, vPos0, vCnt, vEb = vT + 4, vT + 5, vT + 6, vT + 7
    vc = vHV
    vp = vHV + 4
    tb = vZ
    L_TB = L_GR
    a("s_cmp_lg_u32 s32, 0")
    a("s_cbranch_scc1 M_scan_done")
    a(f"v_mul_u32_u24 v{t3}, {CH}, v{vLANE}")
    a(f"s_waitcnt vmcnt({NPF})")
    stamp()
    a(f"v_lshrrev_b32 v{t1}, 16, v{vTv}")
    a(f"v_and_b32 v{vc}, 0xff, v{vTv+1}")
    a(f"v_bfe_u32 v{vc+1}, v{vTv+1}, 8, 8")
    a(f"v_bfe_u32 v{vc+2}, v{vTv+1}, 16, 8")
    a(f"v_add3_u32 v{t0}, v{vc}, v{vc+1}, v{vc+2}")
    a(f"v_sub_u32 v{vc+3}, v{t1}, v{t0}")
    for k in range(4): a(f"v_mov_b32 v{vp+k}, v{vc+k}")
    a(f"v_and_b32 v{t2}, 0xffff, v{vTv}")
    for sh in (1, 2, 4, 8):
        for k in range(4):
            a(f"v_add_u32_dpp v{vp+k}, v{vp+k}, v{vp+k} row_shr:{sh} row_mask:0xf bank_mask:0xf bound_ctrl:1")
    for k in range(4): a(f"v_add_u32_dpp v{vp+k}, v{vp+k}, v{vp+k} row_bcast:15 row_mask:0xa bank_mask:0xf")
    for k in range(4): a(f"v_add_u32_dpp v{vp+k}, v{vp+k}, v{vp+k} row_bcast:31 row_mask:0xc bank_mask:0xf")
    a(f"v_add_u32 v{tb}, v{t3}, v{t2}")
    for k in range(4): a(f"v_readlane_b32 s{48+k}, v{vp+k}, 63")
    for k in range(1, 4): a(f"v_add_u32 v{tb+4*k}, v{tb+4*k-4}, v{vc+k-1}")
    a("s_add_u32 s49, s49, s48")
    a("s_add_u32 s50, s50, s49")
    a("s_add_u32 s35, s51, s50")
    for k in range(4): a(f"v_sub_u32 v{tb+4*k+1}, v{vp+k}, v{vc+k}")
    for k in range(1, 4): a(f"v_add_u32 v{tb+4*k+1}, s{47+k}, v{tb+4*k+1}")
    for k in range(4): a(f"v_mov_b32 v{tb+4*k+2}, v{vc+k}")
    for k in range(4): a(f"v_mov_b32 v{tb+4*k+3}, v{t3}")
    wa = vHV + 8
    a(f"v_and_b32 v{wa+1}, 3, v{tb}")
    a(f"v_and_b32 v{wa}, 0xfffffffc, v{tb}")
    a(f"v_lshlrev_b32 v{wa}, 2, v{wa}")
    a(f"v_lshrrev_b32 v{t1}, 16, v{vTv}")
    a(f"v_add_u32 v{wa+1}, v{wa+1}, v{t1}")
    a(f"v_cmp_lt_u32 vcc, 32, v{wa+1}")
    a(f"s_cmp_le_u32 s35, {CAP}")
    a("s_cselect_b32 s54, 1, 0")
    a("s_cmp_eq_u64 vcc, 0")
    a("s_cselect_b32 s54, s54, 0")
    a(f"v_lshlrev_b32 v{t0}, 6, v{vLANE}")
    a(f"v_lshlrev_b32 v{t3}, 3, v{vLANE}")
    a(f"v_mov_b32 v{wa+2}, s35")
    a(f"v_mov_b32 v{wa+3}, s54")
    a(f"v_mov_b32 v{t2}, {L_TB + 4096}")
    for k in range(4): a(f"ds_write_b128 v{t0}, v[{tb+4*k}:{tb+4*k+3}] offset:{L_TB+16*k}")
    a(f"ds_write_b64 v{t3}, v[{wa}:{wa+1}] offset:{L_TB + 4160}")
    a(f"ds_write_b64 v{t2}, v[{wa+2}:{wa+3}]")
    a("s_waitcnt lgkmcnt(0)")
    a("M_scan_done:")
    if dbg: nst[0] = 2
    a(f"v_lshlrev_b32 v{t0}, 4, v0")
    a(f"v_mov_b32 v{t2}, {L_TB + 4096}")
    a("s_barrier")
    wb = vHV
    a(f"ds_read_b128 v[{vRecI}:{vRecI+3}], v{t0} offset:{L_TB}")
    a(f"ds_read_b64 v[{wb+4}:{wb+5}], v{t2}")
    a(f"v_lshrrev_b32 v{t1}, 3, v{vLANE}")
    a("s_lshl_b32 s38, s32, 7")
    a(f"v_lshl_add_u32 v{t1}, v{t1}, 3, s38")
    a(f"ds_read_b64 v[{wb}:{wb+1}], v{t1} offset:{L_TB + 4160}")
    a(f"ds_read_b64 v[{wb+2}:{wb+3}], v{t1} offset:{L_TB + 4160 + 64}")
    a(f"v_and_b32 v{t3}, 7, v{vLANE}")
    a(f"v_lshlrev_b32 v{t3}, 2, v{t3}")
    a("s_waitcnt lgkmcnt(0)")
    a(f"v_readfirstlane_b32 s35, v{wb+4}")
    a(f"v_readfirstlane_b32 s54, v{wb+5}")
    stamp()
    def side_loads():
        b0 = vMSG
        a(f"v_lshlrev_b32 v{b0+2}, 4, v{vLANE}")
        a("s_lshl_b32 s42, s32, 10")
        a(f"s_add_u32 m0, s42, {L_XA}")
        a(f"s_add_u32 s42, s42, {WS_W}")
        a(f"buffer_load_dwordx4 v[{vC}:{vC+3}], v{b0+2}, s[20:23], s42 offen")
        a(f"v_lshrrev_b32 v{b0}, 4, v0")
        a(f"v_add_u32 v{b0}, s33, v{b0}")
        a(f"v_and_b32 v{b0+1}, 15, v0")
        a(f"v_lshlrev_b32 v{b0+1}, 4, v{b0+1}")
        a(f"buffer_load_dwordx4 v[{b0}:{b0+1}], s[12:15], 0 idxen offen lds")
    def xu_load():
        a(f"v_lshrrev_b32 v{vOHa}, 4, v0")
        a(f"v_add_u32 v{vOHa}, s33, v{vOHa}")
        a(f"v_lshlrev_b32 v{vOHa}, 8, v{vOHa}")
        a(f"v_and_b32 v{vXU}, 15, v0")
        a(f"v_lshl_add_u32 v{vOHa}, v{vXU}, 4, v{vOHa}")
        a(f"buffer_load_dwordx4 v[{vXU}:{vXU+3}], v{vOHa}, s[44:47], 0 offen")
    a("s_mov_b32 s36, 0")
    a("s_mov_b32 s43, 1")
    a("s_mov_b32 s53, 1")
    a("s_cmp_eq_u32 s35, 0")
    a("s_cbranch_scc1 M_empty")

    vXAa = vT + 23
    def pads_and_readers(tag):
        a("s_cmp_ge_u32 s32, 2")
        a(f"s_cbranch_scc1 M_pad_done{tag}")
        a(f"v_add_u32 v{t0}, s37, v0")
        a(f"v_mov_b32 v{t2}, 0xffffff")
        a(f"v_lshlrev_b32 v{t1}, 2, v{t0}")
        a(f"ds_write_b32 v{t1}, v{t2} offset:{L_LS}")
        a(f"ds_write_b32 v{t1}, v{t2} offset:{L_LE}")
        a(f"v_mov_b32 v{t2}, 15")
        a(f"ds_write_b8 v{t0}, v{t2} offset:{L_LQ}")
        a(f"M_pad_done{tag}:")
        a(f"v_lshrrev_b32 v{t0}, 3, v{vLANE}")
        a("s_lshl_b32 s38, s32, 5")
        a(f"v_lshlrev_b32 v{t0}, 2, v{t0}")
        a(f"s_add_u32 s38, s38, {L_LE}")
        a(f"v_bfe_u32 v{t1}, v{vLANE}, 1, 3")
        a(f"v_add_u32 v{vLs}, {L_LS}, v{t0}")
        a(f"v_lshl_add_u32 v{vLe}, v{t1}, 2, s38")
        a(f"v_mov_b32 v{vLq}, v{vLq0}")
    a(f"v_bfe_u32 v{t0}, v{vLANE}, 2, 2")
    a(f"v_bfe_u32 v{t1}, v{vLANE}, 4, 1")
    a(f"v_lshl_add_u32 v{t0}, v{vH}, 3, v{t0}")
    a(f"v_and_b32 v{t2}, 3, v{vLANE}")
    a(f"v_lshlrev_b32 v{t0}, 8, v{t0}")
    a("s_lshl_b32 s38, s32, 6")
    a(f"v_lshl_add_u32 v{t0}, v{t1}, 5, v{t0}")
    a(f"v_lshl_add_u32 v{t0}, v{t2}, 3, v{t0}")
    a(f"v_add_u32 v{vXAa}, s38, v{t0}")
    a("s_cmp_eq_u32 s54, 0")
    a("s_cbranch_scc1 M_batch")
    L_RW = L_GR + 8192
    a(f"s_mov_b32 s52, {WS_REC}")
    a("s_lshl_b32 s38, s32, 11")
    for i in range(2):
        a(f"v_cmp_lt_u32 vcc, v{t3}, v{wb+2*i+1}")
        a(f"v_lshl_add_u32 v{wb+2*i}, v{t3}, 2, v{wb+2*i}")
        a(f"s_add_u32 m0, s38, {L_RW + 1024*i}")
        a("s_mov_b64 exec, vcc")
        a(f"buffer_load_dwordx4 v{wb+2*i}, s[20:23], s52 offen lds")
        a("s_mov_b64 exec, -1")
    side_loads()
    NE2 = int(opt("e2pf", "0"))
    if NE2:
        a("s_mov_b32 s56, s6\ns_and_b32 s57, s7, 0xffff")
        a(f"s_mov_b32 s58, {E*32}\ns_mov_b32 s59, 0x20000")
        a(f"s_mul_i32 s38, s2, {NE2*4096}")
        a(f"s_mul_i32 s39, s32, {NE2*1024}")
        a("s_add_u32 s38, s38, s39")
        a(f"v_lshlrev_b32 v{vMSG+6}, 4, v{vLANE}")
        for i in range(NE2):
            if i == 4: a("s_add_u32 s38, s38, 4096")
            a(f"buffer_load_dwordx4 v[{vZ+4*i}:{vZ+4*i+3}], v{vMSG+6}, s[56:59], s38 offen offset:{(i%4)*1024} {opt('e2flag', '')}")
    NP2 = int(opt("tpf", "0"))
    if NP2:
        a("s_lshr_b32 s38, s2, 3")
        a(f"s_mul_i32 s38, s38, {8*NP2}")
        a(f"s_mul_i32 s39, s32, {2*NP2}")
        a("s_add_u32 s38, s38, s39")
        a(f"v_add_u32 v{vMSG+4}, s38, v{vH}")
        a(f"v_lshlrev_b32 v{vMSG+5}, 4, v{vE5}")
        a("s_lshr_b32 s39, s32, 1")
        a("s_lshl_b32 s39, s39, 13")
        a("s_and_b32 s38, s32, 1")
        a(f"s_mul_i32 s38, s38, {1024*NP2}")
        a("s_add_u32 s39, s39, s38")
        for i in range(NP2):
            a(f"s_add_u32 m0, s39, {L_GR + 20480 + 1024*i}")
            if i: a(f"v_add_u32 v{vMSG+4}, 2, v{vMSG+4}")
            else: a("s_nop 0")
            a(f"buffer_load_dwordx4 v[{vMSG+4}:{vMSG+5}], s[24:27], 0 idxen offen lds")
    a("s_mov_b32 s43, 0")
    z = vT + 10
    for k in range(4): a(f"v_mov_b32 v{z+k}, 0")
    a(f"v_lshlrev_b32 v{t0}, 4, v0")
    a(f"v_cmp_gt_u32 vcc, 192, v0")
    a("s_mov_b64 exec, vcc")
    a(f"ds_write_b128 v{t0}, v[{z}:{z+3}] offset:{L_OR}")
    a("s_mov_b64 exec, -1")
    a("s_mov_b32 s37, s35")
    vP4, vP1, vA = vT + 12, vT + 13, vT + 3
    vR = vT + 14
    a(f"v_lshrrev_b32 v{t0}, 2, v0")
    a(f"v_lshlrev_b32 v{t0}, 7, v{t0}")
    a(f"v_mov_b32_dpp v{t2}, v{vRecI} quad_perm:[0,0,0,0] row_mask:0xf bank_mask:0xf")
    a(f"v_and_b32 v{t2}, 0xfffffffc, v{t2}")
    a(f"v_sub_u32 v{t2}, v{vRecI}, v{t2}")
    a(f"v_lshl_add_u32 v{vA}, v{t2}, 2, v{t0}")
    a(f"v_mov_b32 v{vP1}, v{vPos0}")
    a(f"v_lshlrev_b32 v{vP4}, 2, v{vPos0}")
    pads_and_readers("f")
    a(f"s_waitcnt vmcnt({2 + NP2 + NE2})")
    if dbg:
        a("s_memtime s[58:59]\ns_waitcnt lgkmcnt(0)\ns_mov_b32 s67, s58")
    a("M_fast_round:")
    for u in range(8): a(f"ds_read_b32 v{vR+u}, v{vA} offset:{L_RW + 4*u}")
    for u in range(8):
        a(f"v_cmp_lt_i32 vcc, {u}, v{vCnt}")
        a("s_mov_b64 exec, vcc")
        a("s_cbranch_execz M_fast_done")
        if u == 0: a("s_waitcnt lgkmcnt(0)")
        a(f"v_and_b32 v{t0}, 0x3fff, v{vR+u}")
        a(f"v_bfe_u32 v{t1}, v{vR+u}, 14, 5")
        a(f"v_lshrrev_b32 v{t2}, 19, v{vR+u}")
        a(f"v_add_u32 v{t2}, v{t2}, v{vEb}")
        if flag("exp_e"): a(f"v_and_b32 v{t2}, 0x3fff, v{t2}")
        if flag("exp_t"): a(f"v_and_b32 v{t0}, 0x7ff, v{t0}")
        a(f"ds_write_b32 v{vP4}, v{t0} offset:{L_LS + 4*u}")
        a(f"ds_write_b8 v{vP1}, v{t1} offset:{L_LQ + u}")
        a(f"ds_write_b32 v{vP4}, v{t2} offset:{L_LE + 4*u}")
    a("s_mov_b64 exec, -1")
    a(f"v_subrev_u32 v{vCnt}, 8, v{vCnt}")
    a(f"v_add_u32 v{vA}, 32, v{vA}")
    a(f"v_add_u32 v{vP4}, 32, v{vP4}")
    a(f"v_add_u32 v{vP1}, 8, v{vP1}")
    a(f"v_cmp_lt_i32 vcc, 0, v{vCnt}")
    a("s_cbranch_vccnz M_fast_round")
    a("M_fast_done:")
    a("s_mov_b64 exec, -1")
    hot = a.l
    a.l = []
    a("M_batch:")
    z = vT + 10
    for k in range(4): a(f"v_mov_b32 v{z+k}, 0")
    a(f"v_lshlrev_b32 v{t0}, 4, v0")
    a(f"v_cmp_gt_u32 vcc, 192, v0")
    a("s_mov_b64 exec, vcc")
    a(f"ds_write_b128 v{t0}, v[{z}:{z+3}] offset:{L_OR}")
    a("s_mov_b64 exec, -1")
    a("s_sub_u32 s37, s35, s36")
    a(f"s_min_u32 s37, s37, {CAP}")
    vJ, vRem, vRa, vP4, vP1 = vT + 10, vT + 11, vT + 3, vT + 12, vT + 13
    a(f"v_sub_u32 v{vJ}, s36, v{vPos0}")
    a(f"v_add_u32 v{vRem}, {CAP}, v{vJ}")
    a(f"v_max_i32 v{vJ}, 0, v{vJ}")
    a(f"v_min_i32 v{vRem}, v{vRem}, v{vCnt}")
    a(f"v_sub_u32 v{vRem}, v{vRem}, v{vJ}")
    a(f"v_add_lshl_u32 v{vRa}, v{vJ}, v{vRecI}, 2")
    a(f"v_add_u32 v{vP1}, v{vPos0}, v{vJ}")
    a(f"v_subrev_u32 v{vP1}, s36, v{vP1}")
    a(f"v_lshlrev_b32 v{vP4}, 2, v{vP1}")
    a(f"s_mov_b32 s52, {WS_REC}")
    vR = vT + 14
    a("M_round:")
    for half in range(2):
        a(f"v_cmp_lt_i32 vcc, {4*half}, v{vRem}")
        a("s_mov_b64 exec, vcc")
        a("s_cbranch_execz M_round_issued")
        a(f"buffer_load_dwordx4 v[{vR+4*half}:{vR+4*half+3}], v{vRa}, s[20:23], s52 offen offset:{16*half}")
    a("M_round_issued:")
    a("s_mov_b64 exec, -1")
    a("s_cmp_eq_u32 s43, 0")
    a("s_cbranch_scc1 M_round_w0")
    side_loads()
    a("s_mov_b32 s43, 0")
    a("s_waitcnt vmcnt(2)")
    a("s_branch M_round_proc")
    a("M_round_w0:")
    a("s_waitcnt vmcnt(0)")
    a("M_round_proc:")
    if dbg:
        a("s_memtime s[58:59]\ns_waitcnt lgkmcnt(0)\ns_mov_b32 s67, s58"); nst[0] = 4
    for u in range(8):
        a(f"v_cmp_lt_i32 vcc, {u}, v{vRem}")
        a("s_mov_b64 exec, vcc")
        a("s_cbranch_execz M_round_done")
        a(f"v_and_b32 v{t0}, 0x3fff, v{vR+u}")
        a(f"v_bfe_u32 v{t1}, v{vR+u}, 14, 5")
        a(f"v_lshrrev_b32 v{t2}, 19, v{vR+u}")
        a(f"v_add_u32 v{t2}, v{t2}, v{vEb}")
        if flag("exp_e"): a(f"v_and_b32 v{t2}, 0x3fff, v{t2}")
        if flag("exp_t"): a(f"v_and_b32 v{t0}, 0x7ff, v{t0}")
        a(f"ds_write_b32 v{vP4}, v{t0} offset:{L_LS + 4*u}")
        a(f"ds_write_b8 v{vP1}, v{t1} offset:{L_LQ + u}")
        a(f"ds_write_b32 v{vP4}, v{t2} offset:{L_LE + 4*u}")
    a("M_round_done:")
    a("s_mov_b64 exec, -1")
    a(f"v_subrev_u32 v{vRem}, 8, v{vRem}")
    a(f"v_add_u32 v{vRa}, 32, v{vRa}")
    a(f"v_add_u32 v{vP4}, 32, v{vP4}")
    a(f"v_add_u32 v{vP1}, 8, v{vP1}")
    a(f"v_cmp_lt_i32 vcc, 0, v{vRem}")
    a("s_cbranch_vccnz M_round")
    pads_and_readers("s")
    a("s_branch M_lists_done")
    cold = a.l
    a.l = hot
    a("M_lists_done:")
    a("s_waitcnt lgkmcnt(0)")
    a("s_barrier")
    stamp()
    def idx_reads(T):
        for q in range(4):
            a(f"ds_read_b32 v{pG+2*q}, v{vLs} offset:{128*T + 32*q}")
        a(f"ds_read_b32 v{pE}, v{vLe} offset:{128*T}")
    def dma_tile(gslot, eslot):
        for q in range(4):
            a(f"s_add_u32 m0, s40, {L_GR + gslot*4096 + q*1024}")
            a("s_nop 0")
            a(f"buffer_load_dwordx4 v[{pG+2*q}:{pG+2*q+1}], s[24:27], 0 idxen offen {opt('gflag', '').replace('_', ' ')} lds")
        a(f"s_add_u32 m0, s41, {eslot*1024}")
        a("s_mov_b64 exec, 0xffff")
        a(f"buffer_load_dwordx4 v[{pE}:{pE+1}], s[16:19], 0 idxen offen {opt('eflag', '').replace('_', ' ')} lds")
        a("s_mov_b64 exec, -1")
    def frag_reads(gs, es):
        a(f"ds_read_b128 v[{vFX}:{vFX+3}], v{vG} offset:{L_GR + gs*4096}")
        a(f"ds_read_b128 v[{vFX+4}:{vFX+7}], v{vG+1} offset:{L_GR + gs*4096}")
        a(f"ds_read_b128 v[{vAE}:{vAE+3}], v{vEA} offset:{es*1024}")
        a(f"ds_read_b128 v[{vAO}:{vAO+3}], v{vO0} offset:{es*1024}")
        a(f"ds_read_b128 v[{vFH}:{vFH+3}], v{vG+2} offset:{L_GR + gs*4096}")
        a(f"ds_read_b128 v[{vFH+4}:{vFH+7}], v{vG+3} offset:{L_GR + gs*4096}")
    idx_reads(0)
    a(f"v_subrev_u32 v{t0}, 64, v{vLq}")
    a(f"ds_read_u8 v{vQ}, v{t0}")
    a(f"ds_read_u8 v{vOHa}, v{t0} offset:32")
    a("s_waitcnt lgkmcnt(2)")
    dma_tile(0, 0)
    idx_reads(1)
    if flag("t1early"):
        a("s_waitcnt lgkmcnt(0)")
        dma_tile(1, 1)
    a("s_waitcnt lgkmcnt(5)")
    a(f"v_lshl_add_u32 v{vQ}, v{vQ}, 1, v{vK+1}")
    a(f"v_lshl_add_u32 v{vOHa}, v{vOHa}, 1, v{vK+2}")
    a("s_mov_b64 exec, 0xff")
    a(f"ds_write_b16 v{vQ}, v{vOHd}")
    a(f"ds_write_b16 v{vOHa}, v{vOHd}")
    a("s_mov_b64 exec, -1")
    T1E = flag("t1early")
    if T1E:
        a("s_waitcnt vmcnt(5) lgkmcnt(0)")
        a("s_barrier")
        frag_reads(0, 0)
        idx_reads(2)
    else:
        a("s_waitcnt vmcnt(0) lgkmcnt(0)")
        a("s_barrier")
        frag_reads(0, 0)
    a("s_cmp_lg_u32 s36, 0")
    a("s_cbranch_scc1 M_noxa")
    a(f"ds_read_b64_tr_b16 v[{vXA}:{vXA+1}], v{vXAa} offset:{L_XA}")
    a(f"ds_read_b64_tr_b16 v[{vXA+2}:{vXA+3}], v{vXAa} offset:{L_XA + 1024}")
    a("M_noxa:")
    if not T1E:
        dma_tile(1, 1)
        idx_reads(2)
    a("s_waitcnt lgkmcnt(0)")
    SPREAD = opt("spread", "1") != "0"
    LATE = {"0": [0, 1, 2, 3, 4], "1": [0, 1], "2": [], "3": [0]}[opt("spread", "1")]
    EARLY = [p for p in range(5) if p not in LATE]
    def dma_part(p, gslot, eslot, filler=None):
        if p < 4:
            a(f"s_add_u32 m0, s40, {L_GR + gslot*4096 + p*1024}")
            a(filler if filler else "s_nop 0")
            a(f"buffer_load_dwordx4 v[{pG+2*p}:{pG+2*p+1}], s[24:27], 0 idxen offen {opt('gflag', '').replace('_', ' ')} lds")
        else:
            a(f"s_add_u32 m0, s41, {eslot*1024}")
            a("s_mov_b64 exec, 0xffff")
            a(f"buffer_load_dwordx4 v[{pE}:{pE+1}], s[16:19], 0 idxen offen {opt('eflag', '').replace('_', ' ')} lds")
            a("s_mov_b64 exec, -1")
            if filler: a(filler)
    for p in LATE: dma_part(p, 0, 2)
    stamp()
    if dbg: a("s_memrealtime s[72:73]\ns_waitcnt lgkmcnt(0)")
    a("s_add_u32 s37, s37, 31")
    a("s_lshr_b32 s37, s37, 5")
    def chain(z, h):
        return [mf(z, vFX, vI, None), mf(z, vFX + 4, vI + 4, z), mf(z, vAE, vC, z), mf(z, vAO, vXA, z),
                mf(h, vFH, vI, None), mf(h, vFH + 4, vI + 4, h)]
    nlab = [0]
    def prio(p):
        if PRIO == "pair": a(f"s_setprio {p}")
        if PRIO == "pairbal":
            nlab[0] += 1
            a(f"s_setprio {p}")
            a(f"s_cbranch_vccz M_pr{nlab[0]}")
            a(f"s_setprio {p + 2}")
            a(f"M_pr{nlab[0]}:")
    if flag("tl"): a("s_memrealtime s[84:85]\ns_waitcnt lgkmcnt(0)")
    a("M_loop:")
    loop_start = len(a.l)
    UNR = int(opt("unr", "6"))
    for k in range(UNR):
        es = k % 3; es1 = (k + 1) % 3; gs1 = (k + 1) % 2
        gs2 = k % 2; es2 = (k + 2) % 3
        z, h = vZ, vHV
        a.c(f"---- position {k}: e/one-hot slot {es} ----")
        if PRIO == "bal" and k % 2 == 0:
            a(f"s_cmp_ge_u32 s37, 9\ns_cbranch_scc1 M_prio_done{k}\ns_setprio 2\ns_cmp_ge_u32 s37, 5\ns_cbranch_scc1 M_prio_done{k}\ns_setprio 1\ns_cmp_ge_u32 s37, 2\ns_cbranch_scc1 M_prio_done{k}\ns_setprio 0\nM_prio_done{k}:")
        if PRIO == "pairbal":
            a(f"s_cmp_gt_u32 s37, {opt('X', '4')}")
            a("s_cselect_b64 vcc, -1, 0")
        early = list(EARLY)
        ch = chain(z, h)
        SKIP = flag("skip")
        nsk = [0]
        def guarded(cond, fn):
            if not SKIP: fn(); return
            nsk[0] += 1
            a(f"s_cmp_lt_u32 s37, {cond}")
            a(f"s_cbranch_scc1 M_sk{k}_{cond}_{nsk[0]}")
            fn()
            a(f"M_sk{k}_{cond}_{nsk[0]}:")
        _dp = dma_part
        def dma_early(p): guarded(3, lambda: _dp(p, gs2, es2))
        if len(early) <= 3:
            if early: dma_early(early.pop(0))
            a("s_waitcnt lgkmcnt(0)")
            for s_ in range(2):
                a(f"ds_read_b64_tr_b16 v[{vSO+4*s_}:{vSO+4*s_+1}], v{vT0} offset:{es*1024 + s_*512}")
                a(f"ds_read_b64_tr_b16 v[{vSO+4*s_+2}:{vSO+4*s_+3}], v{vT0} offset:{es*1024 + s_*512 + 256}")
            for x in ch[0:4]: a(x)
            if early: dma_early(early.pop(0))
            for x in ch[4:6]: a(x)
            while early: dma_early(early.pop(0))
        else:
            a("s_waitcnt lgkmcnt(0)")
            for s_ in range(2):
                a(f"ds_read_b64_tr_b16 v[{vSO+4*s_}:{vSO+4*s_+1}], v{vT0} offset:{es*1024 + s_*512}")
                a(f"ds_read_b64_tr_b16 v[{vSO+4*s_+2}:{vSO+4*s_+3}], v{vT0} offset:{es*1024 + s_*512 + 256}")
            for j, x in enumerate(ch):
                a(x)
                if early and j < 5: dma_part(early.pop(0), gs2, es2)
            while early: dma_part(early.pop(0), gs2, es2)
        if SKIP:
            a("s_cmp_lt_u32 s37, 3")
            a(f"s_cbranch_scc1 M_w0_{k}")
            a("s_waitcnt vmcnt(5) lgkmcnt(0)")
            a(f"s_branch M_w1_{k}")
            a(f"M_w0_{k}:")
            a("s_waitcnt vmcnt(0) lgkmcnt(0)")
            a(f"M_w1_{k}:")
        else:
            a("s_waitcnt vmcnt(5) lgkmcnt(0)")
        a("s_barrier")
        frag_reads(gs1, es1)
        T3 = k + 3
        for q in range(4):
            a(f"ds_read_b32 v{pG+2*q}, v{vLs} offset:{128*T3 + 32*q}")
        a(f"ds_read_b32 v{pE}, v{vLe} offset:{128*T3}")
        a(f"ds_read_u8 v{vQ}, v{vLq} offset:{32*k}")
        if k == 1:
            a("s_cmp_eq_u32 s53, 0")
            a("s_cbranch_scc1 M_xu_done")
            xu_load()
            a("s_mov_b32 s53, 0")
            a("M_xu_done:")
        ex = [f"v_exp_f32 v{z+r}, v{z+r}" for r in range(16)]
        ad = [f"v_add_f32 v{z+r}, 1.0, v{z+r}" for r in range(16)]
        rc = [f"v_rcp_f32 v{z+r}, v{z+r}" for r in range(16)]
        mu = [f"v_mul_f32 v{z+r}, v{z+r}, v{h+r}" for r in range(16)]
        cv = [f"v_cvt_pk_bf16_f32 v{vMSG+r}, v{z+2*r}, v{z+2*r+1}" for r in range(8)]
        for x in ex: a(x)
        prio(0)
        for x in ad: a(x)
        prio(1)
        a("s_waitcnt lgkmcnt(0)")
        late = list(LATE)
        pos = {5: [0, 3, 6, 9, 12], 2: [1, 9], 1: [4], 0: []}[len(late)]
        r0 = 0
        for p, at in zip(late, pos):
            for x in rc[r0:at]: a(x)
            if SKIP:
                a(rc[at])
                guarded(4, lambda: _dp(p, gs1, es))
            else:
                dma_part(p, gs1, es, rc[at])
            r0 = at + 1
        for x in rc[r0:16]: a(x)
        a(f"v_lshl_add_u32 v{vOHa}, v{vQ}, 1, v{vK+es}")
        a("s_mov_b64 exec, 0xffff")
        a(f"ds_write_b16 v{vOHa}, v{vOHd}")
        a("s_mov_b64 exec, -1")
        prio(0)
        for x in mu: a(x)
        prio(1)
        for x in cv: a(x)
        a("s_sub_u32 s37, s37, 1")
        a(mf(vACC, vSO, vMSG, vACC))
        a(mf(vACC, vSO + 4, vMSG + 4, vACC))
        a("s_cmp_eq_u32 s37, 0")
        a("s_cbranch_scc1 M_loop_done")
    a(f"v_add_u32 v{vLs}, {128*UNR}, v{vLs}")
    a(f"v_add_u32 v{vLe}, {128*UNR}, v{vLe}")
    a(f"v_add_u32 v{vLq}, {32*UNR}, v{vLq}")
    a("s_branch M_loop")
    abl = [x[6:] for x in ARGS if x.startswith("--abl_")]
    if abl:
        body = a.l[loop_start:]
        def drop(l):
            t = l.strip()
            if "dma" in abl and t.startswith("buffer_load") and " lds" in t: return True
            if "valu" in abl and t.startswith(("v_exp", "v_add_f32", "v_rcp", "v_mul_f32", "v_cvt_pk")): return True
            if "mfma" in abl and t.startswith("v_mfma"): return True
            if "bar" in abl and t.startswith("s_barrier"): return True
            if "frag" in abl and t.startswith("ds_read_b128"): return True
            if "tr" in abl and t.startswith("ds_read_b64_tr"): return True
            if "idx" in abl and t.startswith(("ds_read_b32", "ds_read_u8")): return True
            if "oh" in abl and t.startswith("ds_write_b16"): return True
            if "dmae" in abl and t.startswith("buffer_load") and "s[16:19]" in t: return True
            if "dmag" in abl and t.startswith("buffer_load") and "s[24:27]" in t: return True
            return False
        body = [l for l in body if not drop(l)]
        if "vmw" in abl: body = [l.replace("vmcnt(5) ", "") for l in body]
        a.l[loop_start:] = body
    a("M_loop_done:")
    if flag("tl"): a("s_memrealtime s[86:87]\ns_waitcnt lgkmcnt(0)")
    stamp()
    if dbg: a("s_memrealtime s[74:75]\ns_waitcnt lgkmcnt(0)")
    a("s_cmp_eq_u32 s53, 0")
    a("s_cbranch_scc1 M_xu_done2")
    xu_load()
    a("s_mov_b32 s53, 0")
    a("M_xu_done2:")
    a("s_waitcnt vmcnt(0) lgkmcnt(0)")
    a("s_barrier")
    a(f"s_add_u32 s36, s36, {CAP}")
    a("s_cmp_lt_u32 s36, s35")
    a("s_cbranch_scc1 M_batch")
    hot = a.l
    a.l = cold
    a("M_empty:")
    xu_load()
    a("s_waitcnt vmcnt(0)")
    a("s_branch M_epilogue")
    cold = a.l
    a.l = hot
    a("M_epilogue:")
    a(f"v_mul_u32_u24 v{t0}, {4*AGG_STRIDE}, v{vH}")
    a(f"v_lshl_add_u32 v{t0}, v{vE5}, 2, v{t0}")
    a("s_lshl_b32 s39, s32, 7")
    a(f"v_add_u32 v{t0}, s39, v{t0}")
    a("s_nop 7")
    for r in range(8):
        a(f"ds_write_b32 v{t0}, v{vACC+r} offset:{L_GR + (8*(r >> 2) + (r & 3))*AGG_STRIDE}")
    a(f"v_lshrrev_b32 v{t0}, 4, v0")
    a(f"v_and_b32 v{t1}, 15, v0")
    a(f"v_mul_u32_u24 v{t2}, {AGG_STRIDE}, v{t0}")
    a(f"v_lshl_add_u32 v{t2}, v{t1}, 5, v{t2}")
    a(f"v_add_u32 v{t3}, s33, v{t0}")
    a(f"v_lshlrev_b32 v{t3}, 8, v{t3}")
    a(f"v_lshl_add_u32 v{t3}, v{t1}, 4, v{t3}")
    a(f"s_mov_b32 s38, {NEG_LOG2E:#x}")
    a("s_waitcnt lgkmcnt(0)")
    a("s_barrier")
    y = vZ; w_ = vHV
    a(f"ds_read_b128 v[{y}:{y+3}], v{t2} offset:{L_GR}")
    a(f"ds_read_b128 v[{y+4}:{y+7}], v{t2} offset:{L_GR + 16}")
    for i in range(4):
        a(f"v_lshlrev_b32 v{w_+2*i}, 16, v{vXU+i}")
        a(f"v_and_b32 v{w_+2*i+1}, 0xffff0000, v{vXU+i}")
    a("s_waitcnt lgkmcnt(0)")
    for r in range(8): a(f"v_add_f32 v{y+r}, v{y+r}, v{w_+r}")
    for r in range(8): a(f"v_mul_f32 v{w_+r}, s38, v{y+r}")
    for r in range(8): a(f"v_exp_f32 v{w_+r}, v{w_+r}")
    for r in range(8): a(f"v_add_f32 v{w_+r}, 1.0, v{w_+r}")
    for r in range(8): a(f"v_rcp_f32 v{w_+r}, v{w_+r}")
    a("s_nop 0")
    for r in range(8): a(f"v_mul_f32 v{y+r}, v{y+r}, v{w_+r}")
    for r in range(4): a(f"v_cvt_pk_bf16_f32 v{vMSG+r}, v{y+2*r}, v{y+2*r+1}")
    if dbg:
        stamp()
        a("s_memrealtime s[62:63]\ns_waitcnt lgkmcnt(0)")
        a("s_mov_b32 s52, s10\ns_and_b32 s53, s11, 0xffff\ns_mov_b32 s54, 0x1000000\ns_mov_b32 s55, 0x20000")
        a(f"s_lshl_b32 s56, s2, 2\ns_add_u32 s56, s56, s32\ns_lshl_b32 s56, s56, 6\ns_add_u32 s56, s56, {DBG2:#x}")
        vals = [64, 65, 66, 67, 68, 69, 70, 71, 60, 62, 35, 72, 74]
        a("s_mov_b64 s[50:51], exec\ns_mov_b64 exec, 1")
        for i, r in enumerate(vals):
            a(f"v_mov_b32 v{vT+20}, s{r}")
            a(f"v_mov_b32 v{vT+21}, 0")
            a(f"buffer_store_dword v{vT+20}, v{vT+21}, s[52:55], s56 offen offset:{4*i}")
        a("s_mov_b64 exec, s[50:51]")
    if flag("tl"):
        a("s_memrealtime s[70:71]\ns_waitcnt lgkmcnt(0)")
        a("s_mov_b32 s76, s10\ns_and_b32 s77, s11, 0xffff\ns_mov_b32 s78, 0x1000000\ns_mov_b32 s79, 0x20000")
        a(f"s_lshl_b32 s75, s2, 2\ns_add_u32 s75, s75, s32\ns_lshl_b32 s75, s75, 4\ns_add_u32 s75, s75, {DBG2:#x}")
        a("s_mov_b64 s[80:81], exec\ns_mov_b64 exec, 1")
        a(f"v_mov_b32 v{vT+18}, s68\nv_mov_b32 v{vT+19}, s70\nv_mov_b32 v{vT+20}, s84\nv_mov_b32 v{vT+21}, s86\nv_mov_b32 v{vT+22}, 0")
        a(f"buffer_store_dwordx4 v[{vT+18}:{vT+21}], v{vT+22}, s[76:79], s75 offen")
        a("s_mov_b64 exec, s[80:81]")
    a(f"v_cmp_gt_u32 vcc, s34, v{t0}")
    a("s_mov_b64 exec, vcc")
    a("s_cbranch_execz M_end")
    a(f"buffer_store_dwordx4 v[{vMSG}:{vMSG+3}], v{t3}, s[28:31], 0 offen {opt('oflag', '').replace('_', ' ')}")
    a("M_end:")
    a("s_endpgm")
    a.l += cold
    a("M_last:")
    return a.text() + descriptor(KNAME, NVGPR, 96 if (dbg or flag("tl")) else 60)

HEAD = f"""; Edge-gated message passing (gated graph conv) for gfx950.
;                 [-log2e * x@B | x@V], -log2e * x@A, x@U; C fragments in MFMA layout
;   main kernel : per bucket of 13/14 destination nodes: gather node-table rows and e_attr rows into LDS,
;                 gate pre-activation on the matrix cores, sigmoid gate, one-hot segment sum, silu
; @launch kernel=prep_kernel grid=({P_GRID},1,1) block=({P_BLOCK},1,1) lds={P_LDS}
; @launch kernel={KNAME} grid=({NB},1,1) block=(256,1,1) lds={M_LDS}
.amdgcn_target "amdgcn-amd-amdhsa--gfx950"
.text
"""

def tl_kernel():
    a = A()
    header(a, "tl_kernel")
    a("s_cmp_ge_u32 s2, 1\ns_cbranch_scc1 T_end")
    a("s_load_dwordx4 s[4:7], s[0:1], 64\ns_waitcnt lgkmcnt(0)")
    a("s_mov_b32 s8, s4\ns_and_b32 s9, s5, 0xffff\ns_mov_b32 s10, 256\ns_mov_b32 s11, 0x20000")
    a("s_mov_b32 s12, s6\ns_and_b32 s13, s7, 0xffff\ns_mov_b32 s14, 0x1000000\ns_mov_b32 s15, 0x20000")
    a("v_mov_b32 v10, 0")
    a(f"v_lshlrev_b32 v1, 6, v0\nv_add_u32 v1, {DBG2}, v1")
    a("v_cmp_gt_u32 vcc, 768, v0\ns_mov_b64 exec, vcc")
    a("buffer_load_dwordx4 v[4:7], v1, s[12:15], 0 offen\ns_waitcnt vmcnt(0)")
    a("v_not_b32 v8, v4\nbuffer_atomic_umax v8, v10, s[8:11], 0 offen offset:0")
    a("buffer_atomic_umax v4, v10, s[8:11], 0 offen offset:4")
    a("buffer_atomic_umax v5, v10, s[8:11], 0 offen offset:8")
    a("v_not_b32 v8, v6\nbuffer_atomic_umax v8, v10, s[8:11], 0 offen offset:12")
    a("buffer_atomic_umax v6, v10, s[8:11], 0 offen offset:16")
    a("v_not_b32 v8, v7\nbuffer_atomic_umax v8, v10, s[8:11], 0 offen offset:20")
    a("buffer_atomic_umax v7, v10, s[8:11], 0 offen offset:24")
    a("s_mov_b64 exec, -1")
    a(f"v_lshlrev_b32 v1, 7, v0\nv_add_u32 v1, {DBG1}, v1")
    a(f"v_cmp_gt_u32 vcc, {NCH + 2*P_NG}, v0\ns_mov_b64 exec, vcc")
    a("s_cbranch_execz T_end")
    a("buffer_load_dwordx2 v[4:5], v1, s[12:15], 0 offen\ns_waitcnt vmcnt(0)")
    a("v_not_b32 v8, v4\nbuffer_atomic_umax v8, v10, s[8:11], 0 offen offset:28")
    a("buffer_atomic_umax v5, v10, s[8:11], 0 offen offset:32")
    a(f"v_cmp_gt_u32 vcc, {NCH}, v0\ns_mov_b64 exec, vcc")
    a("s_cbranch_execz T_end")
    a("buffer_atomic_umax v5, v10, s[8:11], 0 offen offset:36")
    a("T_end:\ns_endpgm")
    return a.text() + descriptor("tl_kernel", 16, 32)

def build(dbg=False):
    h = HEAD
    if flag("tl"):
        h = h.replace(".amdgcn_target", "; @launch kernel=tl_kernel grid=(1,1,1) block=(1024,1,1) lds=0\n.amdgcn_target")
    return h + prep_kernel(dbg) + main_kernel(dbg) + (tl_kernel() if flag("tl") else "")

if __name__ == "__main__":
    args = [x for x in ARGS if not x.startswith("--")]
    out = args[0] if args else "gather_scatter__edge_featured_mpnn_egc__graph.s"
    open(out, "w").write(build(dbg=flag("dbg")))
    print("wrote", out, "M_LDS", M_LDS, "P_LDS", P_LDS)
```

```python
import sys

N = 10000; E = 320000
NB = 768
NCH = 64; CH = 5000
MAGIC_G = 214749
WS_T = 0
WS_W = 0x60000
WS_REC = 0x80000
MAGIC_R = 6554
WS_SZ = 0x200000
WS_TAB = 0x200000
WS_XA = 0x700000
WS_XU = 0x980000
DBG2, DBG1 = 0xC00000, 0xE00000
NEG_LOG2E = 0xBFB8AA3B
KNAME = "gather_scatter__edge_featured_mpnn_egc__graph_kernel"
ARGS = sys.argv[1:]
def flag(n): return ("--" + n) in ARGS
def opt(n, d):
    for x in ARGS:
        if x.startswith("--" + n + "="): return x.split("=", 1)[1]
    return d

S0 = int(opt('s0', '16')); S1 = int(opt('s1', '13'))
assert S0 <= 16 and S1 <= 16 and 40 - S0 - S1 <= 16

class A:
    def __init__(self):
        self.l = []
    def __call__(self, s=""):
        for x in s.split("\n"):
            x = x.strip()
            if not x: continue
            if x.endswith(":"):
                self.l.append(x)
            else:
                self.l.append("    " + x)
    def c(self, s):
        self.l.append("    ; " + s)
    def raw(self, s):
        self.l.append(s)
    def text(self):
        return "\n".join(self.l) + "\n"

def srd(a, r, lo, hi, size, stride=0, add=0):
    if add:
        a(f"s_add_u32 s{r}, s{lo}, {add:#x}")
        a(f"s_addc_u32 s{r+1}, s{hi}, 0")
        a(f"s_and_b32 s{r+1}, s{r+1}, 0xffff")
    else:
        a(f"s_mov_b32 s{r}, s{lo}")
        a(f"s_and_b32 s{r+1}, s{hi}, 0xffff")
    if stride:
        a(f"s_or_b32 s{r+1}, s{r+1}, {stride << 16:#x}")
    a(f"s_mov_b32 s{r+2}, {size:#x}")
    a(f"s_mov_b32 s{r+3}, 0x20000")

def wave_scan(a, v):
    for sh in (1, 2, 4, 8):
        a("s_nop 1")
        a(f"v_add_u32_dpp v{v}, v{v}, v{v} row_shr:{sh} row_mask:0xf bank_mask:0xf bound_ctrl:1")
    a("s_nop 1")
    a(f"v_add_u32_dpp v{v}, v{v}, v{v} row_bcast:15 row_mask:0xa bank_mask:0xf")
    a("s_nop 1")
    a(f"v_add_u32_dpp v{v}, v{v}, v{v} row_bcast:31 row_mask:0xc bank_mask:0xf")
    a("s_nop 1")

def header(a, name):
    a.raw(f".globl {name}")
    a.raw(".p2align 8")
    a.raw(f".type {name},@function")
    a.raw(f"{name}:")

def descriptor(name, vgpr, sgpr):
    acc = (vgpr + 3) // 4 * 4
    return f""".section .rodata,"a"
.p2align 6
.amdhsa_kernel {name}
  .amdhsa_next_free_vgpr {vgpr}
  .amdhsa_next_free_sgpr {sgpr}
  .amdhsa_accum_offset {acc}
  .amdhsa_group_segment_fixed_size 0
  .amdhsa_kernarg_size 80
  .amdhsa_user_sgpr_count 2
  .amdhsa_user_sgpr_kernarg_segment_ptr 1
  .amdhsa_system_sgpr_workgroup_id_x 1
  .amdhsa_float_denorm_mode_32 3
.end_amdhsa_kernel
.text
"""

def mf(d, x, y, c):
    cs = "0" if c is None else f"v[{c}:{c+15}]"
    return f"v_mfma_f32_32x32x16_bf16 v[{d}:{d+15}], v[{x}:{x+3}], v[{y}:{y+3}], {cs}"

XGRP = 1088
XSLOT = 8 * XGRP

def xfrag_addr(a, d0, d1, row, h, t0, t1, t2):
    a(f"v_lshrrev_b32 v{t0}, 2, v{row}")
    a(f"v_mul_u32_u24 v{t0}, {XGRP}, v{t0}")
    a(f"v_and_b32 v{t1}, 3, v{row}")
    a(f"v_lshl_add_u32 v{t0}, v{t1}, 8, v{t0}")
    a(f"v_xor_b32 v{t2}, v{h}, v{t1}")
    a(f"v_lshl_add_u32 v{d0}, v{t2}, 4, v{t0}")
    a(f"v_xor_b32 v{t2}, 2, v{t2}")
    a(f"v_lshl_add_u32 v{d1}, v{t2}, 4, v{t0}")

P_BLOCK = 640
P_NG = 79
P_GRID = NCH + 2 * P_NG + 1
P_HIST, P_START, P_TOT, P_SORT = 0, 12288, 24576, 24640
G_W0, G_W1, G_X = 0, 32768, 65536
G_ST = G_X + 4 * XSLOT
P_LDS = G_ST + 8 * 4096

def prep_kernel(dbg=False):
    SF = opt("sflag", "").replace("_", " ")
    SFR = opt("rflag", opt("sflag", "")).replace("_", " ")
    a = A()
    nst = [0]
    def stamp():
        if not dbg: return
        a("s_waitcnt lgkmcnt(0)\ns_memtime s[40:41]\ns_waitcnt lgkmcnt(0)")
        a(f"s_mov_b32 s{50+nst[0]}, s40")
        nst[0] += 1
    def dump(role):
        if not dbg: return
        while nst[0] < 8: stamp()
        a("s_memrealtime s[46:47]\ns_load_dwordx2 s[42:43], s[0:1], 72\ns_waitcnt lgkmcnt(0)")
        a("s_mov_b32 s60, s42\ns_and_b32 s61, s43, 0xffff\ns_mov_b32 s62, 0x1000000\ns_mov_b32 s63, 0x20000")
        a("v_lshrrev_b32 v158, 6, v0\ns_nop 0\nv_readfirstlane_b32 s48, v158\ns_nop 3")
        a(f"s_lshl_b32 s49, s2, 4\ns_add_u32 s49, s49, s48\ns_lshl_b32 s49, s49, 6\ns_add_u32 s49, s49, {DBG1:#x}")
        a("s_mov_b64 exec, 1")
        for i, r in enumerate([50,51,52,53,54,55,56,57,44,46]):
            a(f"v_mov_b32 v158, s{r}\nv_mov_b32 v159, 0\nbuffer_store_dword v158, v159, s[60:63], s49 offen offset:{4*i}")
        a(f"v_mov_b32 v158, {role}\nv_mov_b32 v159, 0\nbuffer_store_dword v158, v159, s[60:63], s49 offen offset:40")
        nst[0] = 0
    TL = flag("tl")
    def tl_end():
        if not TL: return
        a("s_waitcnt vmcnt(0) lgkmcnt(0)")
        a("s_memrealtime s[70:71]\ns_load_dwordx2 s[72:73], s[0:1], 72\ns_waitcnt lgkmcnt(0)")
        a("s_mov_b32 s76, s72\ns_and_b32 s77, s73, 0xffff\ns_mov_b32 s78, 0x1000000\ns_mov_b32 s79, 0x20000")
        a("v_lshrrev_b32 v158, 6, v0\ns_nop 0\nv_readfirstlane_b32 s74, v158\ns_nop 3")
        a(f"s_lshl_b32 s75, s2, 4\ns_add_u32 s75, s75, s74\ns_lshl_b32 s75, s75, 3\ns_add_u32 s75, s75, {DBG1:#x}")
        a("s_mov_b64 exec, 1\nv_mov_b32 v156, s68\nv_mov_b32 v157, s70\nv_mov_b32 v159, 0")
        a("buffer_store_dwordx2 v[156:157], v159, s[76:79], s75 offen")
    header(a, "prep_kernel")
    if TL: a("s_memrealtime s[68:69]")
    if dbg:
        a("s_memrealtime s[44:45]")
        stamp()
    a(f"s_cmp_ge_u32 s2, {P_GRID}")
    a("s_cbranch_scc1 P_end")
    a(f"s_cmp_ge_u32 s2, {NCH + 2*P_NG}")
    a("s_cbranch_scc1 P_weights")
    a(f"s_cmp_ge_u32 s2, {NCH}")
    a("s_cbranch_scc1 P_gemm")
    a("s_load_dwordx4 s[4:7], s[0:1], 16")
    a("s_load_dwordx2 s[8:9], s[0:1], 72")
    a("v_lshlrev_b32 v2, 4, v0")
    a("v_mov_b32 v4, 0\nv_mov_b32 v5, 0\nv_mov_b32 v6, 0\nv_mov_b32 v7, 0")
    a("ds_write_b128 v2, v[4:7]")
    a("ds_write_b128 v2, v[4:7] offset:10240")
    a("v_lshlrev_b32 v1, 4, v0")
    a(f"s_mul_i32 s3, s2, {CH*4}")
    a(f"s_mov_b32 s20, {MAGIC_G}")
    a("s_movk_i32 s21, 625")
    a(f"s_movk_i32 s28, {-S0}")
    a(f"s_movk_i32 s31, {-S1}")
    a("v_lshrrev_b32 v2, 6, v0")
    a("v_mov_b32 v3, 1")
    a("v_readfirstlane_b32 s22, v2")
    a("s_waitcnt lgkmcnt(0)")
    srd(a, 16, 6, 7, E * 4)
    a(f"v_cmp_gt_u32 vcc, {CH//8}, v0")
    a("s_mov_b64 exec, vcc")
    a(f"s_add_u32 s33, s3, {CH*2}")
    a("buffer_load_dwordx4 v[8:11], v1, s[16:19], s3 offen")
    a("buffer_load_dwordx4 v[12:15], v1, s[16:19], s33 offen")
    srd(a, 12, 4, 5, E * 4)
    a("buffer_load_dwordx4 v[16:19], v1, s[12:15], s3 offen")
    a("buffer_load_dwordx4 v[20:23], v1, s[12:15], s33 offen")
    srd(a, 24, 8, 9, WS_SZ)
    a("v_lshlrev_b32 v64, 21, v0")
    a("s_barrier")
    stamp()
    a("s_waitcnt vmcnt(2)")
    vD, vS, vBk, vAd, vRk, vRec, vT = 8, 16, 24, 32, 40, 48, 56
    for i in range(8): a(f"v_mul_u32_u24 v{vBk+i}, s20, v{vD+i}")
    for i in range(8): a(f"v_lshrrev_b32 v{vBk+i}, 23, v{vBk+i}")
    for i in range(8): a(f"v_mad_u32_u24 v{vRec+i}, v{vBk+i}, s21, 15")
    for i in range(8): a(f"v_lshrrev_b32 v{vRec+i}, 4, v{vRec+i}")
    for i in range(8): a(f"v_sub_u32 v{vRec+i}, v{vD+i}, v{vRec+i}")
    if S0 == 16 and S1 == 16:
        for i in range(8): a(f"v_lshrrev_b32 v{vT+i}, 4, v{vRec+i}")
        for i in range(8): a(f"v_and_b32 v{vRec+i}, 15, v{vRec+i}")
    else:
        for i in range(8): a(f"v_add_u32 v{vT+i}, {64 - S0}, v{vRec+i}")
        for i in range(8): a(f"v_add_u32 v{vAd+i}, {64 - S0 - S1}, v{vRec+i}")
        for i in range(8): a(f"v_lshrrev_b32 v{vT+i}, 6, v{vT+i}")
        for i in range(8): a(f"v_lshrrev_b32 v{vAd+i}, 6, v{vAd+i}")
        for i in range(8): a(f"v_mad_i32_i24 v{vRec+i}, v{vT+i}, s28, v{vRec+i}")
        for i in range(8): a(f"v_mad_i32_i24 v{vRec+i}, v{vAd+i}, s31, v{vRec+i}")
        for i in range(8): a(f"v_add_u32 v{vT+i}, v{vT+i}, v{vAd+i}")
    for i in range(8): a(f"v_lshl_add_u32 v{vBk+i}, v{vT+i}, 8, v{vBk+i}")
    a("s_waitcnt vmcnt(0)")
    stamp()
    a(f"s_movk_i32 s29, {6554}")
    for i in range(8): a(f"v_mul_u32_u24 v{vT+i}, s29, v{vS+i}")
    for i in range(8): a(f"v_lshrrev_b32 v{vT+i}, 24, v{vT+i}")
    for i in range(8): a(f"v_lshl_add_u32 v{vAd+i}, v{vBk+i}, 2, v{vT+i}")
    for i in range(8): a(f"v_lshlrev_b32 v{vAd+i}, 2, v{vAd+i}")
    for i in range(8): a(f"ds_add_rtn_u32 v{vRk+i}, v{vAd+i}, v3")
    for i in range(8): a(f"v_lshl_or_b32 v{vRec+i}, v{vRec+i}, 14, v{vS+i}")
    for i in range(8):
        a(f"s_mov_b32 s30, {((i & 3) + (CH // 2) * (i >> 2)) << 19:#x}")
        a(f"v_add3_u32 v{vRec+i}, v{vRec+i}, v64, s30")
    a("s_waitcnt lgkmcnt(0)")
    stamp()
    a("s_barrier")
    c0, p0 = 68, 76
    a("s_cmp_ge_u32 s22, 6")
    a("s_cbranch_scc1 P_scan1_done")
    a("v_lshlrev_b32 v2, 5, v0")
    a(f"ds_read_b128 v[{c0}:{c0+3}], v2 offset:{P_HIST}")
    a(f"ds_read_b128 v[{c0+4}:{c0+7}], v2 offset:{P_HIST+16}")
    a("s_waitcnt lgkmcnt(0)")
    a(f"v_mov_b32 v{p0}, 0")
    a(f"v_mov_b32 v{p0+1}, v{c0}")
    for k in range(2, 8): a(f"v_add_u32 v{p0+k}, v{p0+k-1}, v{c0+k-1}")
    a(f"v_add_u32 v84, v{p0+7}, v{c0+7}")
    a("v_mov_b32 v85, v84")
    wave_scan(a, 85)
    a("v_readlane_b32 s23, v85, 63")
    a("v_sub_u32 v85, v85, v84")
    a("s_lshl_b32 s30, s22, 2")
    a("v_mov_b32 v87, s30")
    a("v_mov_b32 v86, s23")
    a(f"ds_write_b32 v87, v86 offset:{P_TOT}")
    a("s_waitcnt lgkmcnt(0)")
    a("P_scan1_done:")
    a("s_barrier")
    a("s_cmp_ge_u32 s22, 6")
    a("s_cbranch_scc1 P_noscan")
    a("v_mov_b32 v87, 0")
    a(f"ds_read_b128 v[88:91], v87 offset:{P_TOT}")
    a(f"ds_read_b64 v[92:93], v87 offset:{P_TOT+16}")
    a("s_waitcnt lgkmcnt(0)")
    a("s_mov_b32 s30, 0")
    for k in range(5):
        a(f"v_readfirstlane_b32 s23, v{88+k}")
        a(f"s_cmp_gt_u32 s22, {k}")
        a("s_nop 1")
        a("s_cselect_b32 s23, s23, 0")
        a("s_add_u32 s30, s30, s23")
    a("v_add_u32 v85, s30, v85")
    for k in range(8): a(f"v_add_u32 v{p0+k}, v{p0+k}, v85")
    a(f"ds_write_b128 v2, v[{p0}:{p0+3}] offset:{P_START}")
    a(f"ds_write_b128 v2, v[{p0+4}:{p0+7}] offset:{P_START+16}")
    for b in range(2):
        cc = c0 + 4*b; pp = p0 + 4*b; o = 88 + 2*b
        a(f"v_add3_u32 v86, v{cc}, v{cc+1}, v{cc+2}")
        a(f"v_add_u32 v86, v86, v{cc+3}")
        a(f"v_lshl_or_b32 v{o}, v86, 16, v{pp}")
        for k in range(3): a(f"v_min_u32 v{cc+k}, 0xff, v{cc+k}")
        a(f"v_lshl_or_b32 v{o+1}, v{cc+1}, 8, v{cc}")
        a(f"v_lshl_or_b32 v{o+1}, v{cc+2}, 16, v{o+1}")
    a(f"s_mul_i32 s23, s2, {NB*8}")
    a("v_lshlrev_b32 v86, 4, v0")
    a(f"buffer_store_dwordx4 v[88:91], v86, s[24:27], s23 offen offset:{WS_T} {SFR}")
    a("s_waitcnt lgkmcnt(0)")
    a("P_noscan:")
    a("s_barrier")
    stamp()
    for i in range(8): a(f"ds_read_b32 v{vT+i}, v{vAd+i} offset:{P_START}")
    a("s_waitcnt lgkmcnt(0)")
    for i in range(8): a(f"v_add_lshl_u32 v{vT+i}, v{vT+i}, v{vRk+i}, 2")
    for i in range(8): a(f"ds_write_b32 v{vT+i}, v{vRec+i} offset:{P_SORT}")
    a("s_waitcnt lgkmcnt(0)")
    a("s_barrier")
    a(f"ds_read_b128 v[4:7], v1 offset:{P_SORT}")
    a(f"ds_read_b128 v[8:11], v1 offset:{P_SORT + CH*2}")
    a(f"s_add_u32 s3, s3, {WS_REC}")
    a(f"s_add_u32 s33, s3, {CH*2}")
    a("s_waitcnt lgkmcnt(1)")
    a(f"buffer_store_dwordx4 v[4:7], v1, s[24:27], s3 offen {SFR}")
    a("s_waitcnt lgkmcnt(0)")
    a(f"buffer_store_dwordx4 v[8:11], v1, s[24:27], s33 offen {SFR}")
    stamp()
    if dbg: a("s_waitcnt vmcnt(0)")
    dump(1)
    tl_end()
    a("s_endpgm")
    a("P_gemm:")
    nst[0] = 1
    a("s_load_dwordx2 s[4:5], s[0:1], 0")
    a("s_load_dwordx4 s[8:11], s[0:1], 32")
    a("s_load_dwordx2 s[34:35], s[0:1], 48")
    a("s_load_dwordx2 s[6:7], s[0:1], 72")
    a("v_lshrrev_b32 v2, 6, v0")
    a("v_and_b32 v1, 63, v0")
    a("v_readfirstlane_b32 s22, v2")
    a(f"s_sub_u32 s3, s2, {NCH}")
    a(f"s_cmp_ge_u32 s3, {P_NG}")
    a("s_cselect_b32 s36, 1, 0")
    a(f"s_cselect_b32 s37, {P_NG}, 0")
    a("s_sub_u32 s3, s3, s37")
    a("s_cmp_ge_u32 s22, 8")
    a("s_cbranch_scc1 P_pf" if (flag("epf") or flag("cpf")) else "s_cbranch_scc1 P_end")
    a("s_lshr_b32 s23, s22, 2")
    a("s_and_b32 s28, s22, 3")
    a("s_lshl_b32 s3, s3, 2")
    a("s_add_u32 s3, s3, s23")
    a("s_lshl_b32 s29, s3, 5")
    a("v_lshrrev_b32 v3, 4, v1")
    a("v_and_b32 v4, 15, v1")
    a("v_lshlrev_b32 v5, 2, v3")
    a("v_xor_b32 v5, v5, v4")
    a("v_lshlrev_b32 v5, 4, v5")
    a("v_lshl_add_u32 v5, v3, 8, v5")
    a("v_xor_b32 v4, v4, v3")
    a("v_lshlrev_b32 v7, 4, v4")
    a("v_mov_b32 v9, v7")
    a("s_waitcnt lgkmcnt(0)")
    sW1 = 44 if not dbg else 72
    a("s_cmp_eq_u32 s36, 0")
    a("s_cselect_b32 s30, 32768, 0")
    a(f"s_cselect_b32 s{sW1}, s10, s8\ns_cselect_b32 s{sW1+1}, s11, s9")
    a("s_add_u32 s16, s34, s30\ns_addc_u32 s17, s35, 0")
    a("s_and_b32 s17, s17, 0xffff")
    a("s_mov_b32 s18, 32768\ns_mov_b32 s19, 0x20000")
    a(f"s_and_b32 s{sW1+1}, s{sW1+1}, 0xffff")
    a(f"s_mov_b32 s{sW1+2}, 32768\ns_mov_b32 s{sW1+3}, 0x20000")
    srd(a, 12, 4, 5, N, stride=256)
    a("s_lshl_b32 s33, s22, 12")
    a("s_lshl_b32 s30, s28, 3")
    a("s_add_u32 s30, s30, s29")
    a(f"s_mul_i32 s31, s23, {XSLOT}")
    a(f"s_mul_i32 s37, s28, {2*XGRP}")
    a("s_add_u32 s31, s31, s37")
    def wdma(sr, lds):
        a(f"s_add_u32 m0, s33, {lds}")
        a("s_nop 0")
        for ii in range(4):
            a(f"buffer_load_dwordx4 v5, s[{sr}:{sr+3}], s33 offen offset:{ii*1024} lds")
    def xdma(ps):
        a("v_add_u32 v6, s30, v3")
        a("v_add_u32 v8, 4, v6")
        a(f"s_add_u32 m0, s31, {G_X + ps*2*XSLOT}")
        a("s_add_u32 s30, s30, 64")
        a("buffer_load_dwordx4 v[6:7], s[12:15], 0 idxen offen lds")
        a(f"s_add_u32 m0, s31, {G_X + ps*2*XSLOT + XGRP}")
        a("s_nop 0")
        a("buffer_load_dwordx4 v[8:9], s[12:15], 0 idxen offen lds")
    wdma(16, G_W0)
    xdma(0)
    wdma(sW1, G_W1)
    xdma(1)
    vE5, vH, vX0, vX1, vWt = 10, 11, 12, 13, 14
    a(f"v_and_b32 v{vE5}, 31, v1")
    a(f"v_lshrrev_b32 v{vH}, 5, v1")
    xfrag_addr(a, vX0, vX1, vE5, vH, 15, 16, 17)
    a(f"s_mul_i32 s30, s23, {XSLOT}")
    a(f"s_add_u32 s30, s30, {G_X}")
    a(f"v_add_u32 v{vX0}, s30, v{vX0}")
    a(f"v_add_u32 v{vX1}, s30, v{vX1}")
    a("v_lshrrev_b32 v15, 2, v1\nv_and_b32 v15, 3, v15")
    a("s_lshl_b32 s30, s28, 2")
    a("v_lshlrev_b32 v16, 2, v15")
    a("v_xor_b32 v16, s30, v16")
    a("v_lshrrev_b32 v17, 4, v1\nv_and_b32 v17, 1, v17")
    a("v_lshl_add_u32 v16, v17, 1, v16")
    a("v_lshrrev_b32 v17, 1, v1\nv_and_b32 v17, 1, v17")
    a("v_add_u32 v16, v16, v17")
    a("v_lshlrev_b32 v16, 4, v16")
    a("v_and_b32 v17, 1, v1")
    a("v_lshl_add_u32 v16, v17, 3, v16")
    a(f"v_lshl_add_u32 v15, v{vH}, 3, v15")
    a(f"v_lshl_add_u32 v{vWt}, v15, 8, v16")
    srd(a, 24, 6, 7, N * 512, add=WS_TAB)
    a("s_cmp_eq_u32 s36, 0")
    a("s_cbranch_scc1 P_g_bvsrd")
    srd(a, 24, 6, 7, N * 256, add=WS_XA)
    srd(a, 40 if not dbg else 64, 6, 7, N * 256, add=WS_XU)
    a("P_g_bvsrd:")
    sXU = 40 if not dbg else 64
    f0, f1, fX, d0, d1 = 32, 64, 96, 128, 144
    a("s_lshl_b32 s31, s22, 12")
    a(f"s_add_u32 s31, s31, {G_ST}")
    a(f"v_and_b32 v15, 7, v{vE5}")
    a(f"v_lshlrev_b32 v16, 1, v{vH}")
    a("v_xor_b32 v16, v16, v15")
    a("v_lshlrev_b32 v16, 4, v16")
    a(f"v_lshl_add_u32 v16, v{vE5}, 7, v16")
    a("v_add_u32 v16, s31, v16")
    a("v_lshrrev_b32 v20, 3, v1")
    a("v_and_b32 v21, 7, v1")
    a("v_xor_b32 v22, v21, v20")
    a("v_lshlrev_b32 v22, 4, v22")
    a("v_lshl_add_u32 v22, v20, 7, v22")
    a("v_add_u32 v22, s31, v22")
    a("v_add_u32 v20, s29, v20")
    a("v_lshlrev_b32 v20, 9, v20")
    a("v_lshl_add_u32 v20, v21, 4, v20")
    a("s_lshl_b32 s30, s28, 7")
    a("v_add_u32 v20, s30, v20")
    a(f"v_lshrrev_b32 v23, 2, v{vE5}")
    a("v_and_b32 v23, 3, v23")
    a("v_lshlrev_b32 v23, 4, v23")
    a(f"v_lshl_add_u32 v23, v{vE5}, 6, v23")
    a(f"v_lshl_add_u32 v23, v{vH}, 3, v23")
    a("v_add_u32 v23, s31, v23")
    a("v_lshrrev_b32 v24, 4, v1\nv_and_b32 v24, 3, v24")
    a("v_and_b32 v25, 3, v1")
    a("v_xor_b32 v24, v24, v25")
    a("v_lshlrev_b32 v24, 4, v24")
    a("v_lshrrev_b32 v26, 2, v1")
    a("v_lshl_add_u32 v24, v26, 6, v24")
    a("v_add_u32 v24, s31, v24")
    a("v_add_u32 v26, s29, v26")
    a("v_lshlrev_b32 v26, 8, v26")
    a("v_lshl_add_u32 v26, v25, 4, v26")
    a("s_lshl_b32 s30, s28, 6")
    a("v_add_u32 v26, s30, v26")
    stamp()
    a("s_waitcnt vmcnt(6)")
    stamp()
    a("s_barrier")
    stamp()
    def xreads(ps):
        for s_ in range(8):
            ad = vX0 if s_ % 2 == 0 else vX1
            a(f"ds_read_b128 v[{fX+4*s_}:{fX+4*s_+3}], v{ad} offset:{ps*2*XSLOT + (s_>>1)*64}")
    for s in range(8):
        for part in range(2):
            a(f"ds_read_b64_tr_b16 v[{f0+4*s+2*part}:{f0+4*s+2*part+1}], v{vWt} offset:{G_W0 + (16*s+4*part)*256}")
        if s == 5: a("s_waitcnt lgkmcnt(4)")
    a("s_waitcnt lgkmcnt(4)")
    xreads(0)
    a(f"s_mov_b32 s30, {NEG_LOG2E:#x}")
    for ps in range(2):
        if ps == 0:
            for s_ in range(8):
                if s_ % 2 == 0: a(f"s_waitcnt lgkmcnt({6 - s_})")
                a(mf(d0, f0 + 4*s_, fX + 4*s_, None if s_ == 0 else d0))
            a("s_waitcnt vmcnt(0)")
            a("s_barrier")
            for s_ in range(8):
                if s_ == 6: a("s_waitcnt lgkmcnt(8)")
                for part in range(2):
                    a(f"ds_read_b64_tr_b16 v[{f1+4*s_+2*part}:{f1+4*s_+2*part+1}], v{vWt} offset:{G_W1 + (16*s_+4*part)*256}")
            a("s_waitcnt lgkmcnt(0)")
        else:
            a("s_waitcnt lgkmcnt(0)")
            for s_ in range(8): a(mf(d0, f0 + 4*s_, fX + 4*s_, None if s_ == 0 else d0))
        for s_ in range(8):
            a(mf(d1, f1 + 4*s_, fX + 4*s_, None if s_ == 0 else d1))
        a("s_nop 3")
        for r in range(16): a(f"v_mul_f32 v{d0+r}, s30, v{d0+r}")
        for r in range(8): a(f"v_cvt_pk_bf16_f32 v{d0+r}, v{d0+2*r}, v{d0+2*r+1}")
        for r in range(8): a(f"v_cvt_pk_bf16_f32 v{d0+8+r}, v{d1+2*r}, v{d1+2*r+1}")
        a("s_cmp_eq_u32 s36, 0")
        a(f"s_cbranch_scc0 P_g_au{ps}")
        a(f"ds_write_b128 v16, v[{d0}:{d0+3}]")
        a("v_xor_b32 v17, 16, v16")
        a(f"ds_write_b128 v17, v[{d0+4}:{d0+7}]")
        a("v_xor_b32 v18, 64, v16")
        a(f"ds_write_b128 v18, v[{d0+8}:{d0+11}]")
        a("v_xor_b32 v19, 64, v17")
        a(f"ds_write_b128 v19, v[{d0+12}:{d0+15}]")
        for i in range(4):
            a(f"ds_read_b128 v[{d1+4*i}:{d1+4*i+3}], v22 offset:{i*1024}")
        if ps == 0:
            a("s_waitcnt lgkmcnt(4)")
            xreads(1)
        a(f"s_mov_b32 s33, {ps*64*512}")
        for i in range(4):
            a(f"s_waitcnt lgkmcnt({3-i + (8 if ps == 0 else 0)})")
            a(f"buffer_store_dwordx4 v[{d1+4*i}:{d1+4*i+3}], v20, s[24:27], s33 offen {SF}")
            if i < 3: a("s_add_u32 s33, s33, 4096")
        a(f"s_branch P_g_done{ps}")
        a(f"P_g_au{ps}:")
        for j in range(4):
            if j: a(f"v_xor_b32 v17, {16*j}, v23")
            ad = 23 if j == 0 else 17
            a(f"ds_write_b64 v{ad}, v[{d0+2*j}:{d0+2*j+1}]")
            a(f"ds_write_b64 v{ad}, v[{d0+8+2*j}:{d0+8+2*j+1}] offset:2048")
        for i in range(4):
            a(f"ds_read_b128 v[{d1+4*i}:{d1+4*i+3}], v24 offset:{i*1024}")
        if ps == 0:
            a("s_waitcnt lgkmcnt(4)")
            xreads(1)
        a(f"s_mov_b32 s33, {ps*64*256}")
        for i in range(4):
            a(f"s_waitcnt lgkmcnt({3-i + (8 if ps == 0 else 0)})")
            sr = 24 if i < 2 else sXU
            a(f"buffer_store_dwordx4 v[{d1+4*i}:{d1+4*i+3}], v26, s[{sr}:{sr+3}], s33 offen offset:0 {SF}")
            if i == 0: a("s_add_u32 s33, s33, 4096")
            if i == 1: a("s_sub_u32 s33, s33, 4096")
            if i == 2: a("s_add_u32 s33, s33, 4096")
        a(f"P_g_done{ps}:")
    stamp()
    if dbg: a("s_waitcnt vmcnt(0)")
    dump(2)
    tl_end()
    a("s_endpgm")
    if flag("cpf"):
        a("P_pf:")
        a("s_cmp_lg_u32 s22, 8")
        a("s_cbranch_scc1 P_end")
        a("s_getpc_b64 s[12:13]")
        a("P_pc:")
        a(f"s_add_u32 s12, s12, {KNAME}-P_pc")
        a("s_addc_u32 s13, s13, 0")
        a("v_lshlrev_b32 v2, 6, v1")
        a("v_mov_b32 v3, 0")
        a("v_mov_b32 v5, s13")
        a("v_add_co_u32 v4, vcc, s12, v2")
        a("v_addc_co_u32 v5, vcc, v5, v3, vcc")
        for i in range(3):
            if i == 2:
                a(f"s_mov_b32 s14, (M_last-{KNAME}-8192+64)>>6")
                a("v_cmp_gt_u32 vcc, s14, v1")
                a("s_mov_b64 exec, vcc")
                a("s_cbranch_execz P_pf_done")
            a(f"global_load_dword v{8+i}, v[4:5], off")
            if i < 2:
                a("v_add_co_u32 v4, vcc, 0x1000, v4")
                a("v_addc_co_u32 v5, vcc, v5, v3, vcc")
        a("P_pf_done:")
        a("s_waitcnt vmcnt(0)")
        a("s_endpgm")
    if flag("epf"):
        a("P_pf:")
        a("s_load_dwordx2 s[12:13], s[0:1], 8")
        a(f"s_sub_u32 s3, s2, {NCH}")
        a("s_lshl_b32 s3, s3, 1")
        a("s_add_u32 s3, s3, s22")
        a("s_sub_u32 s3, s3, 8")
        a("s_lshl_b32 s3, s3, 15")
        a("v_lshlrev_b32 v2, 4, v1")
        a("s_waitcnt lgkmcnt(0)")
        a("s_and_b32 s13, s13, 0xffff")
        a(f"s_mov_b32 s14, {E*32}")
        a("s_mov_b32 s15, 0x20000")
        for i in range(32):
            a(f"buffer_load_dwordx4 v[{8+4*(i%8)}:{11+4*(i%8)}], v2, s[12:15], s3 offen offset:{(i%4)*1024} {opt('epfflag', '')}")
            if i % 4 == 3: a("s_add_u32 s3, s3, 4096")
        a("s_endpgm")
    a("P_weights:")
    a("s_load_dwordx2 s[8:9], s[0:1], 48")
    a("s_load_dwordx2 s[10:11], s[0:1], 72")
    a("v_lshrrev_b32 v2, 6, v0")
    a("v_and_b32 v1, 63, v0")
    a("v_readfirstlane_b32 s3, v2")
    a("s_nop 0")
    a("s_cmp_ge_u32 s3, 4")
    a("s_cbranch_scc1 P_end")
    a("s_waitcnt lgkmcnt(0)")
    srd(a, 12, 8, 9, 272 * 256)
    a("s_lshl_b32 s28, s3, 6")
    a(f"s_add_u32 s28, s28, {256*256}")
    a("v_lshrrev_b32 v2, 5, v1")
    a("v_lshlrev_b32 v2, 11, v2")
    a("v_and_b32 v3, 31, v1")
    a("v_lshl_add_u32 v2, v3, 1, v2")
    for j in range(8):
        a(f"buffer_load_ushort v{8+j}, v2, s[12:15], s28 offen offset:{j*256}")
    srd(a, 16, 10, 11, WS_SZ)
    a("s_lshl_b32 s3, s3, 10")
    a(f"s_add_u32 s3, s3, {WS_W}")
    a("v_lshlrev_b32 v1, 4, v1")
    a(f"s_mov_b32 s29, {NEG_LOG2E:#x}")
    a("s_waitcnt vmcnt(0)")
    for j in range(8): a(f"v_lshlrev_b32 v{8+j}, 16, v{8+j}")
    for j in range(8): a(f"v_mul_f32 v{8+j}, s29, v{8+j}")
    for j in range(4): a(f"v_cvt_pk_bf16_f32 v{16+j}, v{8+2*j}, v{9+2*j}")
    a("buffer_store_dwordx4 v[16:19], v1, s[16:19], s3 offen")
    a("P_end:")
    a("s_endpgm")
    return a.text() + descriptor("prep_kernel", 160, 96 if flag("tl") else 80 if dbg else 48)

CAP = 640
NPAD = 128
L_GR = 0
L_XA = L_GR + 4 * 2 * 4096
L_ER = L_XA + 4096
L_OR = L_ER + 3 * 1024
L_LS = L_OR + 3 * 1024
LSZ = (CAP + NPAD) * 4
L_LE = L_LS + LSZ
L_LQ = L_LE + LSZ
M_LDS = (L_LQ + CAP + NPAD + 63) // 64 * 64
AGG_STRIDE = 528

vLANE, vE5, vH = 1, 2, 3
vG = 4
vEA, vO0, vT0, vT1 = 8, 9, 10, 11
vLs, vLe, vLq = 12, 13, 14
pG = 16
pE = 24
vQ, vOHa, vOHd = 26, 27, 28
vK = 29
vT = 32
vC, vXA, vI, vACC, vZ, vHV = 56, 60, 64, 72, 88, 104
vFX, vFH, vAE, vAO, vSO, vMSG, vXU = 120, 128, 136, 140, 144, 152, 160
NVGPR = 164
U_REC = 8

def main_kernel(dbg=False):
    a = A()
    nst = [0]
    def stamp():
        if not dbg: return
        a("s_waitcnt lgkmcnt(0)")
        a("s_memtime s[58:59]")
        a("s_waitcnt lgkmcnt(0)")
        a(f"s_mov_b32 s{64+nst[0]}, s58")
        nst[0] += 1
    PRIO = opt("prio", "pair")
    header(a, KNAME)
    a(f"s_cmp_ge_u32 s2, {NB}")
    a("s_cbranch_scc1 M_end")
    a("s_load_dwordx2 s[6:7], s[0:1], 8")
    a("s_load_dwordx2 s[8:9], s[0:1], 56")
    a("s_load_dwordx2 s[10:11], s[0:1], 72")
    if flag("tl"): a("s_memrealtime s[68:69]\ns_load_dwordx2 s[72:73], s[0:1], 64")
    if PRIO != "none":
        if opt("pprio", "") == "gen":
            a("s_setprio 3\ns_cmp_ge_u32 s2, 512\ns_cbranch_scc1 M_pp\ns_setprio 2\ns_cmp_ge_u32 s2, 256\ns_cbranch_scc1 M_pp\ns_setprio 1\nM_pp:")
        elif opt("pprio", "") == "low":
            a("s_setprio 0")
        else:
            a("s_setprio 3")
    if dbg: a("s_memrealtime s[60:61]")
    stamp()
    t0, t1, t2, t3 = vT, vT + 1, vT + 2, vT + 3
    vTv = vT + 4
    a(f"v_lshrrev_b32 v{t0}, 6, v0")
    a(f"v_and_b32 v{vLANE}, 63, v0")
    a(f"v_readfirstlane_b32 s32, v{t0}")
    a(f"v_mul_u32_u24 v{t1}, {NB*8}, v{vLANE}")
    a("s_lshl_b32 s38, s2, 3")
    a("s_and_b32 s33, s2, 255")
    a("s_lshr_b32 s39, s2, 8")
    a("s_mul_i32 s33, s33, 625")
    a("s_add_u32 s34, s33, 640")
    a("s_add_u32 s33, s33, 15")
    a("s_lshr_b32 s33, s33, 4")
    a("s_lshr_b32 s34, s34, 4")
    a("s_sub_u32 s34, s34, s33")
    a(f"s_sub_u32 s34, s34, {S0 + S1}")
    a("s_cmp_eq_u32 s39, 1")
    a(f"s_cselect_b32 s34, {S1}, s34")
    a(f"s_cselect_b32 s42, {S0}, {S0 + S1}")
    a("s_cmp_eq_u32 s39, 0")
    a(f"s_cselect_b32 s34, {S0}, s34")
    a("s_cselect_b32 s42, 0, s42")
    a("s_add_u32 s33, s33, s42")
    a(f"v_and_b32 v{vE5}, 31, v{vLANE}")
    a(f"v_lshrrev_b32 v{vH}, 5, v{vLANE}")
    a("s_waitcnt lgkmcnt(0)")
    srd(a, 20, 10, 11, WS_SZ)
    a("s_cmp_lg_u32 s32, 0")
    a("s_cbranch_scc1 M_noT")
    a(f"buffer_load_dwordx2 v[{vTv}:{vTv+1}], v{t1}, s[20:23], s38 offen")
    a("M_noT:")
    srd(a, 24, 10, 11, N, stride=512, add=WS_TAB)
    NPF = 0
    srd(a, 16, 6, 7, E, stride=32)
    srd(a, 28, 8, 9, N * 256)
    srd(a, 12, 10, 11, N, stride=256, add=WS_XA)
    srd(a, 44, 10, 11, N * 256, add=WS_XU)
    a(f"v_lshrrev_b32 v{t0}, 4, v{vLANE}")
    a(f"v_and_b32 v{t1}, 7, v{vLANE}")
    a(f"v_xor_b32 v{t1}, v{t1}, v{t0}")
    a("s_lshl_b32 s38, s32, 7")
    a(f"v_lshl_add_u32 v{pG+1}, v{t1}, 4, s38")
    a(f"v_xor_b32 v{pG+3}, 64, v{pG+1}")
    a(f"v_mov_b32 v{pG+5}, v{pG+1}")
    a(f"v_mov_b32 v{pG+7}, v{pG+3}")
    a(f"v_lshrrev_b32 v{t0}, 1, v{vE5}")
    a(f"v_and_b32 v{t0}, 7, v{t0}")
    a(f"v_xor_b32 v{t0}, v{t0}, v{vH}")
    a(f"v_lshlrev_b32 v{t0}, 4, v{t0}")
    a(f"v_lshl_add_u32 v{t0}, v{vE5}, 7, v{t0}")
    a("s_lshl_b32 s40, s32, 13")
    a(f"v_add_u32 v{vG}, s40, v{t0}")
    for k in range(1, 4):
        a(f"v_xor_b32 v{vG+k}, {32*k}, v{vG}")
    a("s_lshl_b32 s41, s32, 8")
    a(f"s_add_u32 s41, s41, {L_ER}")
    a(f"v_lshlrev_b32 v{t1}, 5, v{vE5}")
    a(f"v_bfe_u32 v{t0}, v{vE5}, 3, 1")
    a(f"v_xor_b32 v{t0}, v{t0}, v{vH}")
    a(f"v_lshl_add_u32 v{t0}, v{t0}, 4, v{t1}")
    a(f"v_add_u32 v{vEA}, {L_ER}, v{t0}")
    a(f"v_lshl_add_u32 v{t0}, v{vH}, 4, v{t1}")
    a(f"v_add_u32 v{vO0}, {L_OR}, v{t0}")
    a(f"v_bfe_u32 v{t1}, v{vLANE}, 2, 2")
    a(f"v_lshl_add_u32 v{t1}, v{vH}, 2, v{t1}")
    a(f"v_and_b32 v{t0}, 3, v{vLANE}")
    a(f"v_lshlrev_b32 v{t0}, 3, v{t0}")
    a(f"v_lshl_add_u32 v{t0}, v{t1}, 5, v{t0}")
    a(f"v_add_u32 v{vT0}, {L_OR}, v{t0}")
    a("s_and_b32 s38, s32, 1")
    a(f"v_and_b32 v{t0}, 1, v{vLANE}")
    a(f"v_xor_b32 v{t0}, s38, v{t0}")
    a(f"v_lshlrev_b32 v{pE+1}, 4, v{t0}")
    a(f"v_and_b32 v{t0}, 7, v{vLANE}")
    a("s_lshl_b32 s38, s32, 3")
    a(f"v_add_u32 v{t0}, s38, v{t0}")
    a(f"v_lshlrev_b32 v{t1}, 5, v{t0}")
    a(f"v_bfe_u32 v{t2}, v{vLANE}, 3, 1")
    for k in range(3):
        s_set, s_clr = (k + 2) % 3, k
        a(f"v_mul_i32_i24 v{t3}, {(s_clr - s_set) * 1024}, v{t2}")
        a(f"v_add_u32 v{t3}, {s_set*1024 + L_OR}, v{t3}")
        a(f"v_add_u32 v{vK+k}, v{t3}, v{t1}")
    a(f"v_sub_u32 v{t3}, 1, v{t2}")
    a(f"v_mul_u32_u24 v{vOHd}, 0x3f80, v{t3}")
    vLq0 = vT + 22
    a(f"v_lshlrev_b32 v{t2}, 6, v{t2}")
    a(f"v_sub_u32 v{t0}, v{t0}, v{t2}")
    a(f"v_add_u32 v{vLq0}, {L_LQ + 64}, v{t0}")
    a(f"v_and_b32 v{t0}, 1, v{vE5}")
    a(f"v_lshlrev_b32 v{t0}, 4, v{t0}")
    a(f"v_mov_b32 v{t1}, 0x3f80")
    a(f"v_lshlrev_b32 v{t0}, v{t0}, v{t1}")
    a(f"v_bfe_u32 v{t1}, v{vE5}, 1, 1")
    a(f"v_lshrrev_b32 v{t2}, 2, v{vE5}")
    a(f"v_and_b32 v{t3}, 2, v{t2}")
    a(f"v_or_b32 v{t1}, v{t1}, v{t3}")
    a(f"v_and_b32 v{t2}, 1, v{t2}")
    a(f"v_lshl_add_u32 v{t1}, v{t2}, 2, v{t1}")
    a(f"v_lshrrev_b32 v{t2}, 4, v{vE5}")
    a(f"v_xor_b32 v{t2}, v{t2}, v{vH}")
    a(f"v_lshl_add_u32 v{t1}, v{t2}, 3, v{t1}")
    for g in range(2):
        pairs = ["vcc", "s[48:49]", "s[50:51]", "s[54:55]"]
        for k in range(4): a(f"v_cmp_eq_u32 {pairs[k]}, {4*g+k}, v{t1}")
        for k in range(4): a(f"v_cndmask_b32 v{vI+4*g+k}, 0, v{t0}, {pairs[k]}")
    for r in range(8):
        a(f"v_mov_b32 v{vACC+r}, 0")
    vRecI, vPos0, vCnt, vEb = vT + 4, vT + 5, vT + 6, vT + 7
    vc = vHV
    vp = vHV + 4
    tb = vZ
    L_TB = L_GR
    a("s_cmp_lg_u32 s32, 0")
    a("s_cbranch_scc1 M_scan_done")
    a(f"v_mul_u32_u24 v{t3}, {CH}, v{vLANE}")
    a(f"s_waitcnt vmcnt({NPF})")
    stamp()
    a(f"v_lshrrev_b32 v{t1}, 16, v{vTv}")
    a(f"v_and_b32 v{vc}, 0xff, v{vTv+1}")
    a(f"v_bfe_u32 v{vc+1}, v{vTv+1}, 8, 8")
    a(f"v_bfe_u32 v{vc+2}, v{vTv+1}, 16, 8")
    a(f"v_add3_u32 v{t0}, v{vc}, v{vc+1}, v{vc+2}")
    a(f"v_sub_u32 v{vc+3}, v{t1}, v{t0}")
    for k in range(4): a(f"v_mov_b32 v{vp+k}, v{vc+k}")
    a(f"v_and_b32 v{t2}, 0xffff, v{vTv}")
    for sh in (1, 2, 4, 8):
        for k in range(4):
            a(f"v_add_u32_dpp v{vp+k}, v{vp+k}, v{vp+k} row_shr:{sh} row_mask:0xf bank_mask:0xf bound_ctrl:1")
    for k in range(4): a(f"v_add_u32_dpp v{vp+k}, v{vp+k}, v{vp+k} row_bcast:15 row_mask:0xa bank_mask:0xf")
    for k in range(4): a(f"v_add_u32_dpp v{vp+k}, v{vp+k}, v{vp+k} row_bcast:31 row_mask:0xc bank_mask:0xf")
    a(f"v_add_u32 v{tb}, v{t3}, v{t2}")
    for k in range(4): a(f"v_readlane_b32 s{48+k}, v{vp+k}, 63")
    for k in range(1, 4): a(f"v_add_u32 v{tb+4*k}, v{tb+4*k-4}, v{vc+k-1}")
    a("s_add_u32 s49, s49, s48")
    a("s_add_u32 s50, s50, s49")
    a("s_add_u32 s35, s51, s50")
    for k in range(4): a(f"v_sub_u32 v{tb+4*k+1}, v{vp+k}, v{vc+k}")
    for k in range(1, 4): a(f"v_add_u32 v{tb+4*k+1}, s{47+k}, v{tb+4*k+1}")
    for k in range(4): a(f"v_mov_b32 v{tb+4*k+2}, v{vc+k}")
    for k in range(4): a(f"v_mov_b32 v{tb+4*k+3}, v{t3}")
    wa = vHV + 8
    a(f"v_and_b32 v{wa+1}, 3, v{tb}")
    a(f"v_and_b32 v{wa}, 0xfffffffc, v{tb}")
    a(f"v_lshlrev_b32 v{wa}, 2, v{wa}")
    a(f"v_lshrrev_b32 v{t1}, 16, v{vTv}")
    a(f"v_add_u32 v{wa+1}, v{wa+1}, v{t1}")
    a(f"v_cmp_lt_u32 vcc, 32, v{wa+1}")
    a(f"s_cmp_le_u32 s35, {CAP}")
    a("s_cselect_b32 s54, 1, 0")
    a("s_cmp_eq_u64 vcc, 0")
    a("s_cselect_b32 s54, s54, 0")
    a(f"v_lshlrev_b32 v{t0}, 6, v{vLANE}")
    a(f"v_lshlrev_b32 v{t3}, 3, v{vLANE}")
    a(f"v_mov_b32 v{wa+2}, s35")
    a(f"v_mov_b32 v{wa+3}, s54")
    a(f"v_mov_b32 v{t2}, {L_TB + 4096}")
    for k in range(4): a(f"ds_write_b128 v{t0}, v[{tb+4*k}:{tb+4*k+3}] offset:{L_TB+16*k}")
    a(f"ds_write_b64 v{t3}, v[{wa}:{wa+1}] offset:{L_TB + 4160}")
    a(f"ds_write_b64 v{t2}, v[{wa+2}:{wa+3}]")
    a("s_waitcnt lgkmcnt(0)")
    a("M_scan_done:")
    if dbg: nst[0] = 2
    a(f"v_lshlrev_b32 v{t0}, 4, v0")
    a(f"v_mov_b32 v{t2}, {L_TB + 4096}")
    a("s_barrier")
    wb = vHV
    a(f"ds_read_b128 v[{vRecI}:{vRecI+3}], v{t0} offset:{L_TB}")
    a(f"ds_read_b64 v[{wb+4}:{wb+5}], v{t2}")
    a(f"v_lshrrev_b32 v{t1}, 3, v{vLANE}")
    a("s_lshl_b32 s38, s32, 7")
    a(f"v_lshl_add_u32 v{t1}, v{t1}, 3, s38")
    a(f"ds_read_b64 v[{wb}:{wb+1}], v{t1} offset:{L_TB + 4160}")
    a(f"ds_read_b64 v[{wb+2}:{wb+3}], v{t1} offset:{L_TB + 4160 + 64}")
    a(f"v_and_b32 v{t3}, 7, v{vLANE}")
    a(f"v_lshlrev_b32 v{t3}, 2, v{t3}")
    a("s_waitcnt lgkmcnt(0)")
    a(f"v_readfirstlane_b32 s35, v{wb+4}")
    a(f"v_readfirstlane_b32 s54, v{wb+5}")
    stamp()
    def side_loads():
        b0 = vMSG
        a(f"v_lshlrev_b32 v{b0+2}, 4, v{vLANE}")
        a("s_lshl_b32 s42, s32, 10")
        a(f"s_add_u32 m0, s42, {L_XA}")
        a(f"s_add_u32 s42, s42, {WS_W}")
        a(f"buffer_load_dwordx4 v[{vC}:{vC+3}], v{b0+2}, s[20:23], s42 offen")
        a(f"v_lshrrev_b32 v{b0}, 4, v0")
        a(f"v_add_u32 v{b0}, s33, v{b0}")
        a(f"v_and_b32 v{b0+1}, 15, v0")
        a(f"v_lshlrev_b32 v{b0+1}, 4, v{b0+1}")
        a(f"buffer_load_dwordx4 v[{b0}:{b0+1}], s[12:15], 0 idxen offen lds")
    def xu_load():
        a(f"v_lshrrev_b32 v{vOHa}, 4, v0")
        a(f"v_add_u32 v{vOHa}, s33, v{vOHa}")
        a(f"v_lshlrev_b32 v{vOHa}, 8, v{vOHa}")
        a(f"v_and_b32 v{vXU}, 15, v0")
        a(f"v_lshl_add_u32 v{vOHa}, v{vXU}, 4, v{vOHa}")
        a(f"buffer_load_dwordx4 v[{vXU}:{vXU+3}], v{vOHa}, s[44:47], 0 offen")
    a("s_mov_b32 s36, 0")
    a("s_mov_b32 s43, 1")
    a("s_mov_b32 s53, 1")
    a("s_cmp_eq_u32 s35, 0")
    a("s_cbranch_scc1 M_empty")

    vXAa = vT + 23
    def pads_and_readers(tag):
        a("s_cmp_ge_u32 s32, 2")
        a(f"s_cbranch_scc1 M_pad_done{tag}")
        a(f"v_add_u32 v{t0}, s37, v0")
        a(f"v_mov_b32 v{t2}, 0xffffff")
        a(f"v_lshlrev_b32 v{t1}, 2, v{t0}")
        a(f"ds_write_b32 v{t1}, v{t2} offset:{L_LS}")
        a(f"ds_write_b32 v{t1}, v{t2} offset:{L_LE}")
        a(f"v_mov_b32 v{t2}, 15")
        a(f"ds_write_b8 v{t0}, v{t2} offset:{L_LQ}")
        a(f"M_pad_done{tag}:")
        a(f"v_lshrrev_b32 v{t0}, 3, v{vLANE}")
        a("s_lshl_b32 s38, s32, 5")
        a(f"v_lshlrev_b32 v{t0}, 2, v{t0}")
        a(f"s_add_u32 s38, s38, {L_LE}")
        a(f"v_bfe_u32 v{t1}, v{vLANE}, 1, 3")
        a(f"v_add_u32 v{vLs}, {L_LS}, v{t0}")
        a(f"v_lshl_add_u32 v{vLe}, v{t1}, 2, s38")
        a(f"v_mov_b32 v{vLq}, v{vLq0}")
    a(f"v_bfe_u32 v{t0}, v{vLANE}, 2, 2")
    a(f"v_bfe_u32 v{t1}, v{vLANE}, 4, 1")
    a(f"v_lshl_add_u32 v{t0}, v{vH}, 3, v{t0}")
    a(f"v_and_b32 v{t2}, 3, v{vLANE}")
    a(f"v_lshlrev_b32 v{t0}, 8, v{t0}")
    a("s_lshl_b32 s38, s32, 6")
    a(f"v_lshl_add_u32 v{t0}, v{t1}, 5, v{t0}")
    a(f"v_lshl_add_u32 v{t0}, v{t2}, 3, v{t0}")
    a(f"v_add_u32 v{vXAa}, s38, v{t0}")
    a("s_cmp_eq_u32 s54, 0")
    a("s_cbranch_scc1 M_batch")
    L_RW = L_GR + 8192
    a(f"s_mov_b32 s52, {WS_REC}")
    a("s_lshl_b32 s38, s32, 11")
    for i in range(2):
        a(f"v_cmp_lt_u32 vcc, v{t3}, v{wb+2*i+1}")
        a(f"v_lshl_add_u32 v{wb+2*i}, v{t3}, 2, v{wb+2*i}")
        a(f"s_add_u32 m0, s38, {L_RW + 1024*i}")
        a("s_mov_b64 exec, vcc")
        a(f"buffer_load_dwordx4 v{wb+2*i}, s[20:23], s52 offen lds")
        a("s_mov_b64 exec, -1")
    side_loads()
    NE2 = int(opt("e2pf", "0"))
    if NE2:
        a("s_mov_b32 s56, s6\ns_and_b32 s57, s7, 0xffff")
        a(f"s_mov_b32 s58, {E*32}\ns_mov_b32 s59, 0x20000")
        a(f"s_mul_i32 s38, s2, {NE2*4096}")
        a(f"s_mul_i32 s39, s32, {NE2*1024}")
        a("s_add_u32 s38, s38, s39")
        a(f"v_lshlrev_b32 v{vMSG+6}, 4, v{vLANE}")
        for i in range(NE2):
            if i == 4: a("s_add_u32 s38, s38, 4096")
            a(f"buffer_load_dwordx4 v[{vZ+4*i}:{vZ+4*i+3}], v{vMSG+6}, s[56:59], s38 offen offset:{(i%4)*1024} {opt('e2flag', '')}")
    NP2 = int(opt("tpf", "0"))
    if NP2:
        a("s_lshr_b32 s38, s2, 3")
        a(f"s_mul_i32 s38, s38, {8*NP2}")
        a(f"s_mul_i32 s39, s32, {2*NP2}")
        a("s_add_u32 s38, s38, s39")
        a(f"v_add_u32 v{vMSG+4}, s38, v{vH}")
        a(f"v_lshlrev_b32 v{vMSG+5}, 4, v{vE5}")
        a("s_lshr_b32 s39, s32, 1")
        a("s_lshl_b32 s39, s39, 13")
        a("s_and_b32 s38, s32, 1")
        a(f"s_mul_i32 s38, s38, {1024*NP2}")
        a("s_add_u32 s39, s39, s38")
        for i in range(NP2):
            a(f"s_add_u32 m0, s39, {L_GR + 20480 + 1024*i}")
            if i: a(f"v_add_u32 v{vMSG+4}, 2, v{vMSG+4}")
            else: a("s_nop 0")
            a(f"buffer_load_dwordx4 v[{vMSG+4}:{vMSG+5}], s[24:27], 0 idxen offen lds")
    a("s_mov_b32 s43, 0")
    z = vT + 10
    for k in range(4): a(f"v_mov_b32 v{z+k}, 0")
    a(f"v_lshlrev_b32 v{t0}, 4, v0")
    a(f"v_cmp_gt_u32 vcc, 192, v0")
    a("s_mov_b64 exec, vcc")
    a(f"ds_write_b128 v{t0}, v[{z}:{z+3}] offset:{L_OR}")
    a("s_mov_b64 exec, -1")
    a("s_mov_b32 s37, s35")
    vP4, vP1, vA = vT + 12, vT + 13, vT + 3
    vR = vT + 14
    a(f"v_lshrrev_b32 v{t0}, 2, v0")
    a(f"v_lshlrev_b32 v{t0}, 7, v{t0}")
    a(f"v_mov_b32_dpp v{t2}, v{vRecI} quad_perm:[0,0,0,0] row_mask:0xf bank_mask:0xf")
    a(f"v_and_b32 v{t2}, 0xfffffffc, v{t2}")
    a(f"v_sub_u32 v{t2}, v{vRecI}, v{t2}")
    a(f"v_lshl_add_u32 v{vA}, v{t2}, 2, v{t0}")
    a(f"v_mov_b32 v{vP1}, v{vPos0}")
    a(f"v_lshlrev_b32 v{vP4}, 2, v{vPos0}")
    pads_and_readers("f")
    a(f"s_waitcnt vmcnt({2 + NP2 + NE2})")
    if dbg:
        a("s_memtime s[58:59]\ns_waitcnt lgkmcnt(0)\ns_mov_b32 s67, s58")
    a("M_fast_round:")
    for u in range(8): a(f"ds_read_b32 v{vR+u}, v{vA} offset:{L_RW + 4*u}")
    for u in range(8):
        a(f"v_cmp_lt_i32 vcc, {u}, v{vCnt}")
        a("s_mov_b64 exec, vcc")
        a("s_cbranch_execz M_fast_done")
        if u == 0: a("s_waitcnt lgkmcnt(0)")
        a(f"v_and_b32 v{t0}, 0x3fff, v{vR+u}")
        a(f"v_bfe_u32 v{t1}, v{vR+u}, 14, 5")
        a(f"v_lshrrev_b32 v{t2}, 19, v{vR+u}")
        a(f"v_add_u32 v{t2}, v{t2}, v{vEb}")
        if flag("exp_e"): a(f"v_and_b32 v{t2}, 0x3fff, v{t2}")
        if flag("exp_t"): a(f"v_and_b32 v{t0}, 0x7ff, v{t0}")
        a(f"ds_write_b32 v{vP4}, v{t0} offset:{L_LS + 4*u}")
        a(f"ds_write_b8 v{vP1}, v{t1} offset:{L_LQ + u}")
        a(f"ds_write_b32 v{vP4}, v{t2} offset:{L_LE + 4*u}")
    a("s_mov_b64 exec, -1")
    a(f"v_subrev_u32 v{vCnt}, 8, v{vCnt}")
    a(f"v_add_u32 v{vA}, 32, v{vA}")
    a(f"v_add_u32 v{vP4}, 32, v{vP4}")
    a(f"v_add_u32 v{vP1}, 8, v{vP1}")
    a(f"v_cmp_lt_i32 vcc, 0, v{vCnt}")
    a("s_cbranch_vccnz M_fast_round")
    a("M_fast_done:")
    a("s_mov_b64 exec, -1")
    hot = a.l
    a.l = []
    a("M_batch:")
    z = vT + 10
    for k in range(4): a(f"v_mov_b32 v{z+k}, 0")
    a(f"v_lshlrev_b32 v{t0}, 4, v0")
    a(f"v_cmp_gt_u32 vcc, 192, v0")
    a("s_mov_b64 exec, vcc")
    a(f"ds_write_b128 v{t0}, v[{z}:{z+3}] offset:{L_OR}")
    a("s_mov_b64 exec, -1")
    a("s_sub_u32 s37, s35, s36")
    a(f"s_min_u32 s37, s37, {CAP}")
    vJ, vRem, vRa, vP4, vP1 = vT + 10, vT + 11, vT + 3, vT + 12, vT + 13
    a(f"v_sub_u32 v{vJ}, s36, v{vPos0}")
    a(f"v_add_u32 v{vRem}, {CAP}, v{vJ}")
    a(f"v_max_i32 v{vJ}, 0, v{vJ}")
    a(f"v_min_i32 v{vRem}, v{vRem}, v{vCnt}")
    a(f"v_sub_u32 v{vRem}, v{vRem}, v{vJ}")
    a(f"v_add_lshl_u32 v{vRa}, v{vJ}, v{vRecI}, 2")
    a(f"v_add_u32 v{vP1}, v{vPos0}, v{vJ}")
    a(f"v_subrev_u32 v{vP1}, s36, v{vP1}")
    a(f"v_lshlrev_b32 v{vP4}, 2, v{vP1}")
    a(f"s_mov_b32 s52, {WS_REC}")
    vR = vT + 14
    a("M_round:")
    for half in range(2):
        a(f"v_cmp_lt_i32 vcc, {4*half}, v{vRem}")
        a("s_mov_b64 exec, vcc")
        a("s_cbranch_execz M_round_issued")
        a(f"buffer_load_dwordx4 v[{vR+4*half}:{vR+4*half+3}], v{vRa}, s[20:23], s52 offen offset:{16*half}")
    a("M_round_issued:")
    a("s_mov_b64 exec, -1")
    a("s_cmp_eq_u32 s43, 0")
    a("s_cbranch_scc1 M_round_w0")
    side_loads()
    a("s_mov_b32 s43, 0")
    a("s_waitcnt vmcnt(2)")
    a("s_branch M_round_proc")
    a("M_round_w0:")
    a("s_waitcnt vmcnt(0)")
    a("M_round_proc:")
    if dbg:
        a("s_memtime s[58:59]\ns_waitcnt lgkmcnt(0)\ns_mov_b32 s67, s58"); nst[0] = 4
    for u in range(8):
        a(f"v_cmp_lt_i32 vcc, {u}, v{vRem}")
        a("s_mov_b64 exec, vcc")
        a("s_cbranch_execz M_round_done")
        a(f"v_and_b32 v{t0}, 0x3fff, v{vR+u}")
        a(f"v_bfe_u32 v{t1}, v{vR+u}, 14, 5")
        a(f"v_lshrrev_b32 v{t2}, 19, v{vR+u}")
        a(f"v_add_u32 v{t2}, v{t2}, v{vEb}")
        if flag("exp_e"): a(f"v_and_b32 v{t2}, 0x3fff, v{t2}")
        if flag("exp_t"): a(f"v_and_b32 v{t0}, 0x7ff, v{t0}")
        a(f"ds_write_b32 v{vP4}, v{t0} offset:{L_LS + 4*u}")
        a(f"ds_write_b8 v{vP1}, v{t1} offset:{L_LQ + u}")
        a(f"ds_write_b32 v{vP4}, v{t2} offset:{L_LE + 4*u}")
    a("M_round_done:")
    a("s_mov_b64 exec, -1")
    a(f"v_subrev_u32 v{vRem}, 8, v{vRem}")
    a(f"v_add_u32 v{vRa}, 32, v{vRa}")
    a(f"v_add_u32 v{vP4}, 32, v{vP4}")
    a(f"v_add_u32 v{vP1}, 8, v{vP1}")
    a(f"v_cmp_lt_i32 vcc, 0, v{vRem}")
    a("s_cbranch_vccnz M_round")
    pads_and_readers("s")
    a("s_branch M_lists_done")
    cold = a.l
    a.l = hot
    a("M_lists_done:")
    a("s_waitcnt lgkmcnt(0)")
    a("s_barrier")
    stamp()
    def idx_reads(T):
        for q in range(4):
            a(f"ds_read_b32 v{pG+2*q}, v{vLs} offset:{128*T + 32*q}")
        a(f"ds_read_b32 v{pE}, v{vLe} offset:{128*T}")
    def dma_tile(gslot, eslot):
        for q in range(4):
            a(f"s_add_u32 m0, s40, {L_GR + gslot*4096 + q*1024}")
            a("s_nop 0")
            a(f"buffer_load_dwordx4 v[{pG+2*q}:{pG+2*q+1}], s[24:27], 0 idxen offen {opt('gflag', '').replace('_', ' ')} lds")
        a(f"s_add_u32 m0, s41, {eslot*1024}")
        a("s_mov_b64 exec, 0xffff")
        a(f"buffer_load_dwordx4 v[{pE}:{pE+1}], s[16:19], 0 idxen offen {opt('eflag', '').replace('_', ' ')} lds")
        a("s_mov_b64 exec, -1")
    def frag_reads(gs, es):
        a(f"ds_read_b128 v[{vFX}:{vFX+3}], v{vG} offset:{L_GR + gs*4096}")
        a(f"ds_read_b128 v[{vFX+4}:{vFX+7}], v{vG+1} offset:{L_GR + gs*4096}")
        a(f"ds_read_b128 v[{vAE}:{vAE+3}], v{vEA} offset:{es*1024}")
        a(f"ds_read_b128 v[{vAO}:{vAO+3}], v{vO0} offset:{es*1024}")
        a(f"ds_read_b128 v[{vFH}:{vFH+3}], v{vG+2} offset:{L_GR + gs*4096}")
        a(f"ds_read_b128 v[{vFH+4}:{vFH+7}], v{vG+3} offset:{L_GR + gs*4096}")
    idx_reads(0)
    a(f"v_subrev_u32 v{t0}, 64, v{vLq}")
    a(f"ds_read_u8 v{vQ}, v{t0}")
    a(f"ds_read_u8 v{vOHa}, v{t0} offset:32")
    a("s_waitcnt lgkmcnt(2)")
    dma_tile(0, 0)
    idx_reads(1)
    if flag("t1early"):
        a("s_waitcnt lgkmcnt(0)")
        dma_tile(1, 1)
    a("s_waitcnt lgkmcnt(5)")
    a(f"v_lshl_add_u32 v{vQ}, v{vQ}, 1, v{vK+1}")
    a(f"v_lshl_add_u32 v{vOHa}, v{vOHa}, 1, v{vK+2}")
    a("s_mov_b64 exec, 0xff")
    a(f"ds_write_b16 v{vQ}, v{vOHd}")
    a(f"ds_write_b16 v{vOHa}, v{vOHd}")
    a("s_mov_b64 exec, -1")
    T1E = flag("t1early")
    if T1E:
        a("s_waitcnt vmcnt(5) lgkmcnt(0)")
        a("s_barrier")
        frag_reads(0, 0)
        idx_reads(2)
    else:
        a("s_waitcnt vmcnt(0) lgkmcnt(0)")
        a("s_barrier")
        frag_reads(0, 0)
    a("s_cmp_lg_u32 s36, 0")
    a("s_cbranch_scc1 M_noxa")
    a(f"ds_read_b64_tr_b16 v[{vXA}:{vXA+1}], v{vXAa} offset:{L_XA}")
    a(f"ds_read_b64_tr_b16 v[{vXA+2}:{vXA+3}], v{vXAa} offset:{L_XA + 1024}")
    a("M_noxa:")
    if not T1E:
        dma_tile(1, 1)
        idx_reads(2)
    a("s_waitcnt lgkmcnt(0)")
    SPREAD = opt("spread", "1") != "0"
    LATE = {"0": [0, 1, 2, 3, 4], "1": [0, 1], "2": [], "3": [0]}[opt("spread", "1")]
    EARLY = [p for p in range(5) if p not in LATE]
    def dma_part(p, gslot, eslot, filler=None):
        if p < 4:
            a(f"s_add_u32 m0, s40, {L_GR + gslot*4096 + p*1024}")
            a(filler if filler else "s_nop 0")
            a(f"buffer_load_dwordx4 v[{pG+2*p}:{pG+2*p+1}], s[24:27], 0 idxen offen {opt('gflag', '').replace('_', ' ')} lds")
        else:
            a(f"s_add_u32 m0, s41, {eslot*1024}")
            a("s_mov_b64 exec, 0xffff")
            a(f"buffer_load_dwordx4 v[{pE}:{pE+1}], s[16:19], 0 idxen offen {opt('eflag', '').replace('_', ' ')} lds")
            a("s_mov_b64 exec, -1")
            if filler: a(filler)
    for p in LATE: dma_part(p, 0, 2)
    stamp()
    if dbg: a("s_memrealtime s[72:73]\ns_waitcnt lgkmcnt(0)")
    a("s_add_u32 s37, s37, 31")
    a("s_lshr_b32 s37, s37, 5")
    def chain(z, h):
        return [mf(z, vFX, vI, None), mf(z, vFX + 4, vI + 4, z), mf(z, vAE, vC, z), mf(z, vAO, vXA, z),
                mf(h, vFH, vI, None), mf(h, vFH + 4, vI + 4, h)]
    nlab = [0]
    def prio(p):
        if PRIO == "pair": a(f"s_setprio {p}")
        if PRIO == "pairbal":
            nlab[0] += 1
            a(f"s_setprio {p}")
            a(f"s_cbranch_vccz M_pr{nlab[0]}")
            a(f"s_setprio {p + 2}")
            a(f"M_pr{nlab[0]}:")
    if flag("tl"): a("s_memrealtime s[84:85]\ns_waitcnt lgkmcnt(0)")
    a("M_loop:")
    loop_start = len(a.l)
    UNR = int(opt("unr", "6"))
    for k in range(UNR):
        es = k % 3; es1 = (k + 1) % 3; gs1 = (k + 1) % 2
        gs2 = k % 2; es2 = (k + 2) % 3
        z, h = vZ, vHV
        a.c(f"---- position {k}: e/one-hot slot {es} ----")
        if PRIO == "bal" and k % 2 == 0:
            a(f"s_cmp_ge_u32 s37, 9\ns_cbranch_scc1 M_prio_done{k}\ns_setprio 2\ns_cmp_ge_u32 s37, 5\ns_cbranch_scc1 M_prio_done{k}\ns_setprio 1\ns_cmp_ge_u32 s37, 2\ns_cbranch_scc1 M_prio_done{k}\ns_setprio 0\nM_prio_done{k}:")
        if PRIO == "pairbal":
            a(f"s_cmp_gt_u32 s37, {opt('X', '4')}")
            a("s_cselect_b64 vcc, -1, 0")
        early = list(EARLY)
        ch = chain(z, h)
        SKIP = flag("skip")
        nsk = [0]
        def guarded(cond, fn):
            if not SKIP: fn(); return
            nsk[0] += 1
            a(f"s_cmp_lt_u32 s37, {cond}")
            a(f"s_cbranch_scc1 M_sk{k}_{cond}_{nsk[0]}")
            fn()
            a(f"M_sk{k}_{cond}_{nsk[0]}:")
        _dp = dma_part
        def dma_early(p): guarded(3, lambda: _dp(p, gs2, es2))
        if len(early) <= 3:
            if early: dma_early(early.pop(0))
            a("s_waitcnt lgkmcnt(0)")
            for s_ in range(2):
                a(f"ds_read_b64_tr_b16 v[{vSO+4*s_}:{vSO+4*s_+1}], v{vT0} offset:{es*1024 + s_*512}")
                a(f"ds_read_b64_tr_b16 v[{vSO+4*s_+2}:{vSO+4*s_+3}], v{vT0} offset:{es*1024 + s_*512 + 256}")
            for x in ch[0:4]: a(x)
            if early: dma_early(early.pop(0))
            for x in ch[4:6]: a(x)
            while early: dma_early(early.pop(0))
        else:
            a("s_waitcnt lgkmcnt(0)")
            for s_ in range(2):
                a(f"ds_read_b64_tr_b16 v[{vSO+4*s_}:{vSO+4*s_+1}], v{vT0} offset:{es*1024 + s_*512}")
                a(f"ds_read_b64_tr_b16 v[{vSO+4*s_+2}:{vSO+4*s_+3}], v{vT0} offset:{es*1024 + s_*512 + 256}")
            for j, x in enumerate(ch):
                a(x)
                if early and j < 5: dma_part(early.pop(0), gs2, es2)
            while early: dma_part(early.pop(0), gs2, es2)
        if SKIP:
            a("s_cmp_lt_u32 s37, 3")
            a(f"s_cbranch_scc1 M_w0_{k}")
            a("s_waitcnt vmcnt(5) lgkmcnt(0)")
            a(f"s_branch M_w1_{k}")
            a(f"M_w0_{k}:")
            a("s_waitcnt vmcnt(0) lgkmcnt(0)")
            a(f"M_w1_{k}:")
        else:
            a("s_waitcnt vmcnt(5) lgkmcnt(0)")
        a("s_barrier")
        frag_reads(gs1, es1)
        T3 = k + 3
        for q in range(4):
            a(f"ds_read_b32 v{pG+2*q}, v{vLs} offset:{128*T3 + 32*q}")
        a(f"ds_read_b32 v{pE}, v{vLe} offset:{128*T3}")
        a(f"ds_read_u8 v{vQ}, v{vLq} offset:{32*k}")
        if k == 1:
            a("s_cmp_eq_u32 s53, 0")
            a("s_cbranch_scc1 M_xu_done")
            xu_load()
            a("s_mov_b32 s53, 0")
            a("M_xu_done:")
        ex = [f"v_exp_f32 v{z+r}, v{z+r}" for r in range(16)]
        ad = [f"v_add_f32 v{z+r}, 1.0, v{z+r}" for r in range(16)]
        rc = [f"v_rcp_f32 v{z+r}, v{z+r}" for r in range(16)]
        mu = [f"v_mul_f32 v{z+r}, v{z+r}, v{h+r}" for r in range(16)]
        cv = [f"v_cvt_pk_bf16_f32 v{vMSG+r}, v{z+2*r}, v{z+2*r+1}" for r in range(8)]
        for x in ex: a(x)
        prio(0)
        for x in ad: a(x)
        prio(1)
        a("s_waitcnt lgkmcnt(0)")
        late = list(LATE)
        pos = {5: [0, 3, 6, 9, 12], 2: [1, 9], 1: [4], 0: []}[len(late)]
        r0 = 0
        for p, at in zip(late, pos):
            for x in rc[r0:at]: a(x)
            if SKIP:
                a(rc[at])
                guarded(4, lambda: _dp(p, gs1, es))
            else:
                dma_part(p, gs1, es, rc[at])
            r0 = at + 1
        for x in rc[r0:16]: a(x)
        a(f"v_lshl_add_u32 v{vOHa}, v{vQ}, 1, v{vK+es}")
        a("s_mov_b64 exec, 0xffff")
        a(f"ds_write_b16 v{vOHa}, v{vOHd}")
        a("s_mov_b64 exec, -1")
        prio(0)
        for x in mu: a(x)
        prio(1)
        for x in cv: a(x)
        a("s_sub_u32 s37, s37, 1")
        a(mf(vACC, vSO, vMSG, vACC))
        a(mf(vACC, vSO + 4, vMSG + 4, vACC))
        a("s_cmp_eq_u32 s37, 0")
        a("s_cbranch_scc1 M_loop_done")
    a(f"v_add_u32 v{vLs}, {128*UNR}, v{vLs}")
    a(f"v_add_u32 v{vLe}, {128*UNR}, v{vLe}")
    a(f"v_add_u32 v{vLq}, {32*UNR}, v{vLq}")
    a("s_branch M_loop")
    abl = [x[6:] for x in ARGS if x.startswith("--abl_")]
    if abl:
        body = a.l[loop_start:]
        def drop(l):
            t = l.strip()
            if "dma" in abl and t.startswith("buffer_load") and " lds" in t: return True
            if "valu" in abl and t.startswith(("v_exp", "v_add_f32", "v_rcp", "v_mul_f32", "v_cvt_pk")): return True
            if "mfma" in abl and t.startswith("v_mfma"): return True
            if "bar" in abl and t.startswith("s_barrier"): return True
            if "frag" in abl and t.startswith("ds_read_b128"): return True
            if "tr" in abl and t.startswith("ds_read_b64_tr"): return True
            if "idx" in abl and t.startswith(("ds_read_b32", "ds_read_u8")): return True
            if "oh" in abl and t.startswith("ds_write_b16"): return True
            if "dmae" in abl and t.startswith("buffer_load") and "s[16:19]" in t: return True
            if "dmag" in abl and t.startswith("buffer_load") and "s[24:27]" in t: return True
            return False
        body = [l for l in body if not drop(l)]
        if "vmw" in abl: body = [l.replace("vmcnt(5) ", "") for l in body]
        a.l[loop_start:] = body
    a("M_loop_done:")
    if flag("tl"): a("s_memrealtime s[86:87]\ns_waitcnt lgkmcnt(0)")
    stamp()
    if dbg: a("s_memrealtime s[74:75]\ns_waitcnt lgkmcnt(0)")
    a("s_cmp_eq_u32 s53, 0")
    a("s_cbranch_scc1 M_xu_done2")
    xu_load()
    a("s_mov_b32 s53, 0")
    a("M_xu_done2:")
    a("s_waitcnt vmcnt(0) lgkmcnt(0)")
    a("s_barrier")
    a(f"s_add_u32 s36, s36, {CAP}")
    a("s_cmp_lt_u32 s36, s35")
    a("s_cbranch_scc1 M_batch")
    hot = a.l
    a.l = cold
    a("M_empty:")
    xu_load()
    a("s_waitcnt vmcnt(0)")
    a("s_branch M_epilogue")
    cold = a.l
    a.l = hot
    a("M_epilogue:")
    a(f"v_mul_u32_u24 v{t0}, {4*AGG_STRIDE}, v{vH}")
    a(f"v_lshl_add_u32 v{t0}, v{vE5}, 2, v{t0}")
    a("s_lshl_b32 s39, s32, 7")
    a(f"v_add_u32 v{t0}, s39, v{t0}")
    a("s_nop 7")
    for r in range(8):
        a(f"ds_write_b32 v{t0}, v{vACC+r} offset:{L_GR + (8*(r >> 2) + (r & 3))*AGG_STRIDE}")
    a(f"v_lshrrev_b32 v{t0}, 4, v0")
    a(f"v_and_b32 v{t1}, 15, v0")
    a(f"v_mul_u32_u24 v{t2}, {AGG_STRIDE}, v{t0}")
    a(f"v_lshl_add_u32 v{t2}, v{t1}, 5, v{t2}")
    a(f"v_add_u32 v{t3}, s33, v{t0}")
    a(f"v_lshlrev_b32 v{t3}, 8, v{t3}")
    a(f"v_lshl_add_u32 v{t3}, v{t1}, 4, v{t3}")
    a(f"s_mov_b32 s38, {NEG_LOG2E:#x}")
    a("s_waitcnt lgkmcnt(0)")
    a("s_barrier")
    y = vZ; w_ = vHV
    a(f"ds_read_b128 v[{y}:{y+3}], v{t2} offset:{L_GR}")
    a(f"ds_read_b128 v[{y+4}:{y+7}], v{t2} offset:{L_GR + 16}")
    for i in range(4):
        a(f"v_lshlrev_b32 v{w_+2*i}, 16, v{vXU+i}")
        a(f"v_and_b32 v{w_+2*i+1}, 0xffff0000, v{vXU+i}")
    a("s_waitcnt lgkmcnt(0)")
    for r in range(8): a(f"v_add_f32 v{y+r}, v{y+r}, v{w_+r}")
    for r in range(8): a(f"v_mul_f32 v{w_+r}, s38, v{y+r}")
    for r in range(8): a(f"v_exp_f32 v{w_+r}, v{w_+r}")
    for r in range(8): a(f"v_add_f32 v{w_+r}, 1.0, v{w_+r}")
    for r in range(8): a(f"v_rcp_f32 v{w_+r}, v{w_+r}")
    a("s_nop 0")
    for r in range(8): a(f"v_mul_f32 v{y+r}, v{y+r}, v{w_+r}")
    for r in range(4): a(f"v_cvt_pk_bf16_f32 v{vMSG+r}, v{y+2*r}, v{y+2*r+1}")
    if dbg:
        stamp()
        a("s_memrealtime s[62:63]\ns_waitcnt lgkmcnt(0)")
        a("s_mov_b32 s52, s10\ns_and_b32 s53, s11, 0xffff\ns_mov_b32 s54, 0x1000000\ns_mov_b32 s55, 0x20000")
        a(f"s_lshl_b32 s56, s2, 2\ns_add_u32 s56, s56, s32\ns_lshl_b32 s56, s56, 6\ns_add_u32 s56, s56, {DBG2:#x}")
        vals = [64, 65, 66, 67, 68, 69, 70, 71, 60, 62, 35, 72, 74]
        a("s_mov_b64 s[50:51], exec\ns_mov_b64 exec, 1")
        for i, r in enumerate(vals):
            a(f"v_mov_b32 v{vT+20}, s{r}")
            a(f"v_mov_b32 v{vT+21}, 0")
            a(f"buffer_store_dword v{vT+20}, v{vT+21}, s[52:55], s56 offen offset:{4*i}")
        a("s_mov_b64 exec, s[50:51]")
    if flag("tl"):
        a("s_memrealtime s[70:71]\ns_waitcnt lgkmcnt(0)")
        a("s_mov_b32 s76, s10\ns_and_b32 s77, s11, 0xffff\ns_mov_b32 s78, 0x1000000\ns_mov_b32 s79, 0x20000")
        a(f"s_lshl_b32 s75, s2, 2\ns_add_u32 s75, s75, s32\ns_lshl_b32 s75, s75, 4\ns_add_u32 s75, s75, {DBG2:#x}")
        a("s_mov_b64 s[80:81], exec\ns_mov_b64 exec, 1")
        a(f"v_mov_b32 v{vT+18}, s68\nv_mov_b32 v{vT+19}, s70\nv_mov_b32 v{vT+20}, s84\nv_mov_b32 v{vT+21}, s86\nv_mov_b32 v{vT+22}, 0")
        a(f"buffer_store_dwordx4 v[{vT+18}:{vT+21}], v{vT+22}, s[76:79], s75 offen")
        a("s_mov_b64 exec, s[80:81]")
    a(f"v_cmp_gt_u32 vcc, s34, v{t0}")
    a("s_mov_b64 exec, vcc")
    a("s_cbranch_execz M_end")
    a(f"buffer_store_dwordx4 v[{vMSG}:{vMSG+3}], v{t3}, s[28:31], 0 offen {opt('oflag', '').replace('_', ' ')}")
    a("M_end:")
    a("s_endpgm")
    a.l += cold
    a("M_last:")
    return a.text() + descriptor(KNAME, NVGPR, 96 if (dbg or flag("tl")) else 60)

HEAD = f"""; Edge-gated message passing (gated graph convolution) for gfx950, two launches.
;
;           XA = -log2e * x@A, XU = x@U (weights transposed with ds_read_b64_tr_b16)
;   cfrag : -log2e * C in MFMA operand layout
;   builds its edge list from T and the records, then per tile of 32 edges: TAB rows and e_attr rows are
;   gathered into LDS by DMA, the gate pre-activation and the values come out of the matrix cores in one
;   segment sum as one-hot x message on the matrix cores; epilogue adds XU and applies silu.
; @launch kernel=prep_kernel grid=({P_GRID},1,1) block=({P_BLOCK},1,1) lds={P_LDS}
; @launch kernel={KNAME} grid=({NB},1,1) block=(256,1,1) lds={M_LDS}
.amdgcn_target "amdgcn-amd-amdhsa--gfx950"
.text
"""

def tl_kernel():
    a = A()
    header(a, "tl_kernel")
    a("s_cmp_ge_u32 s2, 1\ns_cbranch_scc1 T_end")
    a("s_load_dwordx4 s[4:7], s[0:1], 64\ns_waitcnt lgkmcnt(0)")
    a("s_mov_b32 s8, s4\ns_and_b32 s9, s5, 0xffff\ns_mov_b32 s10, 256\ns_mov_b32 s11, 0x20000")
    a("s_mov_b32 s12, s6\ns_and_b32 s13, s7, 0xffff\ns_mov_b32 s14, 0x1000000\ns_mov_b32 s15, 0x20000")
    a("v_mov_b32 v10, 0")
    a(f"v_lshlrev_b32 v1, 6, v0\nv_add_u32 v1, {DBG2}, v1")
    a("v_cmp_gt_u32 vcc, 768, v0\ns_mov_b64 exec, vcc")
    a("buffer_load_dwordx4 v[4:7], v1, s[12:15], 0 offen\ns_waitcnt vmcnt(0)")
    a("v_not_b32 v8, v4\nbuffer_atomic_umax v8, v10, s[8:11], 0 offen offset:0")
    a("buffer_atomic_umax v4, v10, s[8:11], 0 offen offset:4")
    a("buffer_atomic_umax v5, v10, s[8:11], 0 offen offset:8")
    a("v_not_b32 v8, v6\nbuffer_atomic_umax v8, v10, s[8:11], 0 offen offset:12")
    a("buffer_atomic_umax v6, v10, s[8:11], 0 offen offset:16")
    a("v_not_b32 v8, v7\nbuffer_atomic_umax v8, v10, s[8:11], 0 offen offset:20")
    a("buffer_atomic_umax v7, v10, s[8:11], 0 offen offset:24")
    a("s_mov_b64 exec, -1")
    a(f"v_lshlrev_b32 v1, 7, v0\nv_add_u32 v1, {DBG1}, v1")
    a(f"v_cmp_gt_u32 vcc, {NCH + 2*P_NG}, v0\ns_mov_b64 exec, vcc")
    a("s_cbranch_execz T_end")
    a("buffer_load_dwordx2 v[4:5], v1, s[12:15], 0 offen\ns_waitcnt vmcnt(0)")
    a("v_not_b32 v8, v4\nbuffer_atomic_umax v8, v10, s[8:11], 0 offen offset:28")
    a("buffer_atomic_umax v5, v10, s[8:11], 0 offen offset:32")
    a(f"v_cmp_gt_u32 vcc, {NCH}, v0\ns_mov_b64 exec, vcc")
    a("s_cbranch_execz T_end")
    a("buffer_atomic_umax v5, v10, s[8:11], 0 offen offset:36")
    a("T_end:\ns_endpgm")
    return a.text() + descriptor("tl_kernel", 16, 32)

def build(dbg=False):
    h = HEAD
    if flag("tl"):
        h = h.replace(".amdgcn_target", "; @launch kernel=tl_kernel grid=(1,1,1) block=(1024,1,1) lds=0\n.amdgcn_target")
    return h + prep_kernel(dbg) + main_kernel(dbg) + (tl_kernel() if flag("tl") else "")

if __name__ == "__main__":
    args = [x for x in ARGS if not x.startswith("--")]
    out = args[0] if args else "gather_scatter__edge_featured_mpnn_egc__graph.s"
    open(out, "w").write(build(dbg=flag("dbg")))
    print("wrote", out, "M_LDS", M_LDS, "P_LDS", P_LDS)
```

```python
import sys

N = 10000; E = 320000
NB = 768
NCH = 64; CH = 5000
MAGIC_G = 214749
WS_T = 0
WS_W = 0x60000
WS_REC = 0x80000
MAGIC_R = 6554
WS_SZ = 0x200000
WS_TAB = 0x200000
WS_XA = 0x700000
WS_XU = 0x980000
DBG2, DBG1 = 0xC00000, 0xE00000
NEG_LOG2E = 0xBFB8AA3B
KNAME = "gather_scatter__edge_featured_mpnn_egc__graph_kernel"
ARGS = sys.argv[1:]
def flag(n): return ("--" + n) in ARGS
def opt(n, d):
    for x in ARGS:
        if x.startswith("--" + n + "="): return x.split("=", 1)[1]
    return d

S0 = int(opt('s0', '16')); S1 = int(opt('s1', '13'))
assert S0 <= 16 and S1 <= 16 and 40 - S0 - S1 <= 16

class A:
    def __init__(self):
        self.l = []
    def __call__(self, s=""):
        for x in s.split("\n"):
            x = x.strip()
            if not x: continue
            if x.endswith(":"):
                self.l.append(x)
            else:
                self.l.append("    " + x)
    def c(self, s):
        self.l.append("    ; " + s)
    def raw(self, s):
        self.l.append(s)
    def text(self):
        return "\n".join(self.l) + "\n"

def srd(a, r, lo, hi, size, stride=0, add=0):
    if add:
        a(f"s_add_u32 s{r}, s{lo}, {add:#x}")
        a(f"s_addc_u32 s{r+1}, s{hi}, 0")
        a(f"s_and_b32 s{r+1}, s{r+1}, 0xffff")
    else:
        a(f"s_mov_b32 s{r}, s{lo}")
        a(f"s_and_b32 s{r+1}, s{hi}, 0xffff")
    if stride:
        a(f"s_or_b32 s{r+1}, s{r+1}, {stride << 16:#x}")
    a(f"s_mov_b32 s{r+2}, {size:#x}")
    a(f"s_mov_b32 s{r+3}, 0x20000")

def wave_scan(a, v):
    for sh in (1, 2, 4, 8):
        a("s_nop 1")
        a(f"v_add_u32_dpp v{v}, v{v}, v{v} row_shr:{sh} row_mask:0xf bank_mask:0xf bound_ctrl:1")
    a("s_nop 1")
    a(f"v_add_u32_dpp v{v}, v{v}, v{v} row_bcast:15 row_mask:0xa bank_mask:0xf")
    a("s_nop 1")
    a(f"v_add_u32_dpp v{v}, v{v}, v{v} row_bcast:31 row_mask:0xc bank_mask:0xf")
    a("s_nop 1")

def header(a, name):
    a.raw(f".globl {name}")
    a.raw(".p2align 8")
    a.raw(f".type {name},@function")
    a.raw(f"{name}:")

def descriptor(name, vgpr, sgpr):
    acc = (vgpr + 3) // 4 * 4
    return f""".section .rodata,"a"
.p2align 6
.amdhsa_kernel {name}
  .amdhsa_next_free_vgpr {vgpr}
  .amdhsa_next_free_sgpr {sgpr}
  .amdhsa_accum_offset {acc}
  .amdhsa_group_segment_fixed_size 0
  .amdhsa_kernarg_size 80
  .amdhsa_user_sgpr_count 2
  .amdhsa_user_sgpr_kernarg_segment_ptr 1
  .amdhsa_system_sgpr_workgroup_id_x 1
  .amdhsa_float_denorm_mode_32 3
.end_amdhsa_kernel
.text
"""

def mf(d, x, y, c):
    cs = "0" if c is None else f"v[{c}:{c+15}]"
    return f"v_mfma_f32_32x32x16_bf16 v[{d}:{d+15}], v[{x}:{x+3}], v[{y}:{y+3}], {cs}"

XGRP = 1088
XSLOT = 8 * XGRP

def xfrag_addr(a, d0, d1, row, h, t0, t1, t2):
    a(f"v_lshrrev_b32 v{t0}, 2, v{row}")
    a(f"v_mul_u32_u24 v{t0}, {XGRP}, v{t0}")
    a(f"v_and_b32 v{t1}, 3, v{row}")
    a(f"v_lshl_add_u32 v{t0}, v{t1}, 8, v{t0}")
    a(f"v_xor_b32 v{t2}, v{h}, v{t1}")
    a(f"v_lshl_add_u32 v{d0}, v{t2}, 4, v{t0}")
    a(f"v_xor_b32 v{t2}, 2, v{t2}")
    a(f"v_lshl_add_u32 v{d1}, v{t2}, 4, v{t0}")

P_BLOCK = 640
P_NG = 79
P_PF0 = NCH + 2 * P_NG + 1
PF_I = int(opt('pfi', '0'))
PF_G = int(opt('pfg', '0'))
PF_S = int(opt('pfs', '0'))
P_NPF = 33 if PF_I else 0
P_GRID = P_PF0 + P_NPF
P_HIST, P_START, P_TOT, P_SORT = 0, 12288, 24576, 24640
G_W0, G_W1, G_X = 0, 32768, 65536
G_ST = G_X + 4 * XSLOT
P_LDS = G_ST + 8 * 4096

def prep_kernel(dbg=False):
    SF = opt("sflag", "").replace("_", " ")
    SFR = opt("rflag", opt("sflag", "")).replace("_", " ")
    a = A()
    nst = [0]
    def stamp():
        if not dbg: return
        a("s_waitcnt lgkmcnt(0)\ns_memtime s[40:41]\ns_waitcnt lgkmcnt(0)")
        a(f"s_mov_b32 s{50+nst[0]}, s40")
        nst[0] += 1
    def dump(role):
        if not dbg: return
        while nst[0] < 8: stamp()
        a("s_memrealtime s[46:47]\ns_load_dwordx2 s[42:43], s[0:1], 72\ns_waitcnt lgkmcnt(0)")
        a("s_mov_b32 s60, s42\ns_and_b32 s61, s43, 0xffff\ns_mov_b32 s62, 0x1000000\ns_mov_b32 s63, 0x20000")
        a("v_lshrrev_b32 v158, 6, v0\ns_nop 0\nv_readfirstlane_b32 s48, v158\ns_nop 3")
        a(f"s_lshl_b32 s49, s2, 4\ns_add_u32 s49, s49, s48\ns_lshl_b32 s49, s49, 6\ns_add_u32 s49, s49, {DBG1:#x}")
        a("s_mov_b64 exec, 1")
        for i, r in enumerate([50,51,52,53,54,55,56,57,44,46]):
            a(f"v_mov_b32 v158, s{r}\nv_mov_b32 v159, 0\nbuffer_store_dword v158, v159, s[60:63], s49 offen offset:{4*i}")
        a(f"v_mov_b32 v158, {role}\nv_mov_b32 v159, 0\nbuffer_store_dword v158, v159, s[60:63], s49 offen offset:40")
        nst[0] = 0
    TL = flag("tl")
    def tl_end():
        if not TL: return
        a("s_waitcnt vmcnt(0) lgkmcnt(0)")
        a("s_memrealtime s[70:71]\ns_load_dwordx2 s[72:73], s[0:1], 72\ns_waitcnt lgkmcnt(0)")
        a("s_mov_b32 s76, s72\ns_and_b32 s77, s73, 0xffff\ns_mov_b32 s78, 0x1000000\ns_mov_b32 s79, 0x20000")
        a("v_lshrrev_b32 v158, 6, v0\ns_nop 0\nv_readfirstlane_b32 s74, v158\ns_nop 3")
        a(f"s_lshl_b32 s75, s2, 4\ns_add_u32 s75, s75, s74\ns_lshl_b32 s75, s75, 3\ns_add_u32 s75, s75, {DBG1:#x}")
        a("s_mov_b64 exec, 1\nv_mov_b32 v156, s68\nv_mov_b32 v157, s70\nv_mov_b32 v159, 0")
        a("buffer_store_dwordx2 v[156:157], v159, s[76:79], s75 offen")
    header(a, "prep_kernel")
    if TL: a("s_memrealtime s[68:69]")
    if dbg:
        a("s_memrealtime s[44:45]")
        stamp()
    a(f"s_cmp_ge_u32 s2, {P_GRID}")
    a("s_cbranch_scc1 P_end")
    if PF_I:
        a(f"s_cmp_ge_u32 s2, {P_PF0}")
        a("s_cbranch_scc1 P_pfi")
    a(f"s_cmp_ge_u32 s2, {NCH + 2*P_NG}")
    a("s_cbranch_scc1 P_weights")
    a(f"s_cmp_ge_u32 s2, {NCH}")
    a("s_cbranch_scc1 P_gemm" if opt("only", "") != "sort" else "s_cbranch_scc1 P_end")
    if opt("only", "") == "gemm": a("s_branch P_end")
    a("s_load_dwordx4 s[4:7], s[0:1], 16")
    a("s_load_dwordx2 s[8:9], s[0:1], 72")
    a("v_lshlrev_b32 v2, 4, v0")
    a("v_mov_b32 v4, 0\nv_mov_b32 v5, 0\nv_mov_b32 v6, 0\nv_mov_b32 v7, 0")
    a("ds_write_b128 v2, v[4:7]")
    a("ds_write_b128 v2, v[4:7] offset:10240")
    a("v_lshlrev_b32 v1, 4, v0")
    a(f"s_mul_i32 s3, s2, {CH*4}")
    a(f"s_mov_b32 s20, {MAGIC_G}")
    a("s_movk_i32 s21, 625")
    a(f"s_movk_i32 s28, {-S0}")
    a(f"s_movk_i32 s31, {-S1}")
    a("v_lshrrev_b32 v2, 6, v0")
    a("v_mov_b32 v3, 1")
    a("v_readfirstlane_b32 s22, v2")
    a("s_waitcnt lgkmcnt(0)")
    srd(a, 16, 6, 7, E * 4)
    a(f"v_cmp_gt_u32 vcc, {CH//8}, v0")
    a("s_mov_b64 exec, vcc")
    a(f"s_add_u32 s33, s3, {CH*2}")
    a("buffer_load_dwordx4 v[8:11], v1, s[16:19], s3 offen")
    a("buffer_load_dwordx4 v[12:15], v1, s[16:19], s33 offen")
    srd(a, 12, 4, 5, E * 4)
    a("buffer_load_dwordx4 v[16:19], v1, s[12:15], s3 offen")
    a("buffer_load_dwordx4 v[20:23], v1, s[12:15], s33 offen")
    if PF_S:
        a("s_load_dwordx2 s[36:37], s[0:1], 8")
        a("s_mul_i32 s34, s2, 10\ns_add_u32 s34, s34, s22")
        a(f"s_mul_i32 s34, s34, {PF_S*1024}\ns_add_u32 s34, s34, {P_NPF*10*PF_I*1024 + 2*P_NG*2*PF_G*1024}")
        a("v_and_b32 v2, 63, v0\nv_lshlrev_b32 v2, 4, v2")
        a("s_waitcnt lgkmcnt(0)")
        a(f"s_and_b32 s37, s37, 0xffff\ns_mov_b32 s38, {E*32}\ns_mov_b32 s39, 0x20000")
        for i in range(PF_S):
            a(f"buffer_load_dwordx4 v[{96+4*(i%16)}:{99+4*(i%16)}], v2, s[36:39], s34 offen offset:{(i%4)*1024}")
            if i % 4 == 3 and i + 1 < PF_S: a("s_add_u32 s34, s34, 4096")
    srd(a, 24, 8, 9, WS_SZ)
    a("v_lshlrev_b32 v64, 21, v0")
    a("s_barrier")
    stamp()
    a(f"s_waitcnt vmcnt({2 + PF_S})")
    vD, vS, vBk, vAd, vRk, vRec, vT = 8, 16, 24, 32, 40, 48, 56
    for i in range(8): a(f"v_mul_u32_u24 v{vBk+i}, s20, v{vD+i}")
    for i in range(8): a(f"v_lshrrev_b32 v{vBk+i}, 23, v{vBk+i}")
    for i in range(8): a(f"v_mad_u32_u24 v{vRec+i}, v{vBk+i}, s21, 15")
    for i in range(8): a(f"v_lshrrev_b32 v{vRec+i}, 4, v{vRec+i}")
    for i in range(8): a(f"v_sub_u32 v{vRec+i}, v{vD+i}, v{vRec+i}")
    if S0 == 16 and S1 == 16:
        for i in range(8): a(f"v_lshrrev_b32 v{vT+i}, 4, v{vRec+i}")
        for i in range(8): a(f"v_and_b32 v{vRec+i}, 15, v{vRec+i}")
    else:
        for i in range(8): a(f"v_add_u32 v{vT+i}, {64 - S0}, v{vRec+i}")
        for i in range(8): a(f"v_add_u32 v{vAd+i}, {64 - S0 - S1}, v{vRec+i}")
        for i in range(8): a(f"v_lshrrev_b32 v{vT+i}, 6, v{vT+i}")
        for i in range(8): a(f"v_lshrrev_b32 v{vAd+i}, 6, v{vAd+i}")
        for i in range(8): a(f"v_mad_i32_i24 v{vRec+i}, v{vT+i}, s28, v{vRec+i}")
        for i in range(8): a(f"v_mad_i32_i24 v{vRec+i}, v{vAd+i}, s31, v{vRec+i}")
        for i in range(8): a(f"v_add_u32 v{vT+i}, v{vT+i}, v{vAd+i}")
    for i in range(8): a(f"v_lshl_add_u32 v{vBk+i}, v{vT+i}, 8, v{vBk+i}")
    a(f"s_waitcnt vmcnt({PF_S})")
    stamp()
    a(f"s_movk_i32 s29, {6554}")
    for i in range(8): a(f"v_mul_u32_u24 v{vT+i}, s29, v{vS+i}")
    for i in range(8): a(f"v_lshrrev_b32 v{vT+i}, 24, v{vT+i}")
    for i in range(8): a(f"v_lshl_add_u32 v{vAd+i}, v{vBk+i}, 2, v{vT+i}")
    for i in range(8): a(f"v_lshlrev_b32 v{vAd+i}, 2, v{vAd+i}")
    for i in range(8): a(f"ds_add_rtn_u32 v{vRk+i}, v{vAd+i}, v3")
    for i in range(8): a(f"v_lshl_or_b32 v{vRec+i}, v{vRec+i}, 14, v{vS+i}")
    for i in range(8):
        a(f"s_mov_b32 s30, {((i & 3) + (CH // 2) * (i >> 2)) << 19:#x}")
        a(f"v_add3_u32 v{vRec+i}, v{vRec+i}, v64, s30")
    a("s_waitcnt lgkmcnt(0)")
    stamp()
    a("s_barrier")
    c0, p0 = 68, 76
    a("s_cmp_ge_u32 s22, 6")
    a("s_cbranch_scc1 P_scan1_done")
    a("v_lshlrev_b32 v2, 5, v0")
    a(f"ds_read_b128 v[{c0}:{c0+3}], v2 offset:{P_HIST}")
    a(f"ds_read_b128 v[{c0+4}:{c0+7}], v2 offset:{P_HIST+16}")
    a("s_waitcnt lgkmcnt(0)")
    a(f"v_mov_b32 v{p0}, 0")
    a(f"v_mov_b32 v{p0+1}, v{c0}")
    for k in range(2, 8): a(f"v_add_u32 v{p0+k}, v{p0+k-1}, v{c0+k-1}")
    a(f"v_add_u32 v84, v{p0+7}, v{c0+7}")
    a("v_mov_b32 v85, v84")
    wave_scan(a, 85)
    a("v_readlane_b32 s23, v85, 63")
    a("v_sub_u32 v85, v85, v84")
    a("s_lshl_b32 s30, s22, 2")
    a("v_mov_b32 v87, s30")
    a("v_mov_b32 v86, s23")
    a(f"ds_write_b32 v87, v86 offset:{P_TOT}")
    a("s_waitcnt lgkmcnt(0)")
    a("P_scan1_done:")
    a("s_barrier")
    a("s_cmp_ge_u32 s22, 6")
    a("s_cbranch_scc1 P_noscan")
    a("v_mov_b32 v87, 0")
    a(f"ds_read_b128 v[88:91], v87 offset:{P_TOT}")
    a(f"ds_read_b64 v[92:93], v87 offset:{P_TOT+16}")
    a("s_waitcnt lgkmcnt(0)")
    a("s_mov_b32 s30, 0")
    for k in range(5):
        a(f"v_readfirstlane_b32 s23, v{88+k}")
        a(f"s_cmp_gt_u32 s22, {k}")
        a("s_nop 1")
        a("s_cselect_b32 s23, s23, 0")
        a("s_add_u32 s30, s30, s23")
    a("v_add_u32 v85, s30, v85")
    for k in range(8): a(f"v_add_u32 v{p0+k}, v{p0+k}, v85")
    a(f"ds_write_b128 v2, v[{p0}:{p0+3}] offset:{P_START}")
    a(f"ds_write_b128 v2, v[{p0+4}:{p0+7}] offset:{P_START+16}")
    for b in range(2):
        cc = c0 + 4*b; pp = p0 + 4*b; o = 88 + 2*b
        a(f"v_add3_u32 v86, v{cc}, v{cc+1}, v{cc+2}")
        a(f"v_add_u32 v86, v86, v{cc+3}")
        a(f"v_lshl_or_b32 v{o}, v86, 16, v{pp}")
        for k in range(3): a(f"v_min_u32 v{cc+k}, 0xff, v{cc+k}")
        a(f"v_lshl_or_b32 v{o+1}, v{cc+1}, 8, v{cc}")
        a(f"v_lshl_or_b32 v{o+1}, v{cc+2}, 16, v{o+1}")
    a(f"s_mul_i32 s23, s2, {NB*8}")
    a("v_lshlrev_b32 v86, 4, v0")
    a(f"buffer_store_dwordx4 v[88:91], v86, s[24:27], s23 offen offset:{WS_T} {SFR}")
    a("s_waitcnt lgkmcnt(0)")
    a("P_noscan:")
    a("s_barrier")
    stamp()
    for i in range(8): a(f"ds_read_b32 v{vT+i}, v{vAd+i} offset:{P_START}")
    a("s_waitcnt lgkmcnt(0)")
    for i in range(8): a(f"v_add_lshl_u32 v{vT+i}, v{vT+i}, v{vRk+i}, 2")
    for i in range(8): a(f"ds_write_b32 v{vT+i}, v{vRec+i} offset:{P_SORT}")
    a("s_waitcnt lgkmcnt(0)")
    a("s_barrier")
    a(f"ds_read_b128 v[4:7], v1 offset:{P_SORT}")
    a(f"ds_read_b128 v[8:11], v1 offset:{P_SORT + CH*2}")
    a(f"s_add_u32 s3, s3, {WS_REC}")
    a(f"s_add_u32 s33, s3, {CH*2}")
    a("s_waitcnt lgkmcnt(1)")
    a(f"buffer_store_dwordx4 v[4:7], v1, s[24:27], s3 offen {SFR}")
    a("s_waitcnt lgkmcnt(0)")
    a(f"buffer_store_dwordx4 v[8:11], v1, s[24:27], s33 offen {SFR}")
    stamp()
    if dbg: a("s_waitcnt vmcnt(0)")
    dump(1)
    tl_end()
    a("s_endpgm")
    a("P_gemm:")
    nst[0] = 1
    a("s_load_dwordx2 s[4:5], s[0:1], 0")
    a("s_load_dwordx4 s[8:11], s[0:1], 32")
    a("s_load_dwordx2 s[34:35], s[0:1], 48")
    a("s_load_dwordx2 s[6:7], s[0:1], 72")
    a("v_lshrrev_b32 v2, 6, v0")
    a("v_and_b32 v1, 63, v0")
    a("v_readfirstlane_b32 s22, v2")
    a(f"s_sub_u32 s3, s2, {NCH}")
    a(f"s_cmp_ge_u32 s3, {P_NG}")
    a("s_cselect_b32 s36, 1, 0")
    a(f"s_cselect_b32 s37, {P_NG}, 0")
    a("s_sub_u32 s3, s3, s37")
    a("s_cmp_ge_u32 s22, 8")
    a("s_cbranch_scc1 P_pfg" if PF_G else "s_cbranch_scc1 P_pf" if (flag("epf") or flag("cpf")) else "s_cbranch_scc1 P_end")
    a("s_lshr_b32 s23, s22, 2")
    a("s_and_b32 s28, s22, 3")
    a("s_lshl_b32 s3, s3, 2")
    a("s_add_u32 s3, s3, s23")
    a("s_lshl_b32 s29, s3, 5")
    a("v_lshrrev_b32 v3, 4, v1")
    a("v_and_b32 v4, 15, v1")
    a("v_lshlrev_b32 v5, 2, v3")
    a("v_xor_b32 v5, v5, v4")
    a("v_lshlrev_b32 v5, 4, v5")
    a("v_lshl_add_u32 v5, v3, 8, v5")
    a("v_xor_b32 v4, v4, v3")
    a("v_lshlrev_b32 v7, 4, v4")
    a("v_mov_b32 v9, v7")
    a("s_waitcnt lgkmcnt(0)")
    sW1 = 44 if not dbg else 72
    a("s_cmp_eq_u32 s36, 0")
    a("s_cselect_b32 s30, 32768, 0")
    a(f"s_cselect_b32 s{sW1}, s10, s8\ns_cselect_b32 s{sW1+1}, s11, s9")
    a("s_add_u32 s16, s34, s30\ns_addc_u32 s17, s35, 0")
    a("s_and_b32 s17, s17, 0xffff")
    a("s_mov_b32 s18, 32768\ns_mov_b32 s19, 0x20000")
    a(f"s_and_b32 s{sW1+1}, s{sW1+1}, 0xffff")
    a(f"s_mov_b32 s{sW1+2}, 32768\ns_mov_b32 s{sW1+3}, 0x20000")
    srd(a, 12, 4, 5, N, stride=256)
    a("s_lshl_b32 s33, s22, 12")
    a("s_lshl_b32 s30, s28, 3")
    a("s_add_u32 s30, s30, s29")
    a(f"s_mul_i32 s31, s23, {XSLOT}")
    a(f"s_mul_i32 s37, s28, {2*XGRP}")
    a("s_add_u32 s31, s31, s37")
    def wdma(sr, lds):
        a(f"s_add_u32 m0, s33, {lds}")
        a("s_nop 0")
        for ii in range(4):
            a(f"buffer_load_dwordx4 v5, s[{sr}:{sr+3}], s33 offen offset:{ii*1024} lds")
    def xdma(ps):
        a("v_add_u32 v6, s30, v3")
        a("v_add_u32 v8, 4, v6")
        a(f"s_add_u32 m0, s31, {G_X + ps*2*XSLOT}")
        a("s_add_u32 s30, s30, 64")
        a("buffer_load_dwordx4 v[6:7], s[12:15], 0 idxen offen lds")
        a(f"s_add_u32 m0, s31, {G_X + ps*2*XSLOT + XGRP}")
        a("s_nop 0")
        a("buffer_load_dwordx4 v[8:9], s[12:15], 0 idxen offen lds")
    wdma(16, G_W0)
    xdma(0)
    wdma(sW1, G_W1)
    xdma(1)
    vE5, vH, vX0, vX1, vWt = 10, 11, 12, 13, 14
    a(f"v_and_b32 v{vE5}, 31, v1")
    a(f"v_lshrrev_b32 v{vH}, 5, v1")
    xfrag_addr(a, vX0, vX1, vE5, vH, 15, 16, 17)
    a(f"s_mul_i32 s30, s23, {XSLOT}")
    a(f"s_add_u32 s30, s30, {G_X}")
    a(f"v_add_u32 v{vX0}, s30, v{vX0}")
    a(f"v_add_u32 v{vX1}, s30, v{vX1}")
    a("v_lshrrev_b32 v15, 2, v1\nv_and_b32 v15, 3, v15")
    a("s_lshl_b32 s30, s28, 2")
    a("v_lshlrev_b32 v16, 2, v15")
    a("v_xor_b32 v16, s30, v16")
    a("v_lshrrev_b32 v17, 4, v1\nv_and_b32 v17, 1, v17")
    a("v_lshl_add_u32 v16, v17, 1, v16")
    a("v_lshrrev_b32 v17, 1, v1\nv_and_b32 v17, 1, v17")
    a("v_add_u32 v16, v16, v17")
    a("v_lshlrev_b32 v16, 4, v16")
    a("v_and_b32 v17, 1, v1")
    a("v_lshl_add_u32 v16, v17, 3, v16")
    a(f"v_lshl_add_u32 v15, v{vH}, 3, v15")
    a(f"v_lshl_add_u32 v{vWt}, v15, 8, v16")
    srd(a, 24, 6, 7, N * 512, add=WS_TAB)
    a("s_cmp_eq_u32 s36, 0")
    a("s_cbranch_scc1 P_g_bvsrd")
    srd(a, 24, 6, 7, N * 256, add=WS_XA)
    srd(a, 40 if not dbg else 64, 6, 7, N * 256, add=WS_XU)
    a("P_g_bvsrd:")
    sXU = 40 if not dbg else 64
    f0, f1, fX, d0, d1 = 32, 64, 96, 128, 144
    a("s_lshl_b32 s31, s22, 12")
    a(f"s_add_u32 s31, s31, {G_ST}")
    a(f"v_and_b32 v15, 7, v{vE5}")
    a(f"v_lshlrev_b32 v16, 1, v{vH}")
    a("v_xor_b32 v16, v16, v15")
    a("v_lshlrev_b32 v16, 4, v16")
    a(f"v_lshl_add_u32 v16, v{vE5}, 7, v16")
    a("v_add_u32 v16, s31, v16")
    a("v_lshrrev_b32 v20, 3, v1")
    a("v_and_b32 v21, 7, v1")
    a("v_xor_b32 v22, v21, v20")
    a("v_lshlrev_b32 v22, 4, v22")
    a("v_lshl_add_u32 v22, v20, 7, v22")
    a("v_add_u32 v22, s31, v22")
    a("v_add_u32 v20, s29, v20")
    a("v_lshlrev_b32 v20, 9, v20")
    a("v_lshl_add_u32 v20, v21, 4, v20")
    a("s_lshl_b32 s30, s28, 7")
    a("v_add_u32 v20, s30, v20")
    a(f"v_lshrrev_b32 v23, 2, v{vE5}")
    a("v_and_b32 v23, 3, v23")
    a("v_lshlrev_b32 v23, 4, v23")
    a(f"v_lshl_add_u32 v23, v{vE5}, 6, v23")
    a(f"v_lshl_add_u32 v23, v{vH}, 3, v23")
    a("v_add_u32 v23, s31, v23")
    a("v_lshrrev_b32 v24, 4, v1\nv_and_b32 v24, 3, v24")
    a("v_and_b32 v25, 3, v1")
    a("v_xor_b32 v24, v24, v25")
    a("v_lshlrev_b32 v24, 4, v24")
    a("v_lshrrev_b32 v26, 2, v1")
    a("v_lshl_add_u32 v24, v26, 6, v24")
    a("v_add_u32 v24, s31, v24")
    a("v_add_u32 v26, s29, v26")
    a("v_lshlrev_b32 v26, 8, v26")
    a("v_lshl_add_u32 v26, v25, 4, v26")
    a("s_lshl_b32 s30, s28, 6")
    a("v_add_u32 v26, s30, v26")
    stamp()
    a("s_waitcnt vmcnt(6)")
    stamp()
    a("s_barrier")
    stamp()
    def xreads(ps):
        for s_ in range(8):
            ad = vX0 if s_ % 2 == 0 else vX1
            a(f"ds_read_b128 v[{fX+4*s_}:{fX+4*s_+3}], v{ad} offset:{ps*2*XSLOT + (s_>>1)*64}")
    for s in range(8):
        for part in range(2):
            a(f"ds_read_b64_tr_b16 v[{f0+4*s+2*part}:{f0+4*s+2*part+1}], v{vWt} offset:{G_W0 + (16*s+4*part)*256}")
        if s == 5: a("s_waitcnt lgkmcnt(4)")
    a("s_waitcnt lgkmcnt(4)")
    xreads(0)
    a(f"s_mov_b32 s30, {NEG_LOG2E:#x}")
    for ps in range(2):
        if ps == 0:
            for s_ in range(8):
                if s_ % 2 == 0: a(f"s_waitcnt lgkmcnt({6 - s_})")
                a(mf(d0, f0 + 4*s_, fX + 4*s_, None if s_ == 0 else d0))
            a("s_waitcnt vmcnt(0)")
            a("s_barrier")
            for s_ in range(8):
                if s_ == 6: a("s_waitcnt lgkmcnt(8)")
                for part in range(2):
                    a(f"ds_read_b64_tr_b16 v[{f1+4*s_+2*part}:{f1+4*s_+2*part+1}], v{vWt} offset:{G_W1 + (16*s_+4*part)*256}")
            a("s_waitcnt lgkmcnt(0)")
        else:
            a("s_waitcnt lgkmcnt(0)")
            for s_ in range(8): a(mf(d0, f0 + 4*s_, fX + 4*s_, None if s_ == 0 else d0))
        for s_ in range(8):
            a(mf(d1, f1 + 4*s_, fX + 4*s_, None if s_ == 0 else d1))
        a("s_nop 3")
        for r in range(16): a(f"v_mul_f32 v{d0+r}, s30, v{d0+r}")
        for r in range(8): a(f"v_cvt_pk_bf16_f32 v{d0+r}, v{d0+2*r}, v{d0+2*r+1}")
        for r in range(8): a(f"v_cvt_pk_bf16_f32 v{d0+8+r}, v{d1+2*r}, v{d1+2*r+1}")
        a("s_cmp_eq_u32 s36, 0")
        a(f"s_cbranch_scc0 P_g_au{ps}")
        a(f"ds_write_b128 v16, v[{d0}:{d0+3}]")
        a("v_xor_b32 v17, 16, v16")
        a(f"ds_write_b128 v17, v[{d0+4}:{d0+7}]")
        a("v_xor_b32 v18, 64, v16")
        a(f"ds_write_b128 v18, v[{d0+8}:{d0+11}]")
        a("v_xor_b32 v19, 64, v17")
        a(f"ds_write_b128 v19, v[{d0+12}:{d0+15}]")
        for i in range(4):
            a(f"ds_read_b128 v[{d1+4*i}:{d1+4*i+3}], v22 offset:{i*1024}")
        if ps == 0:
            a("s_waitcnt lgkmcnt(4)")
            xreads(1)
        a(f"s_mov_b32 s33, {ps*64*512}")
        for i in range(4):
            a(f"s_waitcnt lgkmcnt({3-i + (8 if ps == 0 else 0)})")
            a(f"buffer_store_dwordx4 v[{d1+4*i}:{d1+4*i+3}], v20, s[24:27], s33 offen {SF}")
            if i < 3: a("s_add_u32 s33, s33, 4096")
        a(f"s_branch P_g_done{ps}")
        a(f"P_g_au{ps}:")
        for j in range(4):
            if j: a(f"v_xor_b32 v17, {16*j}, v23")
            ad = 23 if j == 0 else 17
            a(f"ds_write_b64 v{ad}, v[{d0+2*j}:{d0+2*j+1}]")
            a(f"ds_write_b64 v{ad}, v[{d0+8+2*j}:{d0+8+2*j+1}] offset:2048")
        for i in range(4):
            a(f"ds_read_b128 v[{d1+4*i}:{d1+4*i+3}], v24 offset:{i*1024}")
        if ps == 0:
            a("s_waitcnt lgkmcnt(4)")
            xreads(1)
        a(f"s_mov_b32 s33, {ps*64*256}")
        for i in range(4):
            a(f"s_waitcnt lgkmcnt({3-i + (8 if ps == 0 else 0)})")
            sr = 24 if i < 2 else sXU
            a(f"buffer_store_dwordx4 v[{d1+4*i}:{d1+4*i+3}], v26, s[{sr}:{sr+3}], s33 offen offset:0 {SF}")
            if i == 0: a("s_add_u32 s33, s33, 4096")
            if i == 1: a("s_sub_u32 s33, s33, 4096")
            if i == 2: a("s_add_u32 s33, s33, 4096")
        a(f"P_g_done{ps}:")
    stamp()
    if dbg: a("s_waitcnt vmcnt(0)")
    dump(2)
    tl_end()
    a("s_endpgm")
    if flag("cpf"):
        a("P_pf:")
        a("s_cmp_lg_u32 s22, 8")
        a("s_cbranch_scc1 P_end")
        a("s_getpc_b64 s[12:13]")
        a("P_pc:")
        a(f"s_add_u32 s12, s12, {KNAME}-P_pc")
        a("s_addc_u32 s13, s13, 0")
        a("v_lshlrev_b32 v2, 6, v1")
        a("v_mov_b32 v3, 0")
        a("v_mov_b32 v5, s13")
        a("v_add_co_u32 v4, vcc, s12, v2")
        a("v_addc_co_u32 v5, vcc, v5, v3, vcc")
        for i in range(3):
            if i == 2:
                a(f"s_mov_b32 s14, (M_last-{KNAME}-8192+64)>>6")
                a("v_cmp_gt_u32 vcc, s14, v1")
                a("s_mov_b64 exec, vcc")
                a("s_cbranch_execz P_pf_done")
            a(f"global_load_dword v{8+i}, v[4:5], off")
            if i < 2:
                a("v_add_co_u32 v4, vcc, 0x1000, v4")
                a("v_addc_co_u32 v5, vcc, v5, v3, vcc")
        a("P_pf_done:")
        a("s_waitcnt vmcnt(0)")
        a("s_endpgm")
    if flag("epf"):
        a("P_pf:")
        a("s_load_dwordx2 s[12:13], s[0:1], 8")
        a(f"s_sub_u32 s3, s2, {NCH}")
        a("s_lshl_b32 s3, s3, 1")
        a("s_add_u32 s3, s3, s22")
        a("s_sub_u32 s3, s3, 8")
        a("s_lshl_b32 s3, s3, 15")
        a("v_lshlrev_b32 v2, 4, v1")
        a("s_waitcnt lgkmcnt(0)")
        a("s_and_b32 s13, s13, 0xffff")
        a(f"s_mov_b32 s14, {E*32}")
        a("s_mov_b32 s15, 0x20000")
        for i in range(32):
            a(f"buffer_load_dwordx4 v[{8+4*(i%8)}:{11+4*(i%8)}], v2, s[12:15], s3 offen offset:{(i%4)*1024} {opt('epfflag', '')}")
            if i % 4 == 3: a("s_add_u32 s3, s3, 4096")
        a("s_endpgm")
    def e_stream(n, base_sgpr, late_barrier=False):
        a("v_and_b32 v2, 63, v0\nv_lshlrev_b32 v2, 4, v2")
        for i in range(n):
            a(f"buffer_load_dwordx4 v[{8+4*(i%8)}:{11+4*(i%8)}], v2, s[12:15], s{base_sgpr} offen offset:{(i%4)*1024}")
            if i % 4 == 3 and i + 1 < n: a(f"s_add_u32 s{base_sgpr}, s{base_sgpr}, 4096")
        if late_barrier: a("s_barrier")
        a("s_endpgm")
    def e_srd():
        a("s_load_dwordx2 s[12:13], s[0:1], 8\ns_waitcnt lgkmcnt(0)")
        a(f"s_and_b32 s13, s13, 0xffff\ns_mov_b32 s14, {E*32}\ns_mov_b32 s15, 0x20000")
    if PF_I:
        a("P_pfi:")
        a("v_lshrrev_b32 v2, 6, v0\ns_nop 0\nv_readfirstlane_b32 s22, v2")
        e_srd()
        a(f"s_sub_u32 s3, s2, {P_PF0}\ns_mul_i32 s3, s3, 10\ns_add_u32 s3, s3, s22\ns_mul_i32 s3, s3, {PF_I*1024}")
        e_stream(PF_I, 3)
    if PF_G:
        a("P_pfg:")
        e_srd()
        a(f"s_sub_u32 s3, s2, {NCH}\ns_lshl_b32 s3, s3, 1\ns_add_u32 s3, s3, s22\ns_sub_u32 s3, s3, 8")
        a(f"s_mul_i32 s3, s3, {PF_G*1024}\ns_add_u32 s3, s3, {P_NPF*10*PF_I*1024}")
        a("s_barrier")
        if opt("pfb", "2") == "2": a("s_barrier")
        e_stream(PF_G, 3, opt("pfb", "2") != "2")
    a("P_weights:")
    a("s_load_dwordx2 s[8:9], s[0:1], 48")
    a("s_load_dwordx2 s[10:11], s[0:1], 72")
    a("v_lshrrev_b32 v2, 6, v0")
    a("v_and_b32 v1, 63, v0")
    a("v_readfirstlane_b32 s3, v2")
    a("s_nop 0")
    a("s_cmp_ge_u32 s3, 4")
    a("s_cbranch_scc1 P_end")
    a("s_waitcnt lgkmcnt(0)")
    srd(a, 12, 8, 9, 272 * 256)
    a("s_lshl_b32 s28, s3, 6")
    a(f"s_add_u32 s28, s28, {256*256}")
    a("v_lshrrev_b32 v2, 5, v1")
    a("v_lshlrev_b32 v2, 11, v2")
    a("v_and_b32 v3, 31, v1")
    a("v_lshl_add_u32 v2, v3, 1, v2")
    for j in range(8):
        a(f"buffer_load_ushort v{8+j}, v2, s[12:15], s28 offen offset:{j*256}")
    srd(a, 16, 10, 11, WS_SZ)
    a("s_lshl_b32 s3, s3, 10")
    a(f"s_add_u32 s3, s3, {WS_W}")
    a("v_lshlrev_b32 v1, 4, v1")
    a(f"s_mov_b32 s29, {NEG_LOG2E:#x}")
    a("s_waitcnt vmcnt(0)")
    for j in range(8): a(f"v_lshlrev_b32 v{8+j}, 16, v{8+j}")
    for j in range(8): a(f"v_mul_f32 v{8+j}, s29, v{8+j}")
    for j in range(4): a(f"v_cvt_pk_bf16_f32 v{16+j}, v{8+2*j}, v{9+2*j}")
    a("buffer_store_dwordx4 v[16:19], v1, s[16:19], s3 offen")
    a("P_end:")
    a("s_endpgm")
    return a.text() + descriptor("prep_kernel", 160, 96 if flag("tl") else 80 if dbg else 48)

CAP = 640
NPAD = 128
L_GR = 0
L_XA = L_GR + 4 * 2 * 4096
L_ER = L_XA + 4096
L_OR = L_ER + 3 * 1024
L_LS = L_OR + 3 * 1024
LSZ = (CAP + NPAD) * 4
L_LE = L_LS + LSZ
L_LQ = L_LE + LSZ
M_LDS = (L_LQ + CAP + NPAD + 63) // 64 * 64
AGG_STRIDE = 528

vLANE, vE5, vH = 1, 2, 3
vG = 4
vEA, vO0, vT0, vT1 = 8, 9, 10, 11
vLs, vLe, vLq = 12, 13, 14
pG = 16
pE = 24
vQ, vOHa, vOHd = 26, 27, 28
vK = 29
vT = 32
vC, vXA, vI, vACC, vZ, vHV = 56, 60, 64, 72, 88, 104
vFX, vFH, vAE, vAO, vSO, vMSG, vXU = 120, 128, 136, 140, 144, 152, 160
NVGPR = 164
U_REC = 8

def main_kernel(dbg=False):
    a = A()
    nst = [0]
    def stamp():
        if not dbg: return
        a("s_waitcnt lgkmcnt(0)")
        a("s_memtime s[58:59]")
        a("s_waitcnt lgkmcnt(0)")
        a(f"s_mov_b32 s{64+nst[0]}, s58")
        nst[0] += 1
    PRIO = opt("prio", "pair")
    header(a, KNAME)
    a(f"s_cmp_ge_u32 s2, {NB}")
    a("s_cbranch_scc1 M_end")
    a("s_load_dwordx2 s[6:7], s[0:1], 8")
    a("s_load_dwordx2 s[8:9], s[0:1], 56")
    a("s_load_dwordx2 s[10:11], s[0:1], 72")
    if flag("tl"): a("s_memrealtime s[68:69]\ns_load_dwordx2 s[72:73], s[0:1], 64")
    if PRIO != "none":
        if opt("pprio", "") == "gen":
            a("s_setprio 3\ns_cmp_ge_u32 s2, 512\ns_cbranch_scc1 M_pp\ns_setprio 2\ns_cmp_ge_u32 s2, 256\ns_cbranch_scc1 M_pp\ns_setprio 1\nM_pp:")
        elif opt("pprio", "") == "low":
            a("s_setprio 0")
        else:
            a("s_setprio 3")
    if dbg: a("s_memrealtime s[60:61]")
    stamp()
    t0, t1, t2, t3 = vT, vT + 1, vT + 2, vT + 3
    vTv = vT + 4
    a(f"v_lshrrev_b32 v{t0}, 6, v0")
    a(f"v_and_b32 v{vLANE}, 63, v0")
    a(f"v_readfirstlane_b32 s32, v{t0}")
    a(f"v_mul_u32_u24 v{t1}, {NB*8}, v{vLANE}")
    a("s_lshl_b32 s38, s2, 3")
    a("s_and_b32 s33, s2, 255")
    a("s_lshr_b32 s39, s2, 8")
    a("s_mul_i32 s33, s33, 625")
    a("s_add_u32 s34, s33, 640")
    a("s_add_u32 s33, s33, 15")
    a("s_lshr_b32 s33, s33, 4")
    a("s_lshr_b32 s34, s34, 4")
    a("s_sub_u32 s34, s34, s33")
    a(f"s_sub_u32 s34, s34, {S0 + S1}")
    a("s_cmp_eq_u32 s39, 1")
    a(f"s_cselect_b32 s34, {S1}, s34")
    a(f"s_cselect_b32 s42, {S0}, {S0 + S1}")
    a("s_cmp_eq_u32 s39, 0")
    a(f"s_cselect_b32 s34, {S0}, s34")
    a("s_cselect_b32 s42, 0, s42")
    a("s_add_u32 s33, s33, s42")
    a(f"v_and_b32 v{vE5}, 31, v{vLANE}")
    a(f"v_lshrrev_b32 v{vH}, 5, v{vLANE}")
    a("s_waitcnt lgkmcnt(0)")
    srd(a, 20, 10, 11, WS_SZ)
    a("s_cmp_lg_u32 s32, 0")
    a("s_cbranch_scc1 M_noT")
    a(f"buffer_load_dwordx2 v[{vTv}:{vTv+1}], v{t1}, s[20:23], s38 offen")
    a("M_noT:")
    srd(a, 24, 10, 11, N, stride=512, add=WS_TAB)
    NPF = 0
    NE0 = int(opt("e0pf", "0"))
    if NE0:
        a("s_cmp_ge_u32 s2, 256")
        a("s_cbranch_scc1 M_noe0")
        a("s_cmp_eq_u32 s32, 0")
        a("s_cbranch_scc1 M_noe0")
        a("s_mov_b32 s56, s6\ns_and_b32 s57, s7, 0xffff")
        a(f"s_mov_b32 s58, {E*32}\ns_mov_b32 s59, 0x20000")
        a("s_mul_i32 s38, s2, 3\ns_add_u32 s38, s38, s32\ns_sub_u32 s38, s38, 1")
        a(f"s_mul_i32 s38, s38, {NE0*1024}")
        a(f"v_lshlrev_b32 v{t0}, 4, v{vLANE}")
        for i in range(NE0):
            a(f"buffer_load_dwordx4 v[{vFX+4*(i%8)}:{vFX+4*(i%8)+3}], v{t0}, s[56:59], s38 offen offset:{(i%4)*1024}")
            if i % 4 == 3 and i + 1 < NE0: a("s_add_u32 s38, s38, 4096")
        a("M_noe0:")
    srd(a, 16, 6, 7, E, stride=32)
    srd(a, 28, 8, 9, N * 256)
    srd(a, 12, 10, 11, N, stride=256, add=WS_XA)
    srd(a, 44, 10, 11, N * 256, add=WS_XU)
    a(f"v_lshrrev_b32 v{t0}, 4, v{vLANE}")
    a(f"v_and_b32 v{t1}, 7, v{vLANE}")
    a(f"v_xor_b32 v{t1}, v{t1}, v{t0}")
    a("s_lshl_b32 s38, s32, 7")
    a(f"v_lshl_add_u32 v{pG+1}, v{t1}, 4, s38")
    a(f"v_xor_b32 v{pG+3}, 64, v{pG+1}")
    a(f"v_mov_b32 v{pG+5}, v{pG+1}")
    a(f"v_mov_b32 v{pG+7}, v{pG+3}")
    a(f"v_lshrrev_b32 v{t0}, 1, v{vE5}")
    a(f"v_and_b32 v{t0}, 7, v{t0}")
    a(f"v_xor_b32 v{t0}, v{t0}, v{vH}")
    a(f"v_lshlrev_b32 v{t0}, 4, v{t0}")
    a(f"v_lshl_add_u32 v{t0}, v{vE5}, 7, v{t0}")
    a("s_lshl_b32 s40, s32, 13")
    a(f"v_add_u32 v{vG}, s40, v{t0}")
    for k in range(1, 4):
        a(f"v_xor_b32 v{vG+k}, {32*k}, v{vG}")
    a("s_lshl_b32 s41, s32, 8")
    a(f"s_add_u32 s41, s41, {L_ER}")
    a(f"v_lshlrev_b32 v{t1}, 5, v{vE5}")
    a(f"v_bfe_u32 v{t0}, v{vE5}, 3, 1")
    a(f"v_xor_b32 v{t0}, v{t0}, v{vH}")
    a(f"v_lshl_add_u32 v{t0}, v{t0}, 4, v{t1}")
    a(f"v_add_u32 v{vEA}, {L_ER}, v{t0}")
    a(f"v_lshl_add_u32 v{t0}, v{vH}, 4, v{t1}")
    a(f"v_add_u32 v{vO0}, {L_OR}, v{t0}")
    a(f"v_bfe_u32 v{t1}, v{vLANE}, 2, 2")
    a(f"v_lshl_add_u32 v{t1}, v{vH}, 2, v{t1}")
    a(f"v_and_b32 v{t0}, 3, v{vLANE}")
    a(f"v_lshlrev_b32 v{t0}, 3, v{t0}")
    a(f"v_lshl_add_u32 v{t0}, v{t1}, 5, v{t0}")
    a(f"v_add_u32 v{vT0}, {L_OR}, v{t0}")
    a("s_and_b32 s38, s32, 1")
    a(f"v_and_b32 v{t0}, 1, v{vLANE}")
    a(f"v_xor_b32 v{t0}, s38, v{t0}")
    a(f"v_lshlrev_b32 v{pE+1}, 4, v{t0}")
    a(f"v_and_b32 v{t0}, 7, v{vLANE}")
    a("s_lshl_b32 s38, s32, 3")
    a(f"v_add_u32 v{t0}, s38, v{t0}")
    a(f"v_lshlrev_b32 v{t1}, 5, v{t0}")
    a(f"v_bfe_u32 v{t2}, v{vLANE}, 3, 1")
    for k in range(3):
        s_set, s_clr = (k + 2) % 3, k
        a(f"v_mul_i32_i24 v{t3}, {(s_clr - s_set) * 1024}, v{t2}")
        a(f"v_add_u32 v{t3}, {s_set*1024 + L_OR}, v{t3}")
        a(f"v_add_u32 v{vK+k}, v{t3}, v{t1}")
    a(f"v_sub_u32 v{t3}, 1, v{t2}")
    a(f"v_mul_u32_u24 v{vOHd}, 0x3f80, v{t3}")
    vLq0 = vT + 22
    a(f"v_lshlrev_b32 v{t2}, 6, v{t2}")
    a(f"v_sub_u32 v{t0}, v{t0}, v{t2}")
    a(f"v_add_u32 v{vLq0}, {L_LQ + 64}, v{t0}")
    a(f"v_and_b32 v{t0}, 1, v{vE5}")
    a(f"v_lshlrev_b32 v{t0}, 4, v{t0}")
    a(f"v_mov_b32 v{t1}, 0x3f80")
    a(f"v_lshlrev_b32 v{t0}, v{t0}, v{t1}")
    a(f"v_bfe_u32 v{t1}, v{vE5}, 1, 1")
    a(f"v_lshrrev_b32 v{t2}, 2, v{vE5}")
    a(f"v_and_b32 v{t3}, 2, v{t2}")
    a(f"v_or_b32 v{t1}, v{t1}, v{t3}")
    a(f"v_and_b32 v{t2}, 1, v{t2}")
    a(f"v_lshl_add_u32 v{t1}, v{t2}, 2, v{t1}")
    a(f"v_lshrrev_b32 v{t2}, 4, v{vE5}")
    a(f"v_xor_b32 v{t2}, v{t2}, v{vH}")
    a(f"v_lshl_add_u32 v{t1}, v{t2}, 3, v{t1}")
    for g in range(2):
        pairs = ["vcc", "s[48:49]", "s[50:51]", "s[54:55]"]
        for k in range(4): a(f"v_cmp_eq_u32 {pairs[k]}, {4*g+k}, v{t1}")
        for k in range(4): a(f"v_cndmask_b32 v{vI+4*g+k}, 0, v{t0}, {pairs[k]}")
    for r in range(8):
        a(f"v_mov_b32 v{vACC+r}, 0")
    vRecI, vPos0, vCnt, vEb = vT + 4, vT + 5, vT + 6, vT + 7
    vc = vHV
    vp = vHV + 4
    tb = vZ
    L_TB = L_GR
    a("s_cmp_lg_u32 s32, 0")
    a("s_cbranch_scc1 M_scan_done")
    a(f"v_mul_u32_u24 v{t3}, {CH}, v{vLANE}")
    a(f"s_waitcnt vmcnt({NPF})")
    stamp()
    a(f"v_lshrrev_b32 v{t1}, 16, v{vTv}")
    a(f"v_and_b32 v{vc}, 0xff, v{vTv+1}")
    a(f"v_bfe_u32 v{vc+1}, v{vTv+1}, 8, 8")
    a(f"v_bfe_u32 v{vc+2}, v{vTv+1}, 16, 8")
    a(f"v_add3_u32 v{t0}, v{vc}, v{vc+1}, v{vc+2}")
    a(f"v_sub_u32 v{vc+3}, v{t1}, v{t0}")
    for k in range(4): a(f"v_mov_b32 v{vp+k}, v{vc+k}")
    a(f"v_and_b32 v{t2}, 0xffff, v{vTv}")
    for sh in (1, 2, 4, 8):
        for k in range(4):
            a(f"v_add_u32_dpp v{vp+k}, v{vp+k}, v{vp+k} row_shr:{sh} row_mask:0xf bank_mask:0xf bound_ctrl:1")
    for k in range(4): a(f"v_add_u32_dpp v{vp+k}, v{vp+k}, v{vp+k} row_bcast:15 row_mask:0xa bank_mask:0xf")
    for k in range(4): a(f"v_add_u32_dpp v{vp+k}, v{vp+k}, v{vp+k} row_bcast:31 row_mask:0xc bank_mask:0xf")
    a(f"v_add_u32 v{tb}, v{t3}, v{t2}")
    for k in range(4): a(f"v_readlane_b32 s{48+k}, v{vp+k}, 63")
    for k in range(1, 4): a(f"v_add_u32 v{tb+4*k}, v{tb+4*k-4}, v{vc+k-1}")
    a("s_add_u32 s49, s49, s48")
    a("s_add_u32 s50, s50, s49")
    a("s_add_u32 s35, s51, s50")
    for k in range(4): a(f"v_sub_u32 v{tb+4*k+1}, v{vp+k}, v{vc+k}")
    for k in range(1, 4): a(f"v_add_u32 v{tb+4*k+1}, s{47+k}, v{tb+4*k+1}")
    for k in range(4): a(f"v_mov_b32 v{tb+4*k+2}, v{vc+k}")
    for k in range(4): a(f"v_mov_b32 v{tb+4*k+3}, v{t3}")
    wa = vHV + 8
    a(f"v_and_b32 v{wa+1}, 3, v{tb}")
    a(f"v_and_b32 v{wa}, 0xfffffffc, v{tb}")
    a(f"v_lshlrev_b32 v{wa}, 2, v{wa}")
    a(f"v_lshrrev_b32 v{t1}, 16, v{vTv}")
    a(f"v_add_u32 v{wa+1}, v{wa+1}, v{t1}")
    a(f"v_cmp_lt_u32 vcc, 32, v{wa+1}")
    a(f"s_cmp_le_u32 s35, {CAP}")
    a("s_cselect_b32 s54, 1, 0")
    a("s_cmp_eq_u64 vcc, 0")
    a("s_cselect_b32 s54, s54, 0")
    a(f"v_lshlrev_b32 v{t0}, 6, v{vLANE}")
    a(f"v_lshlrev_b32 v{t3}, 3, v{vLANE}")
    a(f"v_mov_b32 v{wa+2}, s35")
    a(f"v_mov_b32 v{wa+3}, s54")
    a(f"v_mov_b32 v{t2}, {L_TB + 4096}")
    for k in range(4): a(f"ds_write_b128 v{t0}, v[{tb+4*k}:{tb+4*k+3}] offset:{L_TB+16*k}")
    a(f"ds_write_b64 v{t3}, v[{wa}:{wa+1}] offset:{L_TB + 4160}")
    a(f"ds_write_b64 v{t2}, v[{wa+2}:{wa+3}]")
    a("s_waitcnt lgkmcnt(0)")
    a("M_scan_done:")
    if dbg: nst[0] = 2
    a(f"v_lshlrev_b32 v{t0}, 4, v0")
    a(f"v_mov_b32 v{t2}, {L_TB + 4096}")
    a("s_barrier")
    wb = vHV
    a(f"ds_read_b128 v[{vRecI}:{vRecI+3}], v{t0} offset:{L_TB}")
    a(f"ds_read_b64 v[{wb+4}:{wb+5}], v{t2}")
    a(f"v_lshrrev_b32 v{t1}, 3, v{vLANE}")
    a("s_lshl_b32 s38, s32, 7")
    a(f"v_lshl_add_u32 v{t1}, v{t1}, 3, s38")
    a(f"ds_read_b64 v[{wb}:{wb+1}], v{t1} offset:{L_TB + 4160}")
    a(f"ds_read_b64 v[{wb+2}:{wb+3}], v{t1} offset:{L_TB + 4160 + 64}")
    a(f"v_and_b32 v{t3}, 7, v{vLANE}")
    a(f"v_lshlrev_b32 v{t3}, 2, v{t3}")
    a("s_waitcnt lgkmcnt(0)")
    a(f"v_readfirstlane_b32 s35, v{wb+4}")
    a(f"v_readfirstlane_b32 s54, v{wb+5}")
    stamp()
    def side_loads():
        b0 = vMSG
        a(f"v_lshlrev_b32 v{b0+2}, 4, v{vLANE}")
        a("s_lshl_b32 s42, s32, 10")
        a(f"s_add_u32 m0, s42, {L_XA}")
        a(f"s_add_u32 s42, s42, {WS_W}")
        a(f"buffer_load_dwordx4 v[{vC}:{vC+3}], v{b0+2}, s[20:23], s42 offen")
        a(f"v_lshrrev_b32 v{b0}, 4, v0")
        a(f"v_add_u32 v{b0}, s33, v{b0}")
        a(f"v_and_b32 v{b0+1}, 15, v0")
        a(f"v_lshlrev_b32 v{b0+1}, 4, v{b0+1}")
        a(f"buffer_load_dwordx4 v[{b0}:{b0+1}], s[12:15], 0 idxen offen lds")
    def xu_load():
        a(f"v_lshrrev_b32 v{vOHa}, 4, v0")
        a(f"v_add_u32 v{vOHa}, s33, v{vOHa}")
        a(f"v_lshlrev_b32 v{vOHa}, 8, v{vOHa}")
        a(f"v_and_b32 v{vXU}, 15, v0")
        a(f"v_lshl_add_u32 v{vOHa}, v{vXU}, 4, v{vOHa}")
        a(f"buffer_load_dwordx4 v[{vXU}:{vXU+3}], v{vOHa}, s[44:47], 0 offen")
    a("s_mov_b32 s36, 0")
    a("s_mov_b32 s43, 1")
    a("s_mov_b32 s53, 1")
    a("s_cmp_eq_u32 s35, 0")
    a("s_cbranch_scc1 M_empty")

    vXAa = vT + 23
    def pads_and_readers(tag):
        a("s_cmp_ge_u32 s32, 2")
        a(f"s_cbranch_scc1 M_pad_done{tag}")
        a(f"v_add_u32 v{t0}, s37, v0")
        a(f"v_mov_b32 v{t2}, 0xffffff")
        a(f"v_lshlrev_b32 v{t1}, 2, v{t0}")
        a(f"ds_write_b32 v{t1}, v{t2} offset:{L_LS}")
        a(f"ds_write_b32 v{t1}, v{t2} offset:{L_LE}")
        a(f"v_mov_b32 v{t2}, 15")
        a(f"ds_write_b8 v{t0}, v{t2} offset:{L_LQ}")
        a(f"M_pad_done{tag}:")
        a(f"v_lshrrev_b32 v{t0}, 3, v{vLANE}")
        a("s_lshl_b32 s38, s32, 5")
        a(f"v_lshlrev_b32 v{t0}, 2, v{t0}")
        a(f"s_add_u32 s38, s38, {L_LE}")
        a(f"v_bfe_u32 v{t1}, v{vLANE}, 1, 3")
        a(f"v_add_u32 v{vLs}, {L_LS}, v{t0}")
        a(f"v_lshl_add_u32 v{vLe}, v{t1}, 2, s38")
        a(f"v_mov_b32 v{vLq}, v{vLq0}")
    a(f"v_bfe_u32 v{t0}, v{vLANE}, 2, 2")
    a(f"v_bfe_u32 v{t1}, v{vLANE}, 4, 1")
    a(f"v_lshl_add_u32 v{t0}, v{vH}, 3, v{t0}")
    a(f"v_and_b32 v{t2}, 3, v{vLANE}")
    a(f"v_lshlrev_b32 v{t0}, 8, v{t0}")
    a("s_lshl_b32 s38, s32, 6")
    a(f"v_lshl_add_u32 v{t0}, v{t1}, 5, v{t0}")
    a(f"v_lshl_add_u32 v{t0}, v{t2}, 3, v{t0}")
    a(f"v_add_u32 v{vXAa}, s38, v{t0}")
    a("s_cmp_eq_u32 s54, 0")
    a("s_cbranch_scc1 M_batch")
    L_RW = L_GR + 8192
    a(f"s_mov_b32 s52, {WS_REC}")
    a("s_lshl_b32 s38, s32, 11")
    for i in range(2):
        a(f"v_cmp_lt_u32 vcc, v{t3}, v{wb+2*i+1}")
        a(f"v_lshl_add_u32 v{wb+2*i}, v{t3}, 2, v{wb+2*i}")
        a(f"s_add_u32 m0, s38, {L_RW + 1024*i}")
        a("s_mov_b64 exec, vcc")
        a(f"buffer_load_dwordx4 v{wb+2*i}, s[20:23], s52 offen lds")
        a("s_mov_b64 exec, -1")
    side_loads()
    NE2 = int(opt("e2pf", "0"))
    if NE2:
        a("s_mov_b32 s56, s6\ns_and_b32 s57, s7, 0xffff")
        a(f"s_mov_b32 s58, {E*32}\ns_mov_b32 s59, 0x20000")
        a(f"s_mul_i32 s38, s2, {NE2*4096}")
        a(f"s_mul_i32 s39, s32, {NE2*1024}")
        a("s_add_u32 s38, s38, s39")
        a(f"v_lshlrev_b32 v{vMSG+6}, 4, v{vLANE}")
        for i in range(NE2):
            if i == 4: a("s_add_u32 s38, s38, 4096")
            a(f"buffer_load_dwordx4 v[{vZ+4*i}:{vZ+4*i+3}], v{vMSG+6}, s[56:59], s38 offen offset:{(i%4)*1024} {opt('e2flag', '')}")
    NP2 = int(opt("tpf", "0"))
    if NP2:
        a("s_lshr_b32 s38, s2, 3")
        a(f"s_mul_i32 s38, s38, {8*NP2}")
        a(f"s_mul_i32 s39, s32, {2*NP2}")
        a("s_add_u32 s38, s38, s39")
        a(f"v_add_u32 v{vMSG+4}, s38, v{vH}")
        a(f"v_lshlrev_b32 v{vMSG+5}, 4, v{vE5}")
        a("s_lshr_b32 s39, s32, 1")
        a("s_lshl_b32 s39, s39, 13")
        a("s_and_b32 s38, s32, 1")
        a(f"s_mul_i32 s38, s38, {1024*NP2}")
        a("s_add_u32 s39, s39, s38")
        for i in range(NP2):
            a(f"s_add_u32 m0, s39, {L_GR + 20480 + 1024*i}")
            if i: a(f"v_add_u32 v{vMSG+4}, 2, v{vMSG+4}")
            else: a("s_nop 0")
            a(f"buffer_load_dwordx4 v[{vMSG+4}:{vMSG+5}], s[24:27], 0 idxen offen lds")
    a("s_mov_b32 s43, 0")
    z = vT + 10
    for k in range(4): a(f"v_mov_b32 v{z+k}, 0")
    a(f"v_lshlrev_b32 v{t0}, 4, v0")
    a(f"v_cmp_gt_u32 vcc, 192, v0")
    a("s_mov_b64 exec, vcc")
    a(f"ds_write_b128 v{t0}, v[{z}:{z+3}] offset:{L_OR}")
    a("s_mov_b64 exec, -1")
    a("s_mov_b32 s37, s35")
    vP4, vP1, vA = vT + 12, vT + 13, vT + 3
    vR = vT + 14
    a(f"v_lshrrev_b32 v{t0}, 2, v0")
    a(f"v_lshlrev_b32 v{t0}, 7, v{t0}")
    a(f"v_mov_b32_dpp v{t2}, v{vRecI} quad_perm:[0,0,0,0] row_mask:0xf bank_mask:0xf")
    a(f"v_and_b32 v{t2}, 0xfffffffc, v{t2}")
    a(f"v_sub_u32 v{t2}, v{vRecI}, v{t2}")
    a(f"v_lshl_add_u32 v{vA}, v{t2}, 2, v{t0}")
    a(f"v_mov_b32 v{vP1}, v{vPos0}")
    a(f"v_lshlrev_b32 v{vP4}, 2, v{vPos0}")
    pads_and_readers("f")
    a(f"s_waitcnt vmcnt({2 + NP2 + NE2})")
    if dbg:
        a("s_memtime s[58:59]\ns_waitcnt lgkmcnt(0)\ns_mov_b32 s67, s58")
    a("M_fast_round:")
    for u in range(8): a(f"ds_read_b32 v{vR+u}, v{vA} offset:{L_RW + 4*u}")
    for u in range(8):
        a(f"v_cmp_lt_i32 vcc, {u}, v{vCnt}")
        a("s_mov_b64 exec, vcc")
        a("s_cbranch_execz M_fast_done")
        if u == 0: a("s_waitcnt lgkmcnt(0)")
        a(f"v_and_b32 v{t0}, 0x3fff, v{vR+u}")
        a(f"v_bfe_u32 v{t1}, v{vR+u}, 14, 5")
        a(f"v_lshrrev_b32 v{t2}, 19, v{vR+u}")
        a(f"v_add_u32 v{t2}, v{t2}, v{vEb}")
        if flag("exp_e"): a(f"v_and_b32 v{t2}, 0x3fff, v{t2}")
        if flag("exp_t"): a(f"v_and_b32 v{t0}, 0x7ff, v{t0}")
        a(f"ds_write_b32 v{vP4}, v{t0} offset:{L_LS + 4*u}")
        a(f"ds_write_b8 v{vP1}, v{t1} offset:{L_LQ + u}")
        a(f"ds_write_b32 v{vP4}, v{t2} offset:{L_LE + 4*u}")
    a("s_mov_b64 exec, -1")
    a(f"v_subrev_u32 v{vCnt}, 8, v{vCnt}")
    a(f"v_add_u32 v{vA}, 32, v{vA}")
    a(f"v_add_u32 v{vP4}, 32, v{vP4}")
    a(f"v_add_u32 v{vP1}, 8, v{vP1}")
    a(f"v_cmp_lt_i32 vcc, 0, v{vCnt}")
    a("s_cbranch_vccnz M_fast_round")
    a("M_fast_done:")
    a("s_mov_b64 exec, -1")
    hot = a.l
    a.l = []
    a("M_batch:")
    z = vT + 10
    for k in range(4): a(f"v_mov_b32 v{z+k}, 0")
    a(f"v_lshlrev_b32 v{t0}, 4, v0")
    a(f"v_cmp_gt_u32 vcc, 192, v0")
    a("s_mov_b64 exec, vcc")
    a(f"ds_write_b128 v{t0}, v[{z}:{z+3}] offset:{L_OR}")
    a("s_mov_b64 exec, -1")
    a("s_sub_u32 s37, s35, s36")
    a(f"s_min_u32 s37, s37, {CAP}")
    vJ, vRem, vRa, vP4, vP1 = vT + 10, vT + 11, vT + 3, vT + 12, vT + 13
    a(f"v_sub_u32 v{vJ}, s36, v{vPos0}")
    a(f"v_add_u32 v{vRem}, {CAP}, v{vJ}")
    a(f"v_max_i32 v{vJ}, 0, v{vJ}")
    a(f"v_min_i32 v{vRem}, v{vRem}, v{vCnt}")
    a(f"v_sub_u32 v{vRem}, v{vRem}, v{vJ}")
    a(f"v_add_lshl_u32 v{vRa}, v{vJ}, v{vRecI}, 2")
    a(f"v_add_u32 v{vP1}, v{vPos0}, v{vJ}")
    a(f"v_subrev_u32 v{vP1}, s36, v{vP1}")
    a(f"v_lshlrev_b32 v{vP4}, 2, v{vP1}")
    a(f"s_mov_b32 s52, {WS_REC}")
    vR = vT + 14
    a("M_round:")
    for half in range(2):
        a(f"v_cmp_lt_i32 vcc, {4*half}, v{vRem}")
        a("s_mov_b64 exec, vcc")
        a("s_cbranch_execz M_round_issued")
        a(f"buffer_load_dwordx4 v[{vR+4*half}:{vR+4*half+3}], v{vRa}, s[20:23], s52 offen offset:{16*half}")
    a("M_round_issued:")
    a("s_mov_b64 exec, -1")
    a("s_cmp_eq_u32 s43, 0")
    a("s_cbranch_scc1 M_round_w0")
    side_loads()
    a("s_mov_b32 s43, 0")
    a("s_waitcnt vmcnt(2)")
    a("s_branch M_round_proc")
    a("M_round_w0:")
    a("s_waitcnt vmcnt(0)")
    a("M_round_proc:")
    if dbg:
        a("s_memtime s[58:59]\ns_waitcnt lgkmcnt(0)\ns_mov_b32 s67, s58"); nst[0] = 4
    for u in range(8):
        a(f"v_cmp_lt_i32 vcc, {u}, v{vRem}")
        a("s_mov_b64 exec, vcc")
        a("s_cbranch_execz M_round_done")
        a(f"v_and_b32 v{t0}, 0x3fff, v{vR+u}")
        a(f"v_bfe_u32 v{t1}, v{vR+u}, 14, 5")
        a(f"v_lshrrev_b32 v{t2}, 19, v{vR+u}")
        a(f"v_add_u32 v{t2}, v{t2}, v{vEb}")
        if flag("exp_e"): a(f"v_and_b32 v{t2}, 0x3fff, v{t2}")
        if flag("exp_t"): a(f"v_and_b32 v{t0}, 0x7ff, v{t0}")
        a(f"ds_write_b32 v{vP4}, v{t0} offset:{L_LS + 4*u}")
        a(f"ds_write_b8 v{vP1}, v{t1} offset:{L_LQ + u}")
        a(f"ds_write_b32 v{vP4}, v{t2} offset:{L_LE + 4*u}")
    a("M_round_done:")
    a("s_mov_b64 exec, -1")
    a(f"v_subrev_u32 v{vRem}, 8, v{vRem}")
    a(f"v_add_u32 v{vRa}, 32, v{vRa}")
    a(f"v_add_u32 v{vP4}, 32, v{vP4}")
    a(f"v_add_u32 v{vP1}, 8, v{vP1}")
    a(f"v_cmp_lt_i32 vcc, 0, v{vRem}")
    a("s_cbranch_vccnz M_round")
    pads_and_readers("s")
    a("s_branch M_lists_done")
    cold = a.l
    a.l = hot
    a("M_lists_done:")
    a("s_waitcnt lgkmcnt(0)")
    a("s_barrier")
    stamp()
    def idx_reads(T):
        for q in range(4):
            a(f"ds_read_b32 v{pG+2*q}, v{vLs} offset:{128*T + 32*q}")
        a(f"ds_read_b32 v{pE}, v{vLe} offset:{128*T}")
    def dma_tile(gslot, eslot):
        for q in range(4):
            a(f"s_add_u32 m0, s40, {L_GR + gslot*4096 + q*1024}")
            a("s_nop 0")
            a(f"buffer_load_dwordx4 v[{pG+2*q}:{pG+2*q+1}], s[24:27], 0 idxen offen {opt('gflag', '').replace('_', ' ')} lds")
        a(f"s_add_u32 m0, s41, {eslot*1024}")
        a("s_mov_b64 exec, 0xffff")
        a(f"buffer_load_dwordx4 v[{pE}:{pE+1}], s[16:19], 0 idxen offen {opt('eflag', '').replace('_', ' ')} lds")
        a("s_mov_b64 exec, -1")
    def frag_reads(gs, es):
        a(f"ds_read_b128 v[{vFX}:{vFX+3}], v{vG} offset:{L_GR + gs*4096}")
        a(f"ds_read_b128 v[{vFX+4}:{vFX+7}], v{vG+1} offset:{L_GR + gs*4096}")
        a(f"ds_read_b128 v[{vAE}:{vAE+3}], v{vEA} offset:{es*1024}")
        a(f"ds_read_b128 v[{vAO}:{vAO+3}], v{vO0} offset:{es*1024}")
        a(f"ds_read_b128 v[{vFH}:{vFH+3}], v{vG+2} offset:{L_GR + gs*4096}")
        a(f"ds_read_b128 v[{vFH+4}:{vFH+7}], v{vG+3} offset:{L_GR + gs*4096}")
    idx_reads(0)
    a(f"v_subrev_u32 v{t0}, 64, v{vLq}")
    a(f"ds_read_u8 v{vQ}, v{t0}")
    a(f"ds_read_u8 v{vOHa}, v{t0} offset:32")
    a("s_waitcnt lgkmcnt(2)")
    dma_tile(0, 0)
    idx_reads(1)
    if flag("t1early"):
        a("s_waitcnt lgkmcnt(0)")
        dma_tile(1, 1)
    a("s_waitcnt lgkmcnt(5)")
    a(f"v_lshl_add_u32 v{vQ}, v{vQ}, 1, v{vK+1}")
    a(f"v_lshl_add_u32 v{vOHa}, v{vOHa}, 1, v{vK+2}")
    a("s_mov_b64 exec, 0xff")
    a(f"ds_write_b16 v{vQ}, v{vOHd}")
    a(f"ds_write_b16 v{vOHa}, v{vOHd}")
    a("s_mov_b64 exec, -1")
    T1E = flag("t1early")
    if T1E:
        a("s_waitcnt vmcnt(5) lgkmcnt(0)")
        a("s_barrier")
        frag_reads(0, 0)
        idx_reads(2)
    else:
        a("s_waitcnt vmcnt(0) lgkmcnt(0)")
        a("s_barrier")
        frag_reads(0, 0)
    a("s_cmp_lg_u32 s36, 0")
    a("s_cbranch_scc1 M_noxa")
    a(f"ds_read_b64_tr_b16 v[{vXA}:{vXA+1}], v{vXAa} offset:{L_XA}")
    a(f"ds_read_b64_tr_b16 v[{vXA+2}:{vXA+3}], v{vXAa} offset:{L_XA + 1024}")
    a("M_noxa:")
    if not T1E:
        dma_tile(1, 1)
        idx_reads(2)
    a("s_waitcnt lgkmcnt(0)")
    SPREAD = opt("spread", "1") != "0"
    LATE = {"0": [0, 1, 2, 3, 4], "1": [0, 1], "2": [], "3": [0]}[opt("spread", "1")]
    EARLY = [p for p in range(5) if p not in LATE]
    def dma_part(p, gslot, eslot, filler=None):
        if p < 4:
            a(f"s_add_u32 m0, s40, {L_GR + gslot*4096 + p*1024}")
            a(filler if filler else "s_nop 0")
            a(f"buffer_load_dwordx4 v[{pG+2*p}:{pG+2*p+1}], s[24:27], 0 idxen offen {opt('gflag', '').replace('_', ' ')} lds")
        else:
            a(f"s_add_u32 m0, s41, {eslot*1024}")
            a("s_mov_b64 exec, 0xffff")
            a(f"buffer_load_dwordx4 v[{pE}:{pE+1}], s[16:19], 0 idxen offen {opt('eflag', '').replace('_', ' ')} lds")
            a("s_mov_b64 exec, -1")
            if filler: a(filler)
    for p in LATE: dma_part(p, 0, 2)
    stamp()
    if dbg: a("s_memrealtime s[72:73]\ns_waitcnt lgkmcnt(0)")
    a("s_add_u32 s37, s37, 31")
    a("s_lshr_b32 s37, s37, 5")
    def chain(z, h):
        return [mf(z, vFX, vI, None), mf(z, vFX + 4, vI + 4, z), mf(z, vAE, vC, z), mf(z, vAO, vXA, z),
                mf(h, vFH, vI, None), mf(h, vFH + 4, vI + 4, h)]
    nlab = [0]
    def prio(p):
        if PRIO == "pair": a(f"s_setprio {p}")
        if PRIO == "pairbal":
            nlab[0] += 1
            a(f"s_setprio {p}")
            a(f"s_cbranch_vccz M_pr{nlab[0]}")
            a(f"s_setprio {p + 2}")
            a(f"M_pr{nlab[0]}:")
    if flag("tl"): a("s_memrealtime s[84:85]\ns_waitcnt lgkmcnt(0)")
    a("M_loop:")
    loop_start = len(a.l)
    UNR = int(opt("unr", "6"))
    for k in range(UNR):
        es = k % 3; es1 = (k + 1) % 3; gs1 = (k + 1) % 2
        gs2 = k % 2; es2 = (k + 2) % 3
        z, h = vZ, vHV
        a.c(f"---- position {k}: e/one-hot slot {es} ----")
        if PRIO == "bal" and k % 2 == 0:
            a(f"s_cmp_ge_u32 s37, 9\ns_cbranch_scc1 M_prio_done{k}\ns_setprio 2\ns_cmp_ge_u32 s37, 5\ns_cbranch_scc1 M_prio_done{k}\ns_setprio 1\ns_cmp_ge_u32 s37, 2\ns_cbranch_scc1 M_prio_done{k}\ns_setprio 0\nM_prio_done{k}:")
        if PRIO == "pairbal":
            a(f"s_cmp_gt_u32 s37, {opt('X', '4')}")
            a("s_cselect_b64 vcc, -1, 0")
        early = list(EARLY)
        ch = chain(z, h)
        SKIP = flag("skip")
        nsk = [0]
        def guarded(cond, fn):
            if not SKIP: fn(); return
            nsk[0] += 1
            a(f"s_cmp_lt_u32 s37, {cond}")
            a(f"s_cbranch_scc1 M_sk{k}_{cond}_{nsk[0]}")
            fn()
            a(f"M_sk{k}_{cond}_{nsk[0]}:")
        _dp = dma_part
        def dma_early(p): guarded(3, lambda: _dp(p, gs2, es2))
        if len(early) <= 3:
            if early: dma_early(early.pop(0))
            a("s_waitcnt lgkmcnt(0)")
            for s_ in range(2):
                a(f"ds_read_b64_tr_b16 v[{vSO+4*s_}:{vSO+4*s_+1}], v{vT0} offset:{es*1024 + s_*512}")
                a(f"ds_read_b64_tr_b16 v[{vSO+4*s_+2}:{vSO+4*s_+3}], v{vT0} offset:{es*1024 + s_*512 + 256}")
            for x in ch[0:4]: a(x)
            if early: dma_early(early.pop(0))
            for x in ch[4:6]: a(x)
            while early: dma_early(early.pop(0))
        else:
            a("s_waitcnt lgkmcnt(0)")
            for s_ in range(2):
                a(f"ds_read_b64_tr_b16 v[{vSO+4*s_}:{vSO+4*s_+1}], v{vT0} offset:{es*1024 + s_*512}")
                a(f"ds_read_b64_tr_b16 v[{vSO+4*s_+2}:{vSO+4*s_+3}], v{vT0} offset:{es*1024 + s_*512 + 256}")
            for j, x in enumerate(ch):
                a(x)
                if early and j < 5: dma_part(early.pop(0), gs2, es2)
            while early: dma_part(early.pop(0), gs2, es2)
        if SKIP:
            a("s_cmp_lt_u32 s37, 3")
            a(f"s_cbranch_scc1 M_w0_{k}")
            a("s_waitcnt vmcnt(5) lgkmcnt(0)")
            a(f"s_branch M_w1_{k}")
            a(f"M_w0_{k}:")
            a("s_waitcnt vmcnt(0) lgkmcnt(0)")
            a(f"M_w1_{k}:")
        else:
            a("s_waitcnt vmcnt(5) lgkmcnt(0)")
        a("s_barrier")
        frag_reads(gs1, es1)
        T3 = k + 3
        for q in range(4):
            a(f"ds_read_b32 v{pG+2*q}, v{vLs} offset:{128*T3 + 32*q}")
        a(f"ds_read_b32 v{pE}, v{vLe} offset:{128*T3}")
        a(f"ds_read_u8 v{vQ}, v{vLq} offset:{32*k}")
        if k == 1:
            a("s_cmp_eq_u32 s53, 0")
            a("s_cbranch_scc1 M_xu_done")
            xu_load()
            a("s_mov_b32 s53, 0")
            a("M_xu_done:")
        ex = [f"v_exp_f32 v{z+r}, v{z+r}" for r in range(16)]
        ad = [f"v_add_f32 v{z+r}, 1.0, v{z+r}" for r in range(16)]
        rc = [f"v_rcp_f32 v{z+r}, v{z+r}" for r in range(16)]
        mu = [f"v_mul_f32 v{z+r}, v{z+r}, v{h+r}" for r in range(16)]
        cv = [f"v_cvt_pk_bf16_f32 v{vMSG+r}, v{z+2*r}, v{z+2*r+1}" for r in range(8)]
        for x in ex: a(x)
        prio(0)
        for x in ad: a(x)
        prio(1)
        a("s_waitcnt lgkmcnt(0)")
        late = list(LATE)
        pos = {5: [0, 3, 6, 9, 12], 2: [1, 9], 1: [4], 0: []}[len(late)]
        r0 = 0
        for p, at in zip(late, pos):
            for x in rc[r0:at]: a(x)
            if SKIP:
                a(rc[at])
                guarded(4, lambda: _dp(p, gs1, es))
            else:
                dma_part(p, gs1, es, rc[at])
            r0 = at + 1
        for x in rc[r0:16]: a(x)
        a(f"v_lshl_add_u32 v{vOHa}, v{vQ}, 1, v{vK+es}")
        a("s_mov_b64 exec, 0xffff")
        a(f"ds_write_b16 v{vOHa}, v{vOHd}")
        a("s_mov_b64 exec, -1")
        prio(0)
        for x in mu: a(x)
        prio(1)
        for x in cv: a(x)
        a("s_sub_u32 s37, s37, 1")
        a(mf(vACC, vSO, vMSG, vACC))
        a(mf(vACC, vSO + 4, vMSG + 4, vACC))
        a("s_cmp_eq_u32 s37, 0")
        a("s_cbranch_scc1 M_loop_done")
    a(f"v_add_u32 v{vLs}, {128*UNR}, v{vLs}")
    a(f"v_add_u32 v{vLe}, {128*UNR}, v{vLe}")
    a(f"v_add_u32 v{vLq}, {32*UNR}, v{vLq}")
    a("s_branch M_loop")
    abl = [x[6:] for x in ARGS if x.startswith("--abl_")]
    if abl:
        body = a.l[loop_start:]
        def drop(l):
            t = l.strip()
            if "dma" in abl and t.startswith("buffer_load") and " lds" in t: return True
            if "valu" in abl and t.startswith(("v_exp", "v_add_f32", "v_rcp", "v_mul_f32", "v_cvt_pk")): return True
            if "mfma" in abl and t.startswith("v_mfma"): return True
            if "bar" in abl and t.startswith("s_barrier"): return True
            if "frag" in abl and t.startswith("ds_read_b128"): return True
            if "tr" in abl and t.startswith("ds_read_b64_tr"): return True
            if "idx" in abl and t.startswith(("ds_read_b32", "ds_read_u8")): return True
            if "oh" in abl and t.startswith("ds_write_b16"): return True
            if "dmae" in abl and t.startswith("buffer_load") and "s[16:19]" in t: return True
            if "dmag" in abl and t.startswith("buffer_load") and "s[24:27]" in t: return True
            return False
        body = [l for l in body if not drop(l)]
        if "vmw" in abl: body = [l.replace("vmcnt(5) ", "") for l in body]
        a.l[loop_start:] = body
    a("M_loop_done:")
    if flag("tl"): a("s_memrealtime s[86:87]\ns_waitcnt lgkmcnt(0)")
    stamp()
    if dbg: a("s_memrealtime s[74:75]\ns_waitcnt lgkmcnt(0)")
    a("s_cmp_eq_u32 s53, 0")
    a("s_cbranch_scc1 M_xu_done2")
    xu_load()
    a("s_mov_b32 s53, 0")
    a("M_xu_done2:")
    a("s_waitcnt vmcnt(0) lgkmcnt(0)")
    a("s_barrier")
    a(f"s_add_u32 s36, s36, {CAP}")
    a("s_cmp_lt_u32 s36, s35")
    a("s_cbranch_scc1 M_batch")
    hot = a.l
    a.l = cold
    a("M_empty:")
    xu_load()
    a("s_waitcnt vmcnt(0)")
    a("s_branch M_epilogue")
    cold = a.l
    a.l = hot
    a("M_epilogue:")
    a(f"v_mul_u32_u24 v{t0}, {4*AGG_STRIDE}, v{vH}")
    a(f"v_lshl_add_u32 v{t0}, v{vE5}, 2, v{t0}")
    a("s_lshl_b32 s39, s32, 7")
    a(f"v_add_u32 v{t0}, s39, v{t0}")
    a("s_nop 7")
    for r in range(8):
        a(f"ds_write_b32 v{t0}, v{vACC+r} offset:{L_GR + (8*(r >> 2) + (r & 3))*AGG_STRIDE}")
    a(f"v_lshrrev_b32 v{t0}, 4, v0")
    a(f"v_and_b32 v{t1}, 15, v0")
    a(f"v_mul_u32_u24 v{t2}, {AGG_STRIDE}, v{t0}")
    a(f"v_lshl_add_u32 v{t2}, v{t1}, 5, v{t2}")
    a(f"v_add_u32 v{t3}, s33, v{t0}")
    a(f"v_lshlrev_b32 v{t3}, 8, v{t3}")
    a(f"v_lshl_add_u32 v{t3}, v{t1}, 4, v{t3}")
    a(f"s_mov_b32 s38, {NEG_LOG2E:#x}")
    a("s_waitcnt lgkmcnt(0)")
    a("s_barrier")
    y = vZ; w_ = vHV
    a(f"ds_read_b128 v[{y}:{y+3}], v{t2} offset:{L_GR}")
    a(f"ds_read_b128 v[{y+4}:{y+7}], v{t2} offset:{L_GR + 16}")
    for i in range(4):
        a(f"v_lshlrev_b32 v{w_+2*i}, 16, v{vXU+i}")
        a(f"v_and_b32 v{w_+2*i+1}, 0xffff0000, v{vXU+i}")
    a("s_waitcnt lgkmcnt(0)")
    for r in range(8): a(f"v_add_f32 v{y+r}, v{y+r}, v{w_+r}")
    for r in range(8): a(f"v_mul_f32 v{w_+r}, s38, v{y+r}")
    for r in range(8): a(f"v_exp_f32 v{w_+r}, v{w_+r}")
    for r in range(8): a(f"v_add_f32 v{w_+r}, 1.0, v{w_+r}")
    for r in range(8): a(f"v_rcp_f32 v{w_+r}, v{w_+r}")
    a("s_nop 0")
    for r in range(8): a(f"v_mul_f32 v{y+r}, v{y+r}, v{w_+r}")
    for r in range(4): a(f"v_cvt_pk_bf16_f32 v{vMSG+r}, v{y+2*r}, v{y+2*r+1}")
    if dbg:
        stamp()
        a("s_memrealtime s[62:63]\ns_waitcnt lgkmcnt(0)")
        a("s_mov_b32 s52, s10\ns_and_b32 s53, s11, 0xffff\ns_mov_b32 s54, 0x1000000\ns_mov_b32 s55, 0x20000")
        a(f"s_lshl_b32 s56, s2, 2\ns_add_u32 s56, s56, s32\ns_lshl_b32 s56, s56, 6\ns_add_u32 s56, s56, {DBG2:#x}")
        vals = [64, 65, 66, 67, 68, 69, 70, 71, 60, 62, 35, 72, 74]
        a("s_mov_b64 s[50:51], exec\ns_mov_b64 exec, 1")
        for i, r in enumerate(vals):
            a(f"v_mov_b32 v{vT+20}, s{r}")
            a(f"v_mov_b32 v{vT+21}, 0")
            a(f"buffer_store_dword v{vT+20}, v{vT+21}, s[52:55], s56 offen offset:{4*i}")
        a("s_mov_b64 exec, s[50:51]")
    if flag("tl"):
        a("s_memrealtime s[70:71]\ns_waitcnt lgkmcnt(0)")
        a("s_mov_b32 s76, s10\ns_and_b32 s77, s11, 0xffff\ns_mov_b32 s78, 0x1000000\ns_mov_b32 s79, 0x20000")
        a(f"s_lshl_b32 s75, s2, 2\ns_add_u32 s75, s75, s32\ns_lshl_b32 s75, s75, 4\ns_add_u32 s75, s75, {DBG2:#x}")
        a("s_mov_b64 s[80:81], exec\ns_mov_b64 exec, 1")
        a(f"v_mov_b32 v{vT+18}, s68\nv_mov_b32 v{vT+19}, s70\nv_mov_b32 v{vT+20}, s84\nv_mov_b32 v{vT+21}, s86\nv_mov_b32 v{vT+22}, 0")
        a(f"buffer_store_dwordx4 v[{vT+18}:{vT+21}], v{vT+22}, s[76:79], s75 offen")
        a("s_mov_b64 exec, s[80:81]")
    a(f"v_cmp_gt_u32 vcc, s34, v{t0}")
    a("s_mov_b64 exec, vcc")
    a("s_cbranch_execz M_end")
    a(f"buffer_store_dwordx4 v[{vMSG}:{vMSG+3}], v{t3}, s[28:31], 0 offen {opt('oflag', '').replace('_', ' ')}")
    a("M_end:")
    a("s_endpgm")
    a.l += cold
    a("M_last:")
    return a.text() + descriptor(KNAME, NVGPR, 96 if (dbg or flag("tl")) else 60)

HEAD = f"""; Edge-gated message passing (gated graph convolution) for gfx950, two launches.
;
;   sort  : 64 chunks of 5000 edges; counting sort in LDS by (destination bucket, source range);
;   gemm  : node tables in bf16: TAB = [-log2e * x@B | x@V] (128-byte line per node and 32-channel slice),
;           XA = -log2e * x@A, XU = x@U (weights transposed with ds_read_b64_tr_b16)
;   cfrag : -log2e * C in MFMA operand layout
;   builds its edge list from T and the records, then per tile of 32 edges: TAB rows and e_attr rows are
;   gathered into LDS by DMA, the gate pre-activation and the values come out of the matrix cores in one
;   segment sum as one-hot x message on the matrix cores; epilogue adds XU and applies silu.
; @launch kernel=prep_kernel grid=({P_GRID},1,1) block=({P_BLOCK},1,1) lds={P_LDS}
; @launch kernel={KNAME} grid=({NB},1,1) block=(256,1,1) lds={M_LDS}
.amdgcn_target "amdgcn-amd-amdhsa--gfx950"
.text
"""

def tl_kernel():
    a = A()
    header(a, "tl_kernel")
    a("s_cmp_ge_u32 s2, 1\ns_cbranch_scc1 T_end")
    a("s_load_dwordx4 s[4:7], s[0:1], 64\ns_waitcnt lgkmcnt(0)")
    a("s_mov_b32 s8, s4\ns_and_b32 s9, s5, 0xffff\ns_mov_b32 s10, 256\ns_mov_b32 s11, 0x20000")
    a("s_mov_b32 s12, s6\ns_and_b32 s13, s7, 0xffff\ns_mov_b32 s14, 0x1000000\ns_mov_b32 s15, 0x20000")
    a("v_mov_b32 v10, 0")
    a(f"v_lshlrev_b32 v1, 6, v0\nv_add_u32 v1, {DBG2}, v1")
    a("v_cmp_gt_u32 vcc, 768, v0\ns_mov_b64 exec, vcc")
    a("buffer_load_dwordx4 v[4:7], v1, s[12:15], 0 offen\ns_waitcnt vmcnt(0)")
    a("v_not_b32 v8, v4\nbuffer_atomic_umax v8, v10, s[8:11], 0 offen offset:0")
    a("buffer_atomic_umax v4, v10, s[8:11], 0 offen offset:4")
    a("buffer_atomic_umax v5, v10, s[8:11], 0 offen offset:8")
    a("v_not_b32 v8, v6\nbuffer_atomic_umax v8, v10, s[8:11], 0 offen offset:12")
    a("buffer_atomic_umax v6, v10, s[8:11], 0 offen offset:16")
    a("v_not_b32 v8, v7\nbuffer_atomic_umax v8, v10, s[8:11], 0 offen offset:20")
    a("buffer_atomic_umax v7, v10, s[8:11], 0 offen offset:24")
    a("s_mov_b64 exec, -1")
    a(f"v_lshlrev_b32 v1, 7, v0\nv_add_u32 v1, {DBG1}, v1")
    a(f"v_cmp_gt_u32 vcc, {NCH + 2*P_NG}, v0\ns_mov_b64 exec, vcc")
    a("s_cbranch_execz T_end")
    a("buffer_load_dwordx2 v[4:5], v1, s[12:15], 0 offen\ns_waitcnt vmcnt(0)")
    a("v_not_b32 v8, v4\nbuffer_atomic_umax v8, v10, s[8:11], 0 offen offset:28")
    a("buffer_atomic_umax v5, v10, s[8:11], 0 offen offset:32")
    a(f"v_cmp_gt_u32 vcc, {NCH}, v0\ns_mov_b64 exec, vcc")
    a("s_cbranch_execz T_end")
    a("buffer_atomic_umax v5, v10, s[8:11], 0 offen offset:36")
    a("T_end:\ns_endpgm")
    return a.text() + descriptor("tl_kernel", 16, 32)

def build(dbg=False):
    h = HEAD
    if flag("tl"):
        h = h.replace(".amdgcn_target", "; @launch kernel=tl_kernel grid=(1,1,1) block=(1024,1,1) lds=0\n.amdgcn_target")
    return h + prep_kernel(dbg) + main_kernel(dbg) + (tl_kernel() if flag("tl") else "")

if __name__ == "__main__":
    args = [x for x in ARGS if not x.startswith("--")]
    out = args[0] if args else "gather_scatter__edge_featured_mpnn_egc__graph.s"
    open(out, "w").write(build(dbg=flag("dbg")))
    print("wrote", out, "M_LDS", M_LDS, "P_LDS", P_LDS)
```
